```python
import torch

def _softmax(x, axis=-1):
    return torch.softmax(x, dim=axis)
def _gelu(x):
    return torch.nn.functional.gelu(x, approximate="tanh")
def _silu(x):
    return torch.nn.functional.silu(x)
def _sigmoid(x):
    return torch.sigmoid(x)
def _layernorm(x, axis=-1, eps=1e-5):
    m = x.mean(dim=axis, keepdim=True)
    v = x.var(dim=axis, keepdim=True, unbiased=False)
    return (x - m) / torch.sqrt(v + eps)
def _scatter_add(tgt, idx, src, axis=0):
    return tgt.clone().index_add_(axis, idx, src)
def _segment_sum(src, seg, n):
    out = torch.zeros((n,) + src.shape[1:], dtype=src.dtype)
    return out.index_add_(0, seg, src)
def _pad(x, pw):
    flat = tuple(v for pair in reversed(pw) for v in pair)
    return torch.nn.functional.pad(x, flat)

kernel_name = 'parallel_sum__sliding_block_cached__mixer_channel_mlp__decode'

def setup_inputs():

    _w = (lambda a: (lambda t: t.to(torch.bfloat16) if t.is_floating_point() else t)(torch.as_tensor(a)))
    def _A_setup():
        B, Sq, D = 2, 1, 1024
        Hq, Hkv, Sk, Dh = 32, 4, 16384, 128
        assert Hq % Hkv == 0, (Hq, Hkv)
        return {
            "x": _w((lambda *s: torch.randn(*s, dtype=torch.bfloat16) * 0.05)(B, Sq, D)),
            "k_cache": _w((lambda *s: torch.randn(*s, dtype=torch.bfloat16) * 3.2)(B, Hkv, Sk, Dh)),
            "v_cache": _w((lambda *s: torch.randn(*s, dtype=torch.bfloat16) * 0.4)(B, Hkv, Sk, Dh)),
            "wq": _w((lambda *s: torch.randn(*s, dtype=torch.bfloat16) * 3.2)(D, Hq * Dh) * (D ** -0.5)),
            "wo": _w((lambda *s: torch.randn(*s, dtype=torch.bfloat16) * 0.4)(Hq * Dh, D) * ((Hq * Dh) ** -0.5)),
        }
    _A_in = _A_setup()

    def _B_setup():
        B, S, D, F = 2, 1, 1024, 3584
        return {
            "x": _w((lambda *s: torch.randn(*s, dtype=torch.bfloat16) * 0.05)(B, S, D)),
            "w1": _w((lambda *s: torch.randn(*s, dtype=torch.bfloat16) * 1.6)(D, F) * (D ** -0.5)),
            "b1": _w((lambda *s: torch.randn(*s, dtype=torch.bfloat16) * 0.8)(F)),
            "w2": _w((lambda *s: torch.randn(*s, dtype=torch.bfloat16) * 0.1)(F, D) * (F ** -0.5)),
            "b2": _w((lambda *s: torch.randn(*s, dtype=torch.bfloat16) * 0.1)(D)),
        }
    _B_in = _B_setup()

    return {
        "A_x": _A_in["x"],
        "A_k_cache": _A_in["k_cache"],
        "A_v_cache": _A_in["v_cache"],
        "A_wq": _A_in["wq"],
        "A_wo": _A_in["wo"],
        "B_x": _B_in["x"],
        "B_w1": _B_in["w1"],
        "B_b1": _B_in["b1"],
        "B_w2": _B_in["w2"],
        "B_b2": _B_in["b2"],
    }

def reference(A_x, A_k_cache, A_v_cache, A_wq, A_wo, B_x, B_w1, B_b1, B_w2, B_b2):
    def _A_ref(x, k_cache, v_cache, wq, wo):
        B, Sq, D = x.shape
        Hq, Dh = 32, 128
        Hkv, Sk = k_cache.shape[1], k_cache.shape[2]
        W = min(4096, max(256, Sk // 4))
        rep = Hq // Hkv
        q = (lambda x, *d: x.permute(*d))((x @ wq).reshape(B, Sq, Hq, Dh), 0, 2, 1, 3)
        k = (lambda x, n, axis: torch.repeat_interleave(x, n, dim=axis))(k_cache[:, :, Sk - W:, :], rep, axis=1)
        v = (lambda x, n, axis: torch.repeat_interleave(x, n, dim=axis))(v_cache[:, :, Sk - W:, :], rep, axis=1)
        scores = torch.einsum("bhqd,bhkd->bhqk", q, k) * (Dh ** -0.5)
        p = _softmax(scores, axis=-1)
        o = torch.einsum("bhqk,bhkd->bhqd", p, v)
        return (lambda x, *d: x.permute(*d))(o, 0, 2, 1, 3).reshape(B, Sq, Hq * Dh) @ wo

    def _B_ref(x, w1, b1, w2, b2):
        y = _layernorm(x, axis=-1)
        h = _gelu(torch.einsum("bsd,df->bsf", y, w1) + b1)
        return torch.einsum("bsf,fd->bsd", h, w2) + b2

    x = A_x
    xn = _layernorm(x, axis=-1)
    return x + _A_ref(xn, A_k_cache, A_v_cache, A_wq, A_wo) + _B_ref(xn, B_w1, B_b1, B_w2, B_b2)
```

```python
import re

def regs_of(tok):
    tok = tok.strip()
    tok = tok.lstrip('-')
    m = re.fullmatch(r'abs\((.*)\)', tok)
    if m: tok = m.group(1)
    tok = tok.strip('|')
    m = re.fullmatch(r'([vsa])(\d+)', tok)
    if m: return {(m.group(1), int(m.group(2)))}
    m = re.fullmatch(r'([vsa])\[(\d+):(\d+)\]', tok)
    if m: return {(m.group(1), i) for i in range(int(m.group(2)), int(m.group(3)) + 1)}
    if tok in ('vcc', 'vcc_lo', 'vcc_hi'): return {('s', 'vcc')}
    if tok in ('exec', 'exec_lo', 'exec_hi'): return {('s', 'exec')}
    if tok == 'm0': return {('s', 'm0')}
    return set()

TRANS = ('v_exp_f32', 'v_log_f32', 'v_rcp_f32', 'v_rsq_f32', 'v_sqrt_f32', 'v_sin_f32', 'v_cos_f32')

class Ins:
    def __init__(self, text):
        self.text = text
        t = text.split(';')[0].strip()
        self.label = t.endswith(':')
        self.directive = t.startswith('.')
        self.empty = (t == '')
        self.op = ''
        self.dst = set(); self.src = set()
        self.srcA = self.srcB = self.srcC = set()
        if self.label or self.directive or self.empty: return
        parts = t.split(None, 1)
        self.op = op = parts[0]
        rest = parts[1] if len(parts) > 1 else ''
        ops = [o.strip() for o in re.split(r',(?![^\[]*\])', rest)] if rest else []
        mods = ''
        if ops:
            sp = ops[-1].split(None, 1)
            if len(sp) > 1 and not ops[-1].startswith('hwreg'):
                ops[-1] = sp[0]; mods = sp[1]
        self.mods = mods
        self.ops = ops
        R = [regs_of(o) for o in ops]
        self.valu = op.startswith('v_') and not op.startswith('v_mfma')
        self.mfma = op.startswith('v_mfma')
        self.salu = op.startswith('s_')
        self.vmem = op.startswith(('buffer_', 'global_', 'flat_'))
        self.ds = op.startswith('ds_')
        self.dpp = self.valu and ('_dpp' in op or 'quad_perm' in mods or 'row_' in mods)
        self.trans = any(op.startswith(x) for x in TRANS)
        self.permlane = op.startswith('v_permlane')
        self.readlane = op.startswith(('v_readlane', 'v_readfirstlane'))
        self.lds_dma = self.vmem and re.search(r'\blds\b', mods) is not None
        self.wide_store = self.vmem and 'store' in op and ('x3' in op or 'x4' in op)
        allr = set().union(*R) if R else set()
        if self.mfma:
            self.dst = R[0]; self.srcA = R[1]; self.srcB = R[2]; self.srcC = R[3]; self.src = R[1] | R[2] | R[3]
        elif self.permlane:
            self.dst = R[0] | R[1]; self.src = R[0] | R[1]
        elif self.valu:
            self.dst = set(R[0]); self.src = set().union(*R[1:]) if len(R) > 1 else set()
            if op.startswith(('v_add_co', 'v_sub_co', 'v_addc_co', 'v_subb_co', 'v_div_scale', 'v_mad_u64')):
                self.dst |= R[1]; self.src = set().union(*R[2:])
            if op.startswith(('v_fmac', 'v_mac', 'v_dot2c', 'v_pk_fmac', 'v_writelane')) or self.dpp:
                self.src |= R[0]
            if op.startswith('v_cndmask') and len(ops) == 3: self.src |= {('s', 'vcc')}
            if op.startswith('v_cmpx'): self.dst |= {('s', 'exec')}
        elif self.vmem:
            if 'load' in op and not self.lds_dma:
                self.dst = R[0]; self.src = set().union(*R[1:])
            elif 'atomic' in op:
                self.src = allr
                if 'sc0' in mods: self.dst = R[0]
            else:
                self.src = allr
            if self.lds_dma: self.src |= {('s', 'm0')}
            self.data = (R[0] if op.startswith('buffer_') else R[1]) if 'store' in op else set()
        elif self.ds:
            if 'read' in op or 'rtn' in op or 'permute' in op or 'swizzle' in op:
                self.dst = R[0]; self.src = set().union(*R[1:])
            else:
                self.src = allr
        elif self.salu:
            if op.startswith(('s_cmp', 's_cbranch', 's_branch', 's_waitcnt', 's_nop', 's_barrier', 's_sleep', 's_setprio', 's_endpgm', 's_bitcmp')):
                self.src = allr
            else:
                self.dst = R[0] if R else set(); self.src = set().union(*R[1:]) if len(R) > 1 else set()
                if 'saveexec' in op: self.dst |= {('s', 'exec')}
    def states(self):
        if self.label or self.directive or self.empty: return 0
        if self.op == 's_nop': return int(self.ops[0], 0) + 1
        return 1

def vset(s): return {r for r in s if r[0] in 'va'}
def sset(s): return {r for r in s if r[0] == 's'}

def need(p, c):
    n = 0
    pv = vset(p.dst); ps = sset(p.dst)
    if p.valu:
        if pv & vset(c.src):
            if c.dpp: n = max(n, 2)
            if c.permlane: n = max(n, 2)
            if c.readlane: n = max(n, 1)
            if c.mfma: n = max(n, 2)
            if p.trans and c.valu and not c.trans: n = max(n, 1)
            if p.trans and not c.valu: n = max(n, 1)
            if 'sdwa' in p.op or ('op_sel' in p.mods and not p.op.startswith('v_pk_')): n = max(n, 1)
        if ps & sset(c.src):
            if c.valu or c.mfma: n = max(n, 2)
            if c.op.startswith(('v_readlane', 'v_writelane')): n = max(n, 4)
            if c.vmem: n = max(n, 5)
        if ('s', 'exec') in ps:
            if c.dpp: n = max(n, 5)
            if c.readlane or c.permlane or c.mfma: n = max(n, 4)
    if p.mfma:
        passes = 4 if '16x16x32' in p.op else 8
        big = {4: 8, 8: 12}[passes]; ovl = {4: 6, 8: 10}[passes]; war = {4: 3, 8: 7}[passes]
        if c.mfma:
            if pv & (c.srcA | c.srcB): n = max(n, big)
            if pv & c.srcC and pv != c.srcC: n = max(n, ovl)
            if pv & c.dst and pv != c.srcC: n = max(n, big)
        else:
            if pv & (vset(c.src) | vset(c.dst)): n = max(n, big)
            if c.valu and (p.srcC & vset(c.dst)): n = max(n, war)
    if p.salu and ('s', 'm0') in ps and c.vmem and c.lds_dma: n = max(n, 1)
    if p.vmem and p.wide_store and (p.data & vset(c.dst)): n = max(n, 2)
    return n

class Asm:
    def __init__(self):
        self.ins = []
    def __call__(self, text):
        for line in text.split('\n'):
            self.ins.append(Ins(line))
    def finish(self):
        out = []
        for c in self.ins:
            if not (c.label or c.directive or c.empty):
                dist = 0; req = 0
                for p in reversed(out):
                    if p.label or p.directive or p.empty: continue
                    nd = need(p, c)
                    if nd > dist: req = max(req, nd - dist)
                    dist += p.states()
                    if dist >= 24: break
                while req > 0:
                    k = min(req, 16)
                    out.append(Ins(f's_nop {k-1}')); req -= k
            out.append(c)
        return '\n'.join(i.text for i in out) + '\n'
```

```python
import sys
from asmlib import Asm

KNAME = "parallel_sum__sliding_block_cached__mixer_channel_mlp__decode_kernel"

WS_QH = 0x1000; WS_OH = 0x4000; WS_HH = 0x8000; WS_LS = 0x10000; WS_QP = 0x20000
WS_HP = 0x40000; WS_FP = 0x80000; WS_OP = 0x100000; WS_ST = 0x200000
WS_BYTES = 0x10000000
KSTR = 1088; VSTR = 1152
L_X = 0
L_Y = L_X + 2048; L_QPART = L_Y + 2048; L_HPART = L_QPART + 2048
L_QBUF = L_HPART + 2048; L_P = L_QBUF + 2304; L_ML = L_P + 4096
L_O = L_ML + 512; L_H = L_O + 512; L_F = L_H + 512
L_K = L_F + 128; L_V = L_K + 32 * KSTR; L_END = L_V + 32 * VSTR
F_X, F_Y, F_Q, F_K, F_V, F_H, F_B1, F_B2, F_O, F_HD = [L_F + 4 * i for i in range(10)]
TO_LIMIT = 1 << 17

def gen(W=None, stamps=False, ldflags="nt", order="qkv12o", qstart=4, cprio=3):
    a = Asm()
    if W is None: W = [6] * 48
    if isinstance(W, int): W = [W] * 48
    lab = [0]
    def newlab(p="L"):
        lab[0] += 1
        return f"{p}_{lab[0]}"
    vStamp = 160
    def stamp(k):
        if stamps:
            a(f"s_memrealtime s[98:99]\ns_waitcnt lgkmcnt(0)\nv_writelane_b32 v{vStamp}, s98, {k}")
    def signal(flag):
        a(f"s_mov_b64 exec, 1\nds_add_u32 v2, v3 offset:{flag}\ns_mov_b64 exec, -1")
    def poll_lds(flag, n, vt, code):
        L = newlab("PL"); D = newlab("PD")
        a(f"""{L}:
ds_read_b32 v{vt}, v2 offset:{flag}
s_waitcnt lgkmcnt(0)
v_readfirstlane_b32 s14, v{vt}
s_cmp_ge_u32 s14, {n}
s_cbranch_scc1 {D}
s_add_u32 s10, s10, 1
s_cmp_lt_u32 s10, {TO_LIMIT}
s_cbranch_scc1 {L}
s_mov_b32 s15, {code}
s_branch L_fail
{D}:""")
    def red64(v, s):
        for m in ("quad_perm:[1,0,3,2] row_mask:0xf", "quad_perm:[2,3,0,1] row_mask:0xf", "row_half_mirror row_mask:0xf",
                  "row_mirror row_mask:0xf", "row_bcast:15 row_mask:0xa", "row_bcast:31 row_mask:0xc"):
            a(f"v_add_f32_dpp v{v}, v{v}, v{v} {m} bank_mask:0xf")
        a(f"v_readlane_b32 s{s}, v{v}, 63")
    def nonce():
        a("s_mul_i32 s12, s11, 0x9E3779B1\ns_add_u32 s12, s12, 0x85EBCA77\ns_mov_b32 s13, s12")
        a("s_mov_b32 s20, 0x07060500\ns_mov_b32 s21, 0x07060501\ns_mov_b32 s22, 0x07060502\ns_mov_b32 s23, 0x07060503")
    def tag4(src, dst, vT):
        for k in range(4): a(f"v_perm_b32 v{dst+k}, v{src+k}, v{vT}, s{20+k}")

    lds_total = max(L_END, 81984)
    a(f"; @launch grid=(256,1,1) block=(512,1,1) lds={lds_total}")
    a('.amdgcn_target "amdgcn-amd-amdhsa--gfx950"')
    a(f".text\n.globl {KNAME}\n.p2align 8\n.type {KNAME},@function\n{KNAME}:")
    a("""s_cmp_ge_u32 s2, 256
s_cbranch_scc1 L_end
s_load_dwordx2 s[32:33], s[0:1], 24
s_load_dwordx2 s[24:25], s[0:1], 0
s_load_dwordx2 s[36:37], s[0:1], 8
s_load_dwordx2 s[56:57], s[0:1], 96
s_load_dwordx2 s[40:41], s[0:1], 16
s_load_dwordx2 s[44:45], s[0:1], 48
s_load_dwordx2 s[48:49], s[0:1], 32""")
    if stamps:
        a(f"s_memrealtime s[96:97]\nv_mov_b32 v{vStamp}, 0")
    a("""v_lshrrev_b32 v4, 6, v0
v_and_b32 v1, 63, v0
v_readfirstlane_b32 s3, v4
v_mov_b32 v2, 0
v_mov_b32 v3, 1
s_and_b32 s4, s2, 7
s_lshr_b32 s5, s2, 3
s_lshr_b32 s14, s5, 2
s_lshl_b32 s6, s4, 3
s_add_u32 s6, s6, s14
s_and_b32 s7, s5, 3
s_mul_i32 s8, s4, 7
s_add_u32 s8, s8, s14
s_cmp_lt_u32 s14, 7
s_cselect_b32 s9, 1, 0
s_mov_b32 s10, 0""")
    a(f"s_mov_b32 s58, {WS_BYTES}\ns_mov_b32 s59, 0x20000")
    a("s_cmp_ge_u32 s3, 4\ns_cbranch_scc1 L_C")

    a("s_load_dwordx2 s[52:53], s[0:1], 64")
    a(f"""s_mov_b32 s34, {1024*8192}
s_mov_b32 s35, 0x20000
s_mov_b32 s38, {2*4*16384*256}
s_mov_b32 s39, 0x20000
s_mov_b32 s42, {2*4*16384*256}
s_mov_b32 s43, 0x20000
s_cmp_lg_u32 s9, 0
s_cselect_b32 s46, {1024*7168}, 0
s_cselect_b32 s54, {3584*2048}, 0
s_mov_b32 s47, 0x20000
s_mov_b32 s50, {4096*2048}
s_mov_b32 s51, 0x20000
s_mov_b32 s55, 0x20000""")
    a(f"""s_lshl_b32 s14, s7, 8
s_lshl_b32 s15, s3, 6
s_add_u32 s14, s14, s15
s_lshl_b32 s60, s14, 13
s_lshl_b32 s15, s6, 7
s_add_u32 s60, s60, s15
s_mul_i32 s63, s14, 7168
s_lshl_b32 s15, s8, 7
s_add_u32 s63, s63, s15
s_lshl_b32 s14, s14, 1
s_lshl_b32 s64, s6, 17
s_add_u32 s64, s64, s14
s_lshl_b32 s65, s8, 17
s_add_u32 s65, s65, s14
s_lshl_b32 s61, s4, 22
s_lshl_b32 s15, s5, 15
s_add_u32 s61, s61, s15
s_lshl_b32 s15, s3, 13
s_add_u32 s61, s61, s15
s_add_u32 s61, s61, {12288*256}
s_mov_b32 s62, s61
s_mul_i32 s66, s3, {8*KSTR}
s_add_u32 s66, s66, {L_K}
s_mul_i32 s67, s3, {8*VSTR}
s_add_u32 s67, s67, {L_V}""")
    vOffQ, vOff1, vOffO, vOffK, vOffV = 18, 19, 4, 5, 6
    vLdsX, vLdsO, vPart, vFP, vT = 7, 12, 13, 14, 17
    vM = 8
    a(f"""v_lshrrev_b32 v20, 4, v1
v_bfe_u32 v21, v1, 3, 1
v_and_b32 v22, 7, v1
v_lshl_add_u32 v23, v20, 2, v21
v_lshlrev_b32 v24, 4, v22
v_lshl_add_u32 v{vOffQ}, v23, 13, v24
v_mul_u32_u24 v25, 7168, v23
v_add_u32 v{vOff1}, v25, v24
v_lshl_add_u32 v{vOffO}, v23, 11, v24
v_and_b32 v25, 15, v1
v_xor_b32 v26, v25, v20
v_lshlrev_b32 v26, 4, v26
v_lshl_add_u32 v{vOffK}, v20, 8, v26
v_lshlrev_b32 v26, 1, v20
v_xor_b32 v26, v25, v26
v_lshlrev_b32 v26, 4, v26
v_lshl_add_u32 v{vOffV}, v20, 8, v26""")
    DQ, D2, DO = 64, 96, 128
    seq = [(t, i) for t in order for i in range(8)]
    info = {'q': (32, 60, vOffQ, 8192, DQ), '1': (44, 63, vOff1, 7168, DQ), '2': (52, 65, vOffO, 2048, D2), 'o': (48, 64, vOffO, 2048, DO),
            'k': (36, 61, vOffK, None, None), 'v': (40, 62, vOffV, None, None)}
    def issue(t, i):
        srd, so, vo, stride, D = info[t]
        if t in 'kv':
            if i > 0: a(f"s_add_u32 s{so}, s{so}, 1024")
            base, st = (66, KSTR) if t == 'k' else (67, VSTR)
            a(f"s_add_u32 m0, s{base}, {i*st}")
            a(f"buffer_load_dwordx4 v{vo}, s[{srd}:{srd+3}], s{so} offen {ldflags} lds")
        else:
            if i > 0:
                d = (16 * (i >> 1) + 2 * (i & 1)) - (16 * ((i - 1) >> 1) + 2 * ((i - 1) & 1))
                a(f"s_add_u32 s{so}, s{so}, {d*stride}")
            a(f"buffer_load_dwordx4 v[{D+4*i}:{D+4*i+3}], v{vo}, s[{srd}:{srd+3}], s{so} offen {ldflags}")
    DUP, A0, A1, AC0, AC1, X = 20, 36, 40, 52, 56, 60
    def buildA(i):
        for h, Ar in ((0, A0), (1, A1)):
            src = DUP + 4 * (i >> 1) + 2 * (i & 1) + h
            for r in range(4): a(f"v_and_b32 v{Ar+r}, v{src}, v{vM+r}")
    def mm(D, i, first):
        for Ar, AC in ((A0, AC0), (A1, AC1)):
            c = "0" if first else f"v[{AC}:{AC+3}]"
            a(f"v_mfma_f32_16x16x32_bf16 v[{AC}:{AC+3}], v[{Ar}:{Ar+3}], v[{D+4*i}:{D+4*i+3}], {c}")
    def readdup(vaddr, base):
        for t in range(4): a(f"ds_read_b128 v[{DUP+4*t}:{DUP+4*t+3}], v{vaddr} offset:{base+64*t}")
        a("s_waitcnt lgkmcnt(0)")
    def combine():
        for r in range(4): a(f"v_cndmask_b32 v{X+r}, v{AC0+r}, v{AC1+r}, s[18:19]")
        for r in range(4): a(f"v_add_f32_dpp v{X+r}, v{X+r}, v{X+r} row_ror:8 row_mask:0xf bank_mask:0xf")
    a("s_waitcnt lgkmcnt(0)")
    if stamps: a(f"v_writelane_b32 v{vStamp}, s96, 0")
    stamp(1)
    landed = 0; done = 0
    setup_done = False
    def setup():
        a("s_load_dword s11, s[56:57], 0")
        a(f"""v_and_b32 v25, 1, v1
v_bfe_u32 v26, v1, 1, 2
v_mov_b32 v27, 0xffff
v_lshlrev_b32 v25, 4, v25
v_lshlrev_b32 v27, v25, v27""")
        for r in range(4):
            a(f"v_cmp_eq_u32 vcc, {r}, v26\nv_cndmask_b32 v{vM+r}, 0, v27, vcc")
        a(f"""v_lshlrev_b32 v25, 4, v20
v_lshl_add_u32 v{vLdsO}, v21, 8, v25
v_lshl_add_u32 v{vLdsX}, v21, 10, v25
s_lshl_b32 s14, s3, 8
v_add_u32 v{vLdsX}, s14, v{vLdsX}
v_lshrrev_b32 v25, 1, v20
v_and_b32 v26, 1, v20
v_lshlrev_b32 v27, 5, v22
v_lshl_add_u32 v27, v26, 4, v27
v_lshl_add_u32 v{vPart}, v25, 8, v27
s_lshl_b32 s14, s3, 9
v_add_u32 v{vPart}, s14, v{vPart}
v_lshlrev_b32 v27, 11, v22
v_lshl_add_u32 v27, v26, 4, v27
v_lshl_add_u32 v{vFP}, v25, 18, v27
s_mov_b32 s18, 0xff00ff00
s_mov_b32 s19, 0xff00ff00
s_barrier""")
    def process(t, i):
        if t in 'q1':
            if i == 0:
                poll_lds(F_X if t == 'q' else F_Y, 2, 60, 1 if t == 'q' else 2)
                readdup(vLdsX, L_X if t == 'q' else L_Y)
                buildA(0)
            mm(DQ, i, i == 0)
            if i < 7: buildA(i + 1)
            else:
                combine()
                a(f"s_mov_b64 exec, 0x00ff00ff" if False else "s_mov_b32 exec_lo, 0x00ff00ff\ns_mov_b32 exec_hi, 0x00ff00ff")
                a(f"ds_write_b128 v{vPart}, v[{X}:{X+3}] offset:{L_QPART if t == 'q' else L_HPART}")
                signal(F_Q if t == 'q' else F_H)
                stamp(2 if t == 'q' else 5)
        elif t in 'kv' and i == 7:
            signal(F_K if t == 'k' else F_V)
            stamp(3 if t == 'k' else 4)
    for n, (t, i) in enumerate(seq):
        want = n - W[n] + 1
        if want > landed:
            if not setup_done: setup(); setup_done = True
            a(f"s_waitcnt vmcnt({n - want})"); landed = want
        issue(t, i)
        while done < landed and seq[done][0] not in '2o':
            if seq[done] [0] == 'q' and landed < qstart: break
            process(*seq[done]); done += 1
    stamp(6)
    N = len(seq)
    first = True
    while done < N:
        t, i = seq[done]
        if t in '2o' and i == 0:
            poll_lds(F_HD if t == '2' else F_O, 1 if t == '2' else 4, 60, 3 if t == '2' else 4)
            stamp(7 if t == '2' else 8)
            readdup(vLdsO, L_H if t == '2' else L_O)
            buildA(0)
            if first:
                nonce(); a(f"v_mov_b32 v{vT}, s12")
        if done >= landed:
            a(f"s_waitcnt vmcnt({N - 1 - done})"); landed = done + 1
        if t in '2o':
            mm(info[t][4], i, first); first = False
            if i < 7: buildA(i + 1)
        else:
            process(t, i)
        done += 1
    stamp(9)
    combine()
    tag4(X, X, vT)
    a(f"""s_lshl_b32 s14, s7, 5
s_lshl_b32 s15, s3, 3
s_add_u32 s14, s14, s15
s_lshl_b32 s14, s14, 11
s_lshl_b32 s15, s6, 5
s_add_u32 s14, s14, s15
s_add_u32 s14, s14, {WS_FP}
s_mov_b32 exec_lo, 0x00ff00ff
s_mov_b32 exec_hi, 0x00ff00ff
buffer_store_dwordx4 v[{X}:{X+3}], v{vFP}, s[56:59], s14 offen sc1
s_mov_b64 exec, -1""")
    stamp(10)
    a("s_branch L_exit")

    a("L_C:")
    if cprio: a(f"s_setprio {cprio}")
    vL16, vT, vTb = 4, 5, 6
    vXf, vB2f, vB1 = 10, 11, 12
    a(f"""s_sub_u32 s3, s3, 4
s_mov_b32 s26, 4096
s_mov_b32 s27, 0x20000
v_lshlrev_b32 v{vL16}, 4, v1
v_lshlrev_b32 v16, 3, v1
v_lshlrev_b32 v17, 2, v1
s_and_b32 s16, s3, 1
s_lshl_b32 s14, s16, 11
s_lshl_b32 s15, s7, 9
s_add_u32 s15, s15, s14
s_cmp_lg_u32 s3, 0
s_cbranch_scc1 L_nozero
s_mov_b64 exec, 0xffff
ds_write_b32 v17, v2 offset:{L_F}
s_mov_b64 exec, -1
L_nozero:
s_waitcnt lgkmcnt(0)
buffer_load_dwordx4 v[20:23], v{vL16}, s[24:27], s14 offen
buffer_load_dwordx4 v[24:27], v{vL16}, s[24:27], s14 offen offset:1024
buffer_load_dwordx2 v[28:29], v16, s[24:27], s15 offen
s_load_dword s11, s[56:57], 0
s_load_dwordx2 s[36:37], s[0:1], 56
s_load_dwordx2 s[40:41], s[0:1], 72
s_load_dwordx2 s[44:45], s[0:1], 80
s_barrier""")
    if stamps: a(f"v_writelane_b32 v{vStamp}, s96, 0")
    F = 32
    def unpack(src, dst, n):
        for k in range(n):
            a(f"v_lshlrev_b32 v{dst+2*k}, 16, v{src+k}\nv_and_b32 v{dst+2*k+1}, 0xffff0000, v{src+k}")
    def stats(F):
        a(f"v_add_f32 v48, v{F}, v{F+1}\nv_add_f32 v49, v{F+2}, v{F+3}")
        for k in range(4, 16, 2):
            a(f"v_add_f32 v48, v48, v{F+k}\nv_add_f32 v49, v49, v{F+k+1}")
        a("v_add_f32 v48, v48, v49")
        red64(48, 14)
        a("v_mov_b32 v51, 0x3a800000\nv_mul_f32 v48, s14, v51")
        a(f"v_sub_f32 v52, v{F}, v48\nv_sub_f32 v53, v{F+1}, v48\nv_mul_f32 v49, v52, v52\nv_mul_f32 v50, v53, v53")
        for k in range(2, 16, 2):
            a(f"v_sub_f32 v52, v{F+k}, v48\nv_sub_f32 v53, v{F+k+1}, v48\nv_fmac_f32 v49, v52, v52\nv_fmac_f32 v50, v53, v53")
        a("v_add_f32 v49, v49, v50")
        red64(49, 14)
        a("""v_mul_f32 v49, s14, v51
v_cvt_pk_bf16_f32 v48, v48, v49
v_and_b32 v49, 0xffff0000, v48
v_lshlrev_b32 v48, 16, v48
v_add_f32 v49, 0x3727c5ac, v49
v_cvt_pk_bf16_f32 v49, v49, v49
v_and_b32 v49, 0xffff0000, v49
v_sqrt_f32 v49, v49
v_cvt_pk_bf16_f32 v49, v49, v49
v_and_b32 v49, 0xffff0000, v49
v_rcp_f32 v50, v49""")
    def normalize(F, n):
        for k in range(0, n, 2):
            a(f"v_sub_f32 v{F+k}, v{F+k}, v48\nv_sub_f32 v{F+k+1}, v{F+k+1}, v48")
            a(f"v_cvt_pk_bf16_f32 v52, v{F+k}, v{F+k+1}")
            a(f"v_lshlrev_b32 v{F+k}, 16, v52\nv_and_b32 v{F+k+1}, 0xffff0000, v52")
            a(f"v_mul_f32 v52, v{F+k}, v50\nv_mul_f32 v53, v{F+k+1}, v50")
            a(f"v_fma_f32 v{F+k}, -v52, v49, v{F+k}\nv_fma_f32 v{F+k+1}, -v53, v49, v{F+k+1}")
            a(f"v_fma_f32 v{F+k}, v{F+k}, v50, v52\nv_fma_f32 v{F+k+1}, v{F+k+1}, v50, v53")
    def roundbf(F, n):
        for k in range(0, n, 2):
            a(f"v_cvt_pk_bf16_f32 v52, v{F+k}, v{F+k+1}")
            a(f"v_lshlrev_b32 v{F+k}, 16, v52\nv_and_b32 v{F+k+1}, 0xffff0000, v52")
    a("s_waitcnt vmcnt(1)")
    stamp(1)
    unpack(20, F, 8)
    stats(F)
    a("s_waitcnt vmcnt(0)")
    unpack(28, 56, 2)
    normalize(56, 4)
    a(f"s_lshl_b32 s14, s16, 10\nv_add_u32 v16, s14, v{vL16}")
    a("s_cmp_ge_u32 s3, 2\ns_cbranch_scc1 L_ypath")
    for k in range(4): a(f"v_cvt_pk_bf16_f32 v{60+k}, v{56+k}, v{56+k}")
    a(f"ds_write_b128 v16, v[60:63] offset:{L_X}")
    signal(F_X)
    a("s_branch L_lndone\nL_ypath:")
    roundbf(56, 4)
    normalize(F, 16)
    roundbf(F, 16)
    stats(F)
    normalize(56, 4)
    for k in range(4): a(f"v_cvt_pk_bf16_f32 v{60+k}, v{56+k}, v{56+k}")
    a(f"ds_write_b128 v16, v[60:63] offset:{L_Y}")
    signal(F_Y)
    a("L_lndone:")
    stamp(2)
    a("s_waitcnt lgkmcnt(0)")
    nonce()
    a(f"""v_mov_b32 v{vT}, s12
v_mov_b32 v{vTb}, s12
v_lshrrev_b32 v{vTb+1}, 8, v{vT}
v_lshrrev_b32 v{vTb+2}, 16, v{vT}
v_lshrrev_b32 v{vTb+3}, 24, v{vT}
s_mov_b32 s38, 7168
s_mov_b32 s39, 0x20000
s_mov_b32 s42, 2048
s_mov_b32 s43, 0x20000
s_mov_b32 s46, 4096
s_mov_b32 s47, 0x20000
v_and_b32 v16, 1, v1
v_lshrrev_b32 v17, 4, v1
v_lshl_add_u32 v16, v16, 2, v17
v_lshlrev_b32 v14, 1, v16
s_lshl_b32 s14, s2, 4
s_and_b32 s15, s14, 2047
v_and_b32 v16, 15, v1
v_lshlrev_b32 v16, 3, v16
s_lshl_b32 s17, s8, 7
buffer_load_ushort v{vXf}, v14, s[24:27], s14 offen
buffer_load_ushort v{vB2f}, v14, s[40:43], s15 offen
buffer_load_dwordx2 v[{vB1}:{vB1+1}], v16, s[36:39], s17 offen""")
    def publish_part(lbase, flag, code, soff_code, hint_code):
        poll_lds(flag, 4, 16, code)
        for w in range(4): a(f"ds_read_b128 v[{16+4*w}:{19+4*w}], v{vL16} offset:{lbase+512*w}")
        a(soff_code)
        a("s_waitcnt lgkmcnt(0)")
        for k in range(4): a(f"v_add_f32 v{16+k}, v{16+k}, v{20+k}\nv_add_f32 v{24+k}, v{24+k}, v{28+k}")
        for k in range(4): a(f"v_add_f32 v{16+k}, v{16+k}, v{24+k}")
        tag4(16, 16, vT)
        a("s_mov_b64 exec, 0xffffffff" if False else "s_mov_b32 exec_hi, 0")
        a("buffer_store_dwordx4 v[16:19], v32, s[56:59], s14 offen sc1")
        a(hint_code)
        a("s_mov_b64 exec, -1")
    a("s_cmp_lg_u32 s3, 0\ns_cbranch_scc1 L_noqpub")
    publish_part(L_QPART, F_Q, 5, f"""v_lshrrev_b32 v32, 4, v1
v_and_b32 v33, 15, v1
v_lshlrev_b32 v33, 4, v33
v_lshl_add_u32 v32, v32, 14, v33
v_lshlrev_b32 v33, 7, v1
s_lshr_b32 s14, s6, 4
s_lshl_b32 s14, s14, 15
s_bfe_u32 s15, s6, 0x20002
s_lshl_b32 s15, s15, 12
s_add_u32 s14, s14, s15
s_lshl_b32 s15, s7, 10
s_add_u32 s14, s14, s15
s_and_b32 s15, s6, 3
s_lshl_b32 s15, s15, 8
s_add_u32 s14, s14, s15
s_add_u32 s14, s14, {WS_QP}
s_lshr_b32 s15, s6, 2
s_lshl_b32 s15, s15, 9
s_and_b32 s17, s6, 3
s_lshl_b32 s17, s17, 2
s_add_u32 s17, s17, s7
s_lshl_b32 s17, s17, 2
s_add_u32 s15, s15, s17
s_add_u32 s15, s15, {WS_QH}""", f"s_mov_b32 exec_lo, 15\nbuffer_store_dword v{vT}, v33, s[56:59], s15 offen sc1")
    stamp(3)
    a("L_noqpub:")
    def poll_hints(nq, code):
        L = newlab("HL"); D = newlab("HD"); R = newlab("HR")
        a(f"{L}:")
        if nq == 0: a("s_load_dwordx4 s[64:67], s[60:61], 0 glc")
        for q in range(nq): a(f"s_load_dwordx16 s[{64+16*q}:{79+16*q}], s[60:61], {64*q} glc")
        a("s_waitcnt lgkmcnt(0)")
        for j in range(max(nq * 8, 2)):
            a(f"s_cmp_eq_u64 s[{64+2*j}:{65+2*j}], s[12:13]\ns_cbranch_scc0 {R}")
        a(f"s_branch {D}\n{R}:\ns_add_u32 s10, s10, 1\ns_cmp_lt_u32 s10, {TO_LIMIT}\ns_cbranch_scc1 {L}\ns_mov_b32 s15, {code}\ns_branch L_fail\n{D}:")
    def check_tags(G, n, vacc):
        a(f"v_xor_b32 v{vacc}, v{G}, v{vTb}")
        for j in range(1, 4 * n): a(f"v_bitop3_b32 v{vacc}, v{vacc}, v{G+j}, v{vTb+(j&3)} bitop3:0xf6")
        a(f"v_and_b32 v{vacc}, 0xff, v{vacc}")
    def retry_if(vacc, L, code):
        D = newlab("RD")
        a(f"v_cmp_ne_u32 vcc, 0, v{vacc}\ns_cbranch_vccz {D}\ns_add_u32 s10, s10, 1\ns_cmp_lt_u32 s10, {TO_LIMIT}\ns_cbranch_scc1 {L}\ns_mov_b32 s15, {code}\ns_branch L_fail\n{D}:")
    def maskt(G, n):
        for j in range(n): a(f"v_and_b32 v{G+j}, 0xffffff00, v{G+j}")
    G = 16
    a(f"""s_and_b32 s14, s4, 3
s_lshl_b32 s14, s14, 2
s_add_u32 s14, s14, s3
s_lshl_b32 s14, s14, 9
s_lshr_b32 s15, s4, 2
s_lshl_b32 s15, s15, 1
s_lshr_b32 s17, s5, 4
s_add_u32 s15, s15, s17
s_lshl_b32 s15, s15, 7
s_add_u32 s14, s14, s15
s_add_u32 s14, s14, {WS_QH}
s_add_u32 s60, s56, s14
s_addc_u32 s61, s57, 0
s_and_b32 s14, s4, 3
s_lshl_b32 s14, s14, 1
s_lshr_b32 s15, s4, 2
s_add_u32 s14, s14, s15
s_lshl_b32 s14, s14, 14
s_lshl_b32 s15, s3, 12
s_add_u32 s14, s14, s15
s_add_u32 s62, s14, {WS_QP}""")
    vKa, vQw, vQr, vVa0, vVa1, vMl = 52, 53, 54, 55, 56, 57
    a(f"""v_and_b32 v16, 15, v1
v_lshrrev_b32 v17, 4, v1
v_lshrrev_b32 v18, 2, v16
v_and_b32 v19, 3, v1
v_mul_u32_u24 v{vKa}, {KSTR}, v18
v_lshl_add_u32 v{vKa}, v19, 8, v{vKa}
v_xor_b32 v20, v17, v19
v_lshl_add_u32 v{vKa}, v20, 4, v{vKa}
s_mul_i32 s14, s3, {8*KSTR}
v_add_u32 v{vKa}, s14, v{vKa}
v_lshrrev_b32 v20, 5, v1
v_mul_u32_u24 v20, 288, v20
v_and_b32 v21, 31, v1
v_lshl_add_u32 v{vQw}, v21, 3, v20
s_mul_i32 s14, s3, 576
v_add_u32 v{vQw}, s14, v{vQw}
v_and_b32 v20, 7, v1
v_mul_u32_u24 v20, 288, v20
v_lshl_add_u32 v{vQr}, v17, 4, v20
v_mul_u32_u24 v20, {VSTR}, v17
v_lshl_add_u32 v20, v18, 8, v20
v_and_b32 v21, 1, v1
v_lshl_add_u32 v20, v21, 3, v20
v_add_u32 v20, {L_V}, v20
v_bfe_u32 v21, v1, 1, 1
s_lshl_b32 s14, s3, 2
v_add_u32 v21, s14, v21
v_lshlrev_b32 v22, 1, v18
v_xor_b32 v21, v21, v22
v_lshl_add_u32 v{vVa0}, v21, 4, v20
v_xor_b32 v21, 2, v21
v_lshl_add_u32 v{vVa1}, v21, 4, v20
v_lshlrev_b32 v{vMl}, 3, v16""")
    poll_hints(1, 6)
    stamp(4)
    Lq = newlab("GQ")
    a(f"{Lq}:")
    for i in range(4): a(f"buffer_load_dwordx4 v[{G+4*i}:{G+4*i+3}], v{vL16}, s[56:59], s62 offen offset:{1024*i} sc1")
    KF, VF, QF = 64, 96, 128
    poll_lds(F_K, 4, 32, 7)
    for t in range(2):
        for s in range(4): a(f"ds_read_b128 v[{KF+16*t+4*s}:{KF+16*t+4*s+3}], v{vKa} offset:{L_K+4*KSTR*t+64*s}")
    a("s_waitcnt vmcnt(0)")
    check_tags(G, 4, 32)
    retry_if(32, Lq, 8)
    stamp(5)
    maskt(G, 16)
    for k in range(4): a(f"v_add_f32 v{G+k}, v{G+k}, v{G+4+k}\nv_add_f32 v{G+8+k}, v{G+8+k}, v{G+12+k}")
    for k in range(4): a(f"v_add_f32 v{G+k}, v{G+k}, v{G+8+k}")
    a(f"v_cvt_pk_bf16_f32 v{G}, v{G}, v{G+1}\nv_cvt_pk_bf16_f32 v{G+1}, v{G+2}, v{G+3}")
    a(f"ds_write_b64 v{vQw}, v[{G}:{G+1}] offset:{L_QBUF}")
    signal(F_B1)
    poll_lds(F_B1, 4, 32, 9)
    for s in range(4): a(f"ds_read_b128 v[{QF+4*s}:{QF+4*s+3}], v{vQr} offset:{L_QBUF+64*s}")
    a("s_waitcnt lgkmcnt(0)")
    S = 40
    for s in range(4):
        for t in range(2):
            c = "0" if s == 0 else f"v[{S+4*t}:{S+4*t+3}]"
            a(f"v_mfma_f32_16x16x32_bf16 v[{S+4*t}:{S+4*t+3}], v[{KF+16*t+4*s}:{KF+16*t+4*s+3}], v[{QF+4*s}:{QF+4*s+3}], {c}")
    a("s_mov_b32 s14, 0x3db504f3\ns_mov_b32 s15, 0x3fb8aa3b")
    for k in range(0, 8, 2): a(f"v_cvt_pk_bf16_f32 v{32+k//2}, v{S+k}, v{S+k+1}")
    for k in range(0, 8, 2): a(f"v_lshlrev_b32 v{S+k}, 16, v{32+k//2}\nv_and_b32 v{S+k+1}, 0xffff0000, v{32+k//2}")
    for k in range(8): a(f"v_mul_f32 v{S+k}, s14, v{S+k}")
    for k in range(0, 8, 2): a(f"v_cvt_pk_bf16_f32 v{32+k//2}, v{S+k}, v{S+k+1}")
    for k in range(0, 8, 2): a(f"v_lshlrev_b32 v{S+k}, 16, v{32+k//2}\nv_and_b32 v{S+k+1}, 0xffff0000, v{32+k//2}")
    a(f"v_max3_f32 v32, v{S}, v{S+1}, v{S+2}\nv_max3_f32 v33, v{S+3}, v{S+4}, v{S+5}\nv_max3_f32 v32, v32, v{S+6}, v{S+7}\nv_max_f32 v32, v32, v33")
    def xlane(v, tmp, op):
        for sw in ("v_permlane16_swap_b32", "v_permlane32_swap_b32"):
            a(f"v_mov_b32 v{tmp}, v{v}\n{sw} v{v}, v{tmp}\n{op} v{v}, v{v}, v{tmp}")
    xlane(32, 33, "v_max_f32")
    for k in range(8): a(f"v_sub_f32 v{S+k}, v{S+k}, v32")
    for k in range(8): a(f"v_mul_f32 v{S+k}, s15, v{S+k}")
    for k in range(8): a(f"v_exp_f32 v{S+k}, v{S+k}")
    a("v_mul_f32 v32, s15, v32")
    for k in range(0, 8, 2): a(f"v_cvt_pk_bf16_f32 v{48+k//2}, v{S+k}, v{S+k+1}")
    a(f"s_lshl_b32 s14, s3, 10\nv_add_u32 v34, s14, v{vL16}\nds_write_b128 v34, v[48:51] offset:{L_P}")
    a(f"v_add_f32 v33, v{S}, v{S+1}\nv_add_f32 v35, v{S+2}, v{S+3}\nv_add_f32 v36, v{S+4}, v{S+5}\nv_add_f32 v37, v{S+6}, v{S+7}")
    a("v_add_f32 v33, v33, v35\nv_add_f32 v36, v36, v37\nv_add_f32 v33, v33, v36")
    xlane(33, 35, "v_add_f32")
    a(f"s_lshl_b32 s14, s3, 7\nv_add_u32 v34, s14, v{vMl}\nds_write_b64 v34, v[32:33] offset:{L_ML}")
    signal(F_B2)
    stamp(6)
    poll_lds(F_V, 4, 32, 10)
    for w in range(4):
        for t, va in ((0, vVa0), (1, vVa1)):
            for T in range(2):
                r = VF + 8 * w + 4 * t + 2 * T
                a(f"ds_read_b64_tr_b16 v[{r}:{r+1}], v{va} offset:{(8*w+4*T)*VSTR}")
    poll_lds(F_B2, 4, 32, 11)
    stamp(7)
    PW = 16; ML = 32; AC = 128
    for w in range(4): a(f"ds_read_b128 v[{PW+4*w}:{PW+4*w+3}], v{vL16} offset:{L_P+1024*w}")
    for w in range(4): a(f"ds_read_b64 v[{ML+2*w}:{ML+2*w+1}], v{vMl} offset:{L_ML+128*w}")
    a("s_waitcnt lgkmcnt(0)")
    for w in range(4):
        for t in range(2):
            r = AC + 8 * w + 4 * t
            a(f"v_mfma_f32_16x16x32_bf16 v[{r}:{r+3}], v[{VF+8*w+4*t}:{VF+8*w+4*t+3}], v[{PW+4*w}:{PW+4*w+3}], 0")
    a(f"v_max3_f32 v40, v{ML}, v{ML+2}, v{ML+4}\nv_max_f32 v40, v40, v{ML+6}")
    for w in range(4): a(f"v_sub_f32 v{41+w}, v{ML+2*w}, v40")
    for w in range(4): a(f"v_exp_f32 v{41+w}, v{41+w}")
    a(f"v_mul_f32 v45, v41, v{ML+1}")
    for w in range(1, 4): a(f"v_fmac_f32 v45, v{41+w}, v{ML+2*w+1}")
    a("v_rcp_f32 v46, v45\nv_log_f32 v45, v45")
    for w in range(4): a(f"v_mul_f32 v{41+w}, v{41+w}, v46")
    a(f"v_add_f32 v46, v40, v45\nv_mov_b32 v47, v{vT}")
    a(f"""v_and_b32 v48, 7, v1
v_bfe_u32 v49, v1, 3, 1
v_lshrrev_b32 v50, 4, v1
v_lshlrev_b32 v51, 14, v48
v_lshl_add_u32 v51, v49, 6, v51
v_lshl_add_u32 v51, v50, 4, v51
v_lshlrev_b32 v48, 10, v48
v_lshlrev_b32 v49, 7, v1
s_lshl_b32 s14, s4, 5
s_add_u32 s14, s14, s3
s_lshl_b32 s15, s14, 12
s_lshl_b32 s17, s5, 7
s_add_u32 s15, s15, s17
s_add_u32 s15, s15, {WS_OP}
s_lshl_b32 s14, s14, 8
s_lshl_b32 s17, s5, 3
s_add_u32 s14, s14, s17
s_add_u32 s14, s14, {WS_LS}
s_lshl_b32 s16, s4, 2
s_add_u32 s16, s16, s3
s_lshl_b32 s16, s16, 9
s_lshl_b32 s17, s5, 2
s_add_u32 s16, s16, s17
s_add_u32 s16, s16, {WS_OH}
s_mov_b32 s18, 0xff00ff00
s_mov_b32 s19, 0xff00ff00""")
    for w in range(4):
        for k in range(4): a(f"v_cndmask_b32 v{AC+8*w+k}, v{AC+8*w+k}, v{AC+8*w+4+k}, s[18:19]")
    for k in range(4): a(f"v_mul_f32 v{16+k}, v41, v{AC+k}")
    for w in range(1, 4):
        for k in range(4): a(f"v_fmac_f32 v{16+k}, v{41+w}, v{AC+8*w+k}")
    tag4(16, 16, vT)
    a(f"""buffer_store_dwordx4 v[16:19], v51, s[56:59], s15 offen sc1
s_mov_b64 exec, 0xff
buffer_store_dwordx2 v[46:47], v48, s[56:59], s14 offen sc1
s_mov_b64 exec, 15
buffer_store_dword v{vT}, v49, s[56:59], s16 offen sc1
s_mov_b64 exec, -1""")
    stamp(8)
    a("s_cmp_lg_u32 s3, 3\ns_cbranch_scc1 L_nohpub\ns_cmp_eq_u32 s9, 0\ns_cbranch_scc1 L_nohpub")
    publish_part(L_HPART, F_H, 12, f"""v_mov_b32 v32, v{vL16}
s_lshl_b32 s14, s8, 11
s_lshl_b32 s15, s7, 9
s_add_u32 s14, s14, s15
s_add_u32 s14, s14, {WS_HP}
s_lshl_b32 s15, s8, 7
s_lshl_b32 s17, s7, 2
s_add_u32 s15, s15, s17
s_add_u32 s15, s15, {WS_HH}""", f"s_mov_b32 exec_lo, 1\nbuffer_store_dword v{vT}, v2, s[56:59], s15 offen sc1")
    a("L_nohpub:")
    a(f"""s_lshr_b32 s14, s3, 1
s_and_b32 s15, s6, 1
s_lshl_b32 s15, s15, 1
s_and_b32 s16, s3, 1
s_add_u32 s15, s15, s16
s_lshl_b32 s16, s14, 2
s_lshr_b32 s17, s6, 4
s_add_u32 s16, s16, s17
s_lshl_b32 s16, s16, 2
s_add_u32 s16, s16, s15
s_lshl_b32 s16, s16, 2
s_add_u32 s16, s16, s7
s_lshl_b32 s16, s16, 7
s_add_u32 s16, s16, {WS_OH}
s_add_u32 s60, s56, s16
s_addc_u32 s61, s57, 0
s_lshl_b32 s16, s14, 5
s_lshr_b32 s17, s6, 1
s_add_u32 s16, s16, s17
s_lshl_b32 s16, s16, 2
s_add_u32 s16, s16, s15
s_lshl_b32 s62, s16, 12
s_add_u32 s62, s62, {WS_OP}
s_lshl_b32 s63, s16, 8
s_add_u32 s63, s63, {WS_LS}
v_lshrrev_b32 v48, 3, v1
v_lshlrev_b32 v48, 3, v48
v_and_b32 v49, 7, v1
v_lshrrev_b32 v50, 4, v1
v_lshl_add_u32 v49, v49, 2, v50
v_lshlrev_b32 v49, 2, v49
s_lshl_b32 s14, s3, 7
v_add_u32 v49, s14, v49""")
    poll_hints(2, 13)
    stamp(9)
    Lo = newlab("GO")
    a(f"{Lo}:")
    for i in range(4): a(f"buffer_load_dwordx2 v[{32+2*i}:{33+2*i}], v48, s[56:59], s63 offen offset:{64*i} sc1")
    for i in range(4): a(f"buffer_load_dwordx4 v[{G+4*i}:{G+4*i+3}], v{vL16}, s[56:59], s62 offen offset:{1024*i} sc1")
    a("s_waitcnt vmcnt(4)")
    a(f"v_xor_b32 v41, v33, v{vT}")
    for i in range(1, 4): a(f"v_bitop3_b32 v41, v41, v{33+2*i}, v{vT} bitop3:0xf6")
    a("v_max3_f32 v40, v32, v34, v36\nv_max_f32 v40, v40, v38")
    a("v_max_f32_dpp v40, v40, v40 row_ror:8 row_mask:0xf bank_mask:0xf")
    xlane(40, 42, "v_max_f32")
    for i in range(4): a(f"v_sub_f32 v{32+2*i}, v{32+2*i}, v40")
    for i in range(4): a(f"v_exp_f32 v{32+2*i}, v{32+2*i}")
    a("v_add_f32 v43, v32, v34\nv_add_f32 v42, v36, v38\nv_add_f32 v43, v43, v42")
    a("v_add_f32_dpp v43, v43, v43 row_ror:8 row_mask:0xf bank_mask:0xf")
    xlane(43, 42, "v_add_f32")
    a("v_rcp_f32 v43, v43")
    a("s_waitcnt vmcnt(0)")
    check_tags(G, 4, 42)
    a("v_or_b32 v42, v42, v41")
    retry_if(42, Lo, 14)
    stamp(10)
    maskt(G, 16)
    for k in range(4): a(f"v_mul_f32 v{44+k}, v32, v{G+k}")
    for i in range(1, 4):
        for k in range(4): a(f"v_fmac_f32 v{44+k}, v{32+2*i}, v{G+4*i+k}")
    def rscatter(v):
        a(f"v_permlane32_swap_b32 v{v}, v{v+2}\nv_permlane32_swap_b32 v{v+1}, v{v+3}")
        a(f"v_add_f32 v{v}, v{v}, v{v+2}\nv_add_f32 v{v+1}, v{v+1}, v{v+3}")
        a(f"v_permlane16_swap_b32 v{v}, v{v+1}\nv_add_f32 v{v}, v{v}, v{v+1}")
    rscatter(44)
    a("v_add_f32_dpp v44, v44, v44 row_ror:8 row_mask:0xf bank_mask:0xf")
    a("v_mul_f32 v44, v44, v43\nv_cvt_pk_bf16_f32 v44, v44, v44")
    a(f"ds_write_b32 v49, v44 offset:{L_O}")
    signal(F_O)
    stamp(11)
    a("s_cmp_lg_u32 s3, 3\ns_cbranch_scc1 L_noh")
    a(f"v_and_b32 v48, 31, v1\nv_lshlrev_b32 v48, 4, v48")
    a("s_cmp_lg_u32 s9, 0\ns_cbranch_scc1 L_hreal")
    a("v_mov_b32 v44, 0\nv_mov_b32 v45, 0\nv_mov_b32 v46, 0\nv_mov_b32 v47, 0\ns_branch L_hwrite\nL_hreal:")
    a(f"""s_lshl_b32 s14, s8, 7
s_add_u32 s14, s14, {WS_HH}
s_add_u32 s60, s56, s14
s_addc_u32 s61, s57, 0
s_lshl_b32 s62, s8, 11
s_add_u32 s62, s62, {WS_HP}""")
    poll_hints(0, 15)
    Lh = newlab("GH")
    a(f"{Lh}:")
    for i in range(2): a(f"buffer_load_dwordx4 v[{G+4*i}:{G+4*i+3}], v{vL16}, s[56:59], s62 offen offset:{1024*i} sc1")
    a("s_waitcnt vmcnt(0)")
    check_tags(G, 2, 42)
    retry_if(42, Lh, 16)
    maskt(G, 8)
    for k in range(4): a(f"v_add_f32 v{G+k}, v{G+k}, v{G+4+k}")
    for k in range(4): a(f"v_mov_b32 v{G+4+k}, v{G+k}")
    for k in range(4): a(f"v_permlane32_swap_b32 v{G+k}, v{G+4+k}")
    for k in range(4): a(f"v_add_f32 v{G+k}, v{G+k}, v{G+4+k}")
    roundbf(G, 4)
    unpack(vB1, 24, 2)
    for k in range(4): a(f"v_add_f32 v{G+k}, v{G+k}, v{24+k}")
    roundbf(G, 4)
    a("s_mov_b32 s14, 0x3d372713\ns_mov_b32 s15, 0xc0135761")
    for k in range(4): a(f"v_mul_f32 v{24+k}, v{G+k}, v{G+k}")
    for k in range(4): a(f"v_mul_f32 v{24+k}, v{24+k}, v{G+k}")
    for k in range(4): a(f"v_fma_f32 v{24+k}, s14, v{24+k}, v{G+k}")
    for k in range(4): a(f"v_mul_f32 v{24+k}, s15, v{24+k}")
    for k in range(4): a(f"v_exp_f32 v{24+k}, v{24+k}")
    for k in range(4): a(f"v_add_f32 v{24+k}, 1.0, v{24+k}")
    for k in range(4): a(f"v_rcp_f32 v{24+k}, v{24+k}")
    for k in range(4): a(f"v_mul_f32 v{24+k}, v{24+k}, v{G+k}")
    for k in range(4): a(f"v_cvt_pk_bf16_f32 v{44+k}, v{24+k}, v{24+k}")
    a(f"L_hwrite:\nds_write_b128 v48, v[44:47] offset:{L_H}")
    signal(F_HD)
    stamp(12)
    a("L_noh:")
    a("s_cmp_lg_u32 s3, 0\ns_cbranch_scc1 L_exit")
    a(f"s_lshl_b32 s62, s2, 11\ns_add_u32 s62, s62, {WS_FP}")
    a(f"v_lshlrev_b32 v{vXf}, 16, v{vXf}\nv_lshlrev_b32 v{vB2f}, 16, v{vB2f}\nv_add_f32 v{vXf}, v{vXf}, v{vB2f}\ns_lshl_b32 s14, s2, 4")
    Lf = newlab("GF")
    a(f"{Lf}:")
    for i in range(2): a(f"buffer_load_dwordx4 v[{G+4*i}:{G+4*i+3}], v{vL16}, s[56:59], s62 offen offset:{1024*i} sc1")
    a("s_waitcnt vmcnt(0)")
    check_tags(G, 2, 42)
    retry_if(42, Lf, 17)
    stamp(13)
    maskt(G, 8)
    for k in range(4): a(f"v_add_f32 v{G+k}, v{G+k}, v{G+4+k}")
    rscatter(G)
    for m in ("quad_perm:[2,3,0,1]", "row_ror:4", "row_ror:8"):
        a(f"v_add_f32_dpp v{G}, v{G}, v{G} {m} row_mask:0xf bank_mask:0xf")
    a(f"v_add_f32 v{G}, v{G}, v{vXf}\nv_cvt_pk_bf16_f32 v{G}, v{G}, v{G}")
    a(f"s_mov_b32 exec_lo, 0x00030003\ns_mov_b32 exec_hi, 0x00030003\nbuffer_store_short v{G}, v14, s[44:47], s14 offen")
    a(f"s_cmp_lg_u32 s2, 0\ns_cbranch_scc1 L_noep\ns_add_u32 s11, s11, 1\nv_mov_b32 v{G+1}, s11\ns_mov_b64 exec, 1\nbuffer_store_dword v{G+1}, v2, s[56:59], 0 offen\nL_noep:\ns_mov_b64 exec, -1")
    stamp(14)
    a("L_exit:")
    if stamps:
        a(f"""v_lshrrev_b32 v20, 6, v0
v_lshlrev_b32 v20, 6, v20
v_lshl_add_u32 v20, v1, 2, v20
s_lshl_b32 s14, s2, 9
s_add_u32 s14, s14, {WS_ST}
s_mov_b64 exec, 0xffff
buffer_store_dword v{vStamp}, v20, s[56:59], s14 offen""")
    a("L_end:\ns_endpgm")
    a("L_fail:")
    a("""s_load_dwordx2 s[48:49], s[0:1], 88
s_mov_b32 s50, 256
s_mov_b32 s51, 0x20000
s_lshl_b32 s14, s15, 2
v_mov_b32 v20, s2
v_add_u32 v20, 1, v20
s_waitcnt lgkmcnt(0)
s_mov_b64 exec, 1
buffer_store_dword v20, v2, s[48:51], s14 offen
s_endpgm""")
    nv = 168
    a(f""".section .rodata,"a"
.p2align 6
.amdhsa_kernel {KNAME}
  .amdhsa_next_free_vgpr {nv}
  .amdhsa_next_free_sgpr 102
  .amdhsa_accum_offset {nv}
  .amdhsa_group_segment_fixed_size 0
  .amdhsa_kernarg_size 104
  .amdhsa_user_sgpr_count 2
  .amdhsa_user_sgpr_kernarg_segment_ptr 1
  .amdhsa_system_sgpr_workgroup_id_x 1
  .amdhsa_float_denorm_mode_32 3
.end_amdhsa_kernel""")
    return a.finish()

if __name__ == "__main__":
    out = sys.argv[1] if len(sys.argv) > 1 else "parallel_sum__sliding_block_cached__mixer_channel_mlp__decode.s"
    open(out, "w").write(gen())
```

```python
import sys
from asmlib import Asm

KNAME = "parallel_sum__sliding_block_cached__mixer_channel_mlp__decode_kernel"

WS_HH = 0x1000; WS_QH = 0x4000; WS_OH = 0x8000; WS_LS = 0x18000; WS_QP = 0x28000
WS_HP = 0x48000; WS_HL = 0x64000; WS_FP = 0x80000; WS_OP = 0x100000; WS_ST = 0x200000
WS_BYTES = 0x10000000
KSTR = 1088; VSTR = 1152
L_X = 0
L_Y = L_X + 2048; L_QPART = L_Y + 2048; L_HPART = L_QPART + 2048
L_QBUF = L_HPART + 2048; L_P = L_QBUF + 2304; L_ML = L_P + 4096
L_O = L_ML + 512; L_H = L_O + 512; L_F = L_H + 512
L_K = L_F + 128; L_V = L_K + 32 * KSTR; L_END = L_V + 32 * VSTR
L_FIN = L_K
F_X, F_Y, F_Q, F_K, F_V, F_H, F_B1, F_B2, F_O, F_HD, F_QG, F_OG, F_FP, F_B3, F_OP = [L_F + 4 * i for i in range(15)]
TO_LIMIT = 1 << 20
NW = 9

def gen(W=5, stamps=0, ldflags="nt", order="qkv1o2", qstart=4, p1start=0, cprio=3, QR=4, OR=4, g1=None, g2=44,
        sonly=0, fsets=2, fack=1, hloc=0, vpre=1, hat=1, tall=2, fdelay=0, align=2, touch=1, nt=0, tlb=0, oflags='', WE=None, late=4, pre=832, post=0, g3=None, hsleep=0, oack=1, qwait=1, rq=0, r1=4, othr=16, qthr=8, ogs=0, fakebal=0, half=1, tpat=0, pre2=1, fastfin=0):
    a = Asm()
    if isinstance(W, int): W = [W] * 48
    if len(W) == 6: W = [w for w in W for _ in range(8)]
    if isinstance(WE, int): WE = [WE] * 48
    if WE and len(WE) == 6: WE = [w for w in WE for _ in range(8)]
    lab = [0]
    HST = "buffer_atomic_swap" if hat else "buffer_store_dword"
    HST2 = "buffer_atomic_swap_x2" if hat else "buffer_store_dwordx2"
    def newlab(p="L"):
        lab[0] += 1
        return f"{p}_{lab[0]}"
    vStamp = 160
    stubs = (2, 22, 4, 19, 8, 9, 11, 13, 12, 16, 18) if touch else ()
    def touches(codes):
        for c in codes: a(f"s_call_b64 s[94:95], T_{c}")
    def stamp(k, light=False):
        if stamps == 1 or (stamps == 2 and light):
            a(f"s_memrealtime s[98:99]\ns_waitcnt lgkmcnt(0)\nv_writelane_b32 v{vStamp}, s98, {k}")
    def signal(flag):
        a(f"s_mov_b64 exec, 1\nds_add_u32 v2, v3 offset:{flag}\ns_mov_b64 exec, -1")
    def spin(L, code):
        a(f"s_add_u32 s10, s10, 1\ns_cmp_lt_u32 s10, {TO_LIMIT}\ns_cbranch_scc1 {L}\ns_mov_b32 s15, {code}\ns_branch L_fail")
        if code in stubs: a(f"T_{code}:\ns_setpc_b64 s[94:95]")
    def poll_lds(flag, n, vt, code, spec=None, sleep=0):
        L = newlab("PL"); D = newlab("PD")
        a(f"{L}:\nds_read_b32 v{vt}, v2 offset:{flag}")
        if spec: a(spec)
        a(f"s_waitcnt lgkmcnt(0)\nv_readfirstlane_b32 s14, v{vt}\ns_cmp_ge_u32 s14, {n}\ns_cbranch_scc1 {D}")
        if sleep: a(f"s_sleep {sleep}")
        spin(L, code)
        a(f"{D}:")
    def red64(v, s):
        for m in ("quad_perm:[1,0,3,2] row_mask:0xf", "quad_perm:[2,3,0,1] row_mask:0xf", "row_half_mirror row_mask:0xf",
                  "row_mirror row_mask:0xf", "row_bcast:15 row_mask:0xa", "row_bcast:31 row_mask:0xc"):
            a(f"v_add_f32_dpp v{v}, v{v}, v{v} {m} bank_mask:0xf")
        a(f"v_readlane_b32 s{s}, v{v}, 63")
    def nonce():
        a("s_mul_i32 s12, s11, 0x9E3779B1\ns_add_u32 s12, s12, 0x85EBCA77\ns_mov_b32 s13, s12")
        a("s_mov_b32 s20, 0x07060500\ns_mov_b32 s21, 0x07060501\ns_mov_b32 s22, 0x07060502\ns_mov_b32 s23, 0x07060503")
    def tag4(src, dst, vT):
        for k in range(4): a(f"v_perm_b32 v{dst+k}, v{src+k}, v{vT}, s{20+k}")
    def pk(op, d, x, y, z=None, mods=""):
        zz = f", v[{z}:{z+1}]" if z is not None else ""
        a(f"v_pk_{op}_f32 v[{d}:{d+1}], v[{x}:{x+1}], v[{y}:{y+1}]{zz} {mods}")

    a(f"; @launch grid=(256,1,1) block=({64*(NW+nt)},1,1) lds={L_END}")
    a('.amdgcn_target "amdgcn-amd-amdhsa--gfx950"')
    a(f".text\n.globl {KNAME}")
    if align: a(".p2align 12\n.fill {pre}, 4, 0xbf800000".replace("{pre}", str(pre)))
    a(f".p2align 8\n.type {KNAME},@function\n{KNAME}:")
    a("""s_cmp_ge_u32 s2, 256
s_cbranch_scc1 L_end
s_load_dwordx16 s[72:87], s[0:1], 0
s_load_dwordx2 s[56:57], s[0:1], 96""")
    if stamps:
        a(f"s_memrealtime s[96:97]\nv_mov_b32 v{vStamp}, 0")
    a(f"""v_lshrrev_b32 v4, 6, v0
v_and_b32 v1, 63, v0
v_readfirstlane_b32 s3, v4
v_mov_b32 v2, 0
v_mov_b32 v3, 1
s_and_b32 s4, s2, 7
s_lshr_b32 s5, s2, 3
s_lshr_b32 s14, s5, 2
s_lshl_b32 s15, s14, 3
s_add_u32 s6, s4, {rq}
s_and_b32 s6, s6, 7
s_add_u32 s6, s6, s15
s_add_u32 s8, s4, {r1}
s_and_b32 s8, s8, 7
s_add_u32 s8, s8, s15
s_and_b32 s7, s5, 3
s_cmp_lt_u32 s14, 7
s_cselect_b32 s9, 1, 0
s_mov_b32 s10, 0
s_mov_b32 s58, {WS_BYTES}
s_mov_b32 s59, 0x20000
s_cmp_lt_u32 s3, 4
s_cbranch_scc1 L_S""")
    if nt:
        a("s_cmp_lt_u32 s3, 9\ns_cbranch_scc1 L_notw")
        if tlb: a("s_load_dwordx2 s[52:53], s[0:1], 64")
        a("s_waitcnt lgkmcnt(0)\ns_barrier")
        groups = {1: [['y', 19, 8, 11, 13, 12, 2, 4]], 2: [['y', 8, 13, 2], [19, 11, 12, 4]], 3: [['y', 11, 2], [19, 13, 4], [8, 12, 22 if g2 is not None else 4]]}[nt]
        for k, grp in enumerate(groups):
            if k + 1 < len(groups): a(f"s_cmp_lg_u32 s3, {9+k}\ns_cbranch_scc1 L_tw{k+1}")
            if tlb and k == 0:
                a(f"""s_lshl_b32 s14, s4, 22
s_add_u32 s14, s14, {12288*256}
s_load_dword s64, s[36:37], s14
s_load_dword s65, s[40:41], s14
s_mul_i32 s14, s7, {256*7168}
s_load_dword s66, s[44:45], s14
s_add_u32 s14, s14, {255*7168}
s_load_dword s67, s[44:45], s14
s_lshl_b32 s14, s6, 17
s_load_dword s68, s[48:49], s14
s_lshl_b32 s14, s8, 17
s_min_u32 s14, s14, {3583*2048}
s_load_dword s69, s[52:53], s14""")
            touches(grp)
            a("s_endpgm")
            if k + 1 < len(groups): a(f"L_tw{k+1}:")
        a("L_notw:")
    vL16 = 4
    if cprio: a(f"s_setprio {cprio}")
    a(f"""s_sub_u32 s3, s3, 4
s_mov_b32 s26, 4096
s_mov_b32 s27, 0x20000
v_lshlrev_b32 v{vL16}, 4, v1
v_lshlrev_b32 v16, 3, v1
s_and_b32 s16, s3, 1
s_lshl_b32 s14, s16, 11
s_lshl_b32 s15, s7, 9
s_add_u32 s15, s15, s14
v_lshlrev_b32 v17, 2, v1
s_mov_b64 exec, 0xffff
ds_write_b32 v17, v2 offset:{L_F}
s_mov_b64 exec, -1
s_cmp_eq_u32 s3, 4
s_waitcnt lgkmcnt(0)
s_mov_b64 s[24:25], s[72:73]
s_barrier
s_cbranch_scc1 L_C
buffer_load_dwordx4 v[20:23], v{vL16}, s[24:27], s14 offen
buffer_load_dwordx4 v[24:27], v{vL16}, s[24:27], s14 offen offset:1024
buffer_load_dwordx2 v[28:29], v16, s[24:27], s15 offen
s_branch L_C""")

    a("L_S:")
    a("s_load_dwordx2 s[52:53], s[0:1], 64")
    a(f"""s_mov_b32 s34, {1024*8192}
s_mov_b32 s35, 0x20000
s_mov_b32 s38, {2*4*16384*256}
s_mov_b32 s39, 0x20000
s_mov_b32 s42, {2*4*16384*256}
s_mov_b32 s43, 0x20000
s_cmp_lg_u32 s9, 0
s_cselect_b32 s46, {1024*7168}, 0
s_cselect_b32 s54, {3584*2048}, 0
s_mov_b32 s47, 0x20000
s_mov_b32 s50, {4096*2048}
s_mov_b32 s51, 0x20000
s_mov_b32 s55, 0x20000
s_lshl_b32 s14, s7, 8
s_lshl_b32 s15, s3, 6
s_add_u32 s14, s14, s15
s_lshl_b32 s60, s14, 13
s_lshl_b32 s15, s6, 7
s_add_u32 s60, s60, s15
s_mul_i32 s63, s14, 7168
s_lshl_b32 s15, s8, 7
s_add_u32 s63, s63, s15""")
    if tall: a("s_lshl_b32 s14, s7, 9\ns_lshl_b32 s15, s3, 15\ns_add_u32 s14, s14, s15")
    else: a("s_lshl_b32 s14, s14, 1")
    a(f"""s_lshl_b32 s64, s6, 17
s_add_u32 s64, s64, s14
s_lshl_b32 s65, s8, 17
s_add_u32 s65, s65, s14
s_lshl_b32 s61, s4, 22
s_lshl_b32 s15, s5, 10
s_add_u32 s61, s61, s15
s_lshl_b32 s15, s3, 18
s_add_u32 s61, s61, s15
s_add_u32 s61, s61, {12288*256}
s_mov_b32 s62, s61
s_mul_i32 s66, s3, {8*KSTR}
s_add_u32 s66, s66, {L_K}
s_mul_i32 s67, s3, {8*VSTR}
s_add_u32 s67, s67, {L_V}""")
    vOffQ, vOff1, vOffO, vOffK, vOffV = 18, 19, 4, 5, 6
    vLdsX, vLdsO, vPart, vFP, vFin, vT = 7, 12, 13, 14, 15, 17
    vM = 8
    a(f"""v_lshrrev_b32 v20, 4, v1
v_bfe_u32 v21, v1, 3, 1
v_and_b32 v22, 7, v1
v_lshl_add_u32 v23, v20, 2, v21
v_lshlrev_b32 v24, 4, v22
v_lshl_add_u32 v{vOffQ}, v23, 13, v24
v_mul_u32_u24 v25, 7168, v23
v_add_u32 v{vOff1}, v25, v24
v_and_b32 v25, 15, v1""")
    if tall:
        a(f"v_lshlrev_b32 v{vOffO}, 4, v25\nv_lshl_add_u32 v{vOffO}, v20, {11 if tpat else 13}, v{vOffO}")
        if tpat == 2:
            a(f"s_bfe_u32 s69, s5, 0x10002\ns_lshl_b32 s14, s69, 8\nv_add_u32 v{vOffO}, s14, v{vOffO}\nv_xor_b32 v63, 0x100, v{vOffO}")
    else: a(f"v_lshl_add_u32 v{vOffO}, v23, 11, v24")
    a(f"""v_xor_b32 v26, v25, v20
v_lshlrev_b32 v26, 4, v26
v_lshl_add_u32 v{vOffK}, v20, 8, v26
v_lshlrev_b32 v26, 1, v20
v_xor_b32 v26, v25, v26
v_lshlrev_b32 v26, 4, v26
v_lshl_add_u32 v{vOffV}, v20, 8, v26""")
    DQ, D1, D2, DO = 64, 96, 128, 64
    if ' ' in order:
        seq = []; cntr = {}
        for tok in order.split():
            t, k = tok[0], int(tok[1:])
            for _ in range(k):
                seq.append((t, cntr.get(t, 0))); cntr[t] = cntr.get(t, 0) + 1
        assert all(v == 8 for v in cntr.values()) and len(seq) == 48
    else:
        seq = [(t, i) for t in order for i in range(8)]
    endpos = {t: n + 1 for n, (t, i) in enumerate(seq) if i == 7}
    info = {'q': (32, 60, vOffQ, 8192, DQ), '1': (44, 63, vOff1, 7168, D1), '2': (52, 65, vOffO, 2048, D2), 'o': (48, 64, vOffO, 2048, DO),
            'k': (36, 61, vOffK, None, None), 'v': (40, 62, vOffV, None, None)}
    def issue(t, i):
        srd, so, vo, stride, D = info[t]
        if t in 'kv':
            if i > 0: a(f"s_add_u32 s{so}, s{so}, 32768")
            base, st = (66, KSTR) if t == 'k' else (67, VSTR)
            a(f"s_add_u32 m0, s{base}, {i*st}")
            a(f"buffer_load_dwordx4 v{vo}, s[{srd}:{srd+3}], s{so} offen {ldflags} lds")
        elif tall and t in '2o':
            if i > 0 and i % 2 == 0: a(f"s_add_u32 s{so}, s{so}, {8192 if tpat else 2048}")
            if tpat == 2: a(f"buffer_load_dwordx4 v[{D+4*i}:{D+4*i+3}], v{63 if i & 1 else vo}, s[{srd}:{srd+3}], s{so} offen {ldflags}")
            else: a(f"buffer_load_dwordx4 v[{D+4*i}:{D+4*i+3}], v{vo}, s[{srd}:{srd+3}], s{so} offen offset:{256*(i&1)} {ldflags}")
        elif fakebal and t == '1' and i >= 6:
            a(f"buffer_load_dwordx4 v[{D+4*i}:{D+4*i+3}], v{vo}, s[{srd}:{srd+3}], s{so} offen offset:0")
        else:
            if i > 0:
                rowof = lambda j: 16 * (j >> 1) + 2 * (j & 1)
                a(f"s_add_u32 s{so}, s{so}, {(rowof(i) - rowof(i-1)) * stride}")
            a(f"buffer_load_dwordx4 v[{D+4*i}:{D+4*i+3}], v{vo}, s[{srd}:{srd+3}], s{so} offen {'' if (fakebal and t == '1' and i == 5) else ldflags}")
    DUP, A0, A1, AC0, AC1, X = 20, 36, 40, 52, 56, 60
    def buildA(i, h):
        Ar = (A0, A1)[h]
        src = DUP + 4 * (i >> 1) + 2 * (i & 1) + h
        for r in range(4): a(f"v_and_b32 v{Ar+r}, v{src}, v{vM+r}")
    def mm(D, i, first, last):
        for h, (Ar, AC) in enumerate(((A0, AC0), (A1, AC1))):
            c = "0" if first else f"v[{AC}:{AC+3}]"
            a(f"v_mfma_f32_16x16x32_bf16 v[{AC}:{AC+3}], v[{Ar}:{Ar+3}], v[{D+4*i}:{D+4*i+3}], {c}")
            if not last: buildA(i + 1, h)
    AT = [36, 40, 44, 48]
    def buildT(j, rs=range(4)):
        for r in rs: a(f"v_and_b32 v{AT[j]+r}, v{DUP+j}, v{vM+r}")
    def mmT(D, i, first):
        AC = (AC0, AC1)[i & 1]
        c = "0" if first else f"v[{AC}:{AC+3}]"
        a(f"v_mfma_f32_16x16x32_bf16 v[{AC}:{AC+3}], v[{AT[i>>1]}:{AT[i>>1]+3}], v[{D+4*i}:{D+4*i+3}], {c}")
        j = (i >> 1) + 1
        if j < 4: buildT(j, (0, 1) if i % 2 == 0 else (2, 3))
    def dupreads(vaddr, base, n=4):
        return "\n".join(f"ds_read_b128 v[{DUP+4*t}:{DUP+4*t+3}], v{vaddr} offset:{base+64*t}" for t in range(n))
    def combine():
        for r in range(4): a(f"v_cndmask_b32 v{X+r}, v{AC0+r}, v{AC1+r}, s[18:19]")
        for r in range(4): a(f"v_add_f32_dpp v{X+r}, v{X+r}, v{X+r} row_ror:8 row_mask:0xf bank_mask:0xf")
    a("s_waitcnt lgkmcnt(0)\ns_mov_b64 s[32:33], s[78:79]")
    if not pre2: a("s_barrier")
    if fakebal:
        a("s_cmp_lg_u32 s9, 0\ns_cselect_b32 s44, s44, s36\ns_cselect_b32 s45, s45, s37\ns_cselect_b32 s52, s52, s40\ns_cselect_b32 s53, s53, s41\ns_cselect_b32 s46, s46, 0x2000000\ns_cselect_b32 s54, s54, 0x2000000")
    if stamps: a(f"v_writelane_b32 v{vStamp}, s96, 0")
    stamp(1)
    st = dict(landed=0, setup=False)
    def setup():
        if st['setup']: return
        st['setup'] = True
        a("s_load_dword s11, s[56:57], 0")
        a("s_mov_b64 s[36:37], s[74:75]\ns_mov_b64 s[40:41], s[76:77]\ns_mov_b64 s[44:45], s[84:85]\ns_mov_b64 s[48:49], s[80:81]")
        a(f"""v_and_b32 v25, 1, v1
v_bfe_u32 v26, v1, 1, 2
v_mov_b32 v27, 0xffff
v_lshlrev_b32 v25, 4, v25
v_lshlrev_b32 v27, v25, v27""")
        for r in range(4):
            a(f"v_cmp_eq_u32 vcc, {r}, v26\nv_cndmask_b32 v{vM+r}, 0, v27, vcc")
        a(f"""v_lshlrev_b32 v25, 4, v20
v_lshl_add_u32 v{vLdsO}, v21, 8, v25
v_lshl_add_u32 v{vLdsX}, v21, 10, v25
s_lshl_b32 s14, s3, 8
v_add_u32 v{vLdsX}, s14, v{vLdsX}
v_lshrrev_b32 v25, 1, v20
v_and_b32 v26, 1, v20
v_lshlrev_b32 v27, 5, v22
v_lshl_add_u32 v27, v26, 4, v27
v_lshl_add_u32 v{vPart}, v25, 8, v27
s_lshl_b32 s14, s3, 9
v_add_u32 v{vPart}, s14, v{vPart}
s_mov_b32 s18, 0xff00ff00
s_mov_b32 s19, 0xff00ff00""")
        if WE:
            a(f"s_getreg_b32 s14, hwreg(HW_REG_XCC_ID, 0, 4)\ns_cmp_ge_u32 s14, {late}\ns_cselect_b64 vcc, -1, 0")
        if tall:
            a(f"""s_lshl_b32 s14, s3, 6
v_add_u32 v{vLdsO}, s14, v{vLdsO}
v_lshlrev_b32 v{vFin}, 4, v1
s_lshl_b32 s14, s3, 11
v_add_u32 v16, s14, v{vFin}
s_and_b32 s14, s3, 1
s_lshl_b32 s14, s14, 10
s_lshr_b32 s15, s3, 1
s_lshl_b32 s15, s15, 9
s_add_u32 s14, s14, s15
v_add_u32 v{vFin}, s14, v{vFin}
v_and_b32 v27, 15, v1
v_lshlrev_b32 v27, 5, v27
v_lshl_add_u32 v{vFP}, v26, 4, v27
s_lshl_b32 s14, s7, 10
s_and_b32 s15, s3, 1
s_lshl_b32 s15, s15, 9
s_add_u32 s14, s14, s15
s_lshr_b32 s15, s3, 1
s_lshl_b32 s15, s15, 12
s_add_u32 s14, s14, s15""")
        else:
            a(f"""v_lshl_add_u32 v{vFP}, v25, 12, v27
s_lshl_b32 s14, s7, 10
s_lshl_b32 s15, s3, 8
s_add_u32 s14, s14, s15""")
        a(f"s_lshl_b32 s15, s6, 13\ns_add_u32 s14, s14, s15\ns_add_u32 s68, s14, {WS_FP}")
    def process(t, i):
        if sonly:
            if i == 7: stamp({'q': 2, 'k': 3, 'v': 4, '1': 5}[t])
            return
        if t in 'q1':
            if i == 0:
                poll_lds(F_X if t == 'q' else F_Y, 2, 60, 1 if t == 'q' else 2, dupreads(vLdsX, L_X if t == 'q' else L_Y))
                buildA(0, 0); buildA(0, 1)
            mm(info[t][4], i, i == 0, i == 7)
            if i == 7:
                combine()
                a("s_mov_b32 exec_lo, 0x00ff00ff\ns_mov_b32 exec_hi, 0x00ff00ff")
                a(f"ds_write_b128 v{vPart}, v[{X}:{X+3}] offset:{L_QPART if t == 'q' else L_HPART}")
                signal(F_Q if t == 'q' else F_H)
                stamp(2 if t == 'q' else 5)
        elif t in 'kv' and i == 7:
            signal(F_K if t == 'k' else F_V)
            stamp(3 if t == 'k' else 4)
    gates = {}
    if g1 is not None and not sonly: gates[g1] = (F_QG, 4, '', 21)
    if g2 is not None and not sonly: gates[g2] = (F_OG, 4, 'q1kv', 22)
    if g3 is not None and not sonly: gates[g3] = (F_OP, 4, 'q1kv', 24)
    N = len(seq)
    pend = list(range(N))
    def ready(m, n):
        t, i = seq[m]
        if t in '2o': return False
        if t == 'q' and st['landed'] < qstart: return False
        if t == '1' and n < p1start: return False
        return True
    assert all(endpos['q'] <= n - 8 for n, (t, i) in enumerate(seq) if t == 'o')
    for n, (t, i) in enumerate(seq):
        want = n - W[n] + 1
        if n in gates:
            flag, cnt, need, code = gates[n]
            for m in [m for m in pend if seq[m][0] in need and m < n]:
                if m >= st['landed'] and not (seq[m][0] in 'kv' and seq[m][1] < 7):
                    a(f"s_waitcnt vmcnt({n - 1 - m})"); st['landed'] = m + 1
                process(*seq[m]); pend.remove(m)
            poll_lds(flag, cnt, 60, code, sleep=1)
        if want > st['landed']:
            setup()
            a(f"s_waitcnt vmcnt({n - want})"); st['landed'] = want
        if WE and WE[n] < W[n] and n - WE[n] + 1 > st['landed']:
            setup()
            Lk = newlab("WK")
            a(f"s_cbranch_vccnz {Lk}\ns_waitcnt vmcnt({WE[n] - 1})\n{Lk}:")
        if t != 'q': setup()
        issue(t, i)
        if pre2 and n == pre2 - 1: a("s_barrier")
        for m in [m for m in pend if m < st['landed'] and ready(m, n)]:
            process(*seq[m]); pend.remove(m)
    setup()
    stamp(6)
    nmm = 0
    tail = [m for m in pend if seq[m][0] not in '2o'] + [m for m in pend if seq[m][0] in '2o']
    for m in tail:
        t, i = seq[m]
        if sonly:
            if m >= st['landed'] and i == 7:
                a(f"s_waitcnt vmcnt({N - 1 - m})"); st['landed'] = m + 1
            if i == 7: stamp({'q': 2, 'k': 3, 'v': 4, '1': 5, '2': 7, 'o': 8}[t])
            continue
        if t in '2o' and i == 0:
            if nmm == 0:
                nonce(); a(f"v_mov_b32 v{vT}, s12")
            poll_lds(F_HD if t == '2' else F_O, 1 if t == '2' else 4, 60, 3 if t == '2' else 4, dupreads(vLdsO, L_H if t == '2' else L_O, 1 if tall else 4))
            stamp(7 if t == '2' else 8)
            if tall: buildT(0)
            else: buildA(0, 0); buildA(0, 1)
        if m >= st['landed'] and not (t in 'kv' and i < 7):
            a(f"s_waitcnt vmcnt({N - 1 - m})"); st['landed'] = m + 1
        if t in '2o':
            if tall: mmT(info[t][4], i, nmm < 2)
            else: mm(info[t][4], i, nmm == 0, i == 7)
            nmm += 1
        else:
            process(t, i)
    stamp(9)
    if sonly: a("s_branch L_exit")
    if tall:
        a(f"ds_write_b128 v16, v[{AC0}:{AC0+3}] offset:{L_FIN}\nds_write_b128 v16, v[{AC1}:{AC1+3}] offset:{L_FIN+1024}")
        if tall == 2:
            a("s_waitcnt lgkmcnt(0)\ns_barrier")
            for w in range(4): a(f"ds_read_b128 v[{20+4*w}:{23+4*w}], v{vFin} offset:{L_FIN+2048*w}")
            a("s_waitcnt lgkmcnt(0)")
        else:
            signal(F_B3)
            poll_lds(F_B3, 4, 60, 23, "\n".join(f"ds_read_b128 v[{20+4*w}:{23+4*w}], v{vFin} offset:{L_FIN+2048*w}" for w in range(4)))
        pk("add", 20, 20, 24); pk("add", 22, 22, 26); pk("add", 28, 28, 32); pk("add", 30, 30, 34)
        pk("add", X, 20, 28); pk("add", X + 2, 22, 30)
        tag4(X, X, vT)
        a("s_mov_b32 exec_hi, 0")
    else:
        combine()
        tag4(X, X, vT)
        a("s_mov_b32 exec_lo, 0x00ff00ff\ns_mov_b32 exec_hi, 0x00ff00ff")
    a(f"buffer_store_dwordx4 v[{X}:{X+3}], v{vFP}, s[56:59], s68 offen sc1\ns_mov_b64 exec, -1")
    stamp(10)
    if fack: a("s_waitcnt vmcnt(0)")
    signal(F_FP)
    a("s_branch L_exit")

    if align: a(".p2align 12")
    a("L_C:")
    if sonly:
        if stamps: a(f"v_writelane_b32 v{vStamp}, s96, 0")
        a("s_branch L_exit")
    vT, vTb, vHi = 5, 6, 15
    vXf, vB2f, vB1 = 10, 11, 12
    a(f"""s_load_dword s11, s[56:57], 0
v_mov_b32 v{vHi}, 0xffff0000
s_cmp_eq_u32 s3, 4
s_cbranch_scc1 L_H""")
    if stamps: a(f"v_writelane_b32 v{vStamp}, s96, 0")
    F = 32
    def unpack(src, dst, n):
        for k in range(n):
            a(f"v_lshlrev_b32 v{dst+2*k}, 16, v{src+k}\nv_and_b32 v{dst+2*k+1}, v{vHi}, v{src+k}")
    def stats(F):
        pk("add", 48, F, F + 2); pk("add", 50, F + 4, F + 6); pk("add", 52, F + 8, F + 10); pk("add", 54, F + 12, F + 14)
        pk("add", 48, 48, 50); pk("add", 52, 52, 54); pk("add", 48, 48, 52)
        a("v_add_f32 v48, v48, v49")
        red64(48, 14)
        a("v_mov_b32 v60, 0x3a800000\nv_mul_f32 v48, s14, v60")
        for k in range(0, 16, 4):
            pk("add", 52, F + k, 48, mods="op_sel_hi:[1,0] neg_lo:[0,1] neg_hi:[0,1]")
            pk("add", 54, F + k + 2, 48, mods="op_sel_hi:[1,0] neg_lo:[0,1] neg_hi:[0,1]")
            if k == 0: pk("mul", 50, 52, 52); pk("mul", 62, 54, 54)
            else: pk("fma", 50, 52, 52, 50); pk("fma", 62, 54, 54, 62)
        pk("add", 50, 50, 62)
        a("v_add_f32 v49, v50, v51")
        red64(49, 14)
        a(f"""v_mul_f32 v49, s14, v60
v_cvt_pk_bf16_f32 v48, v48, v49
v_and_b32 v49, v{vHi}, v48
v_lshlrev_b32 v48, 16, v48
v_add_f32 v49, 0x3727c5ac, v49
v_cvt_pk_bf16_f32 v49, v49, v49
v_and_b32 v49, v{vHi}, v49
v_sqrt_f32 v49, v49
v_cvt_pk_bf16_f32 v49, v49, v49
v_and_b32 v49, v{vHi}, v49
v_rcp_f32 v50, v49""")
    def normalize(F, n):
        for k in range(0, n, 2):
            pk("add", F + k, F + k, 48, mods="op_sel_hi:[1,0] neg_lo:[0,1] neg_hi:[0,1]")
        for k in range(0, n, 2):
            a(f"v_cvt_pk_bf16_f32 v52, v{F+k}, v{F+k+1}")
            a(f"v_lshlrev_b32 v{F+k}, 16, v52\nv_and_b32 v{F+k+1}, v{vHi}, v52")
            pk("mul", 52, F + k, 50, mods="op_sel_hi:[1,0]")
            pk("fma", F + k, 52, 48, F + k, mods="op_sel:[0,1,0] op_sel_hi:[1,1,1] neg_lo:[1,0,0] neg_hi:[1,0,0]")
            pk("fma", F + k, F + k, 50, 52, mods="op_sel_hi:[1,0,1]")
    def roundbf(F, n):
        for k in range(0, n, 2):
            a(f"v_cvt_pk_bf16_f32 v52, v{F+k}, v{F+k+1}")
            a(f"v_lshlrev_b32 v{F+k}, 16, v52\nv_and_b32 v{F+k+1}, v{vHi}, v52")
    def tagconsts():
        nonce()
        a(f"""v_mov_b32 v{vT}, s12
v_and_b32 v{vTb}, 0xff, v{vT}
v_bfe_u32 v{vTb+1}, v{vT}, 8, 8
v_bfe_u32 v{vTb+2}, v{vT}, 16, 8
v_lshrrev_b32 v{vTb+3}, 24, v{vT}""")
    a("s_waitcnt vmcnt(1)")
    stamp(1)
    unpack(20, F, 8)
    stats(F)
    a("s_waitcnt vmcnt(0)")
    unpack(28, 56, 2)
    normalize(56, 4)
    a(f"s_lshl_b32 s14, s16, 10\nv_add_u32 v16, s14, v{vL16}")
    a("s_cmp_ge_u32 s3, 2\ns_cbranch_scc1 L_ypath")
    for k in range(4): a(f"v_cvt_pk_bf16_f32 v{60+k}, v{56+k}, v{56+k}")
    a(f"ds_write_b128 v16, v[60:63] offset:{L_X}")
    signal(F_X)
    stamp(2)
    if touch and not nt:
        a("s_cmp_eq_u32 s3, 0\ns_cbranch_scc1 L_t0")
        touches([9, 13] + ([22] if g2 is not None else []) + [4])
        a("s_branch L_lndone\nL_t0:")
        touches([19, 8, 11, 2])
    a("L_lndone:")
    a("s_waitcnt lgkmcnt(0)")
    tagconsts()
    def publish_part(lbase, flag, code, vaddr, extra, B=96):
        poll_lds(flag, 4, B + 16, code, "\n".join(f"ds_read_b128 v[{B+4*w}:{B+3+4*w}], v{vL16} offset:{lbase+512*w}" for w in range(4)))
        pk("add", B, B, B + 4); pk("add", B + 2, B + 2, B + 6); pk("add", B + 8, B + 8, B + 12); pk("add", B + 10, B + 10, B + 14)
        pk("add", B, B, B + 8); pk("add", B + 2, B + 2, B + 10)
        tag4(B, B, vT)
        a("s_mov_b32 exec_hi, 0")
        a(f"buffer_store_dwordx4 v[{B}:{B+3}], v{vaddr}, s[56:59], s30 offen sc1")
        a(extra)
        a("s_mov_b64 exec, -1")
    def poll_hints(nq, code, thr=None):
        L = newlab("HL"); D = newlab("HD"); R = newlab("HR")
        a(f"{L}:")
        if nq == 0: a("s_load_dwordx4 s[64:67], s[60:61], 0 glc")
        for q in range(nq): a(f"s_load_dwordx16 s[{64+16*q}:{79+16*q}], s[60:61], {64*q} glc")
        if thr is not None and thr < nq * 8:
            a("s_mov_b32 s14, 0\ns_waitcnt lgkmcnt(0)")
            for j in range(nq * 8): a(f"s_cmp_eq_u64 s[{64+2*j}:{65+2*j}], s[12:13]\ns_addc_u32 s14, s14, 0")
            a(f"s_cmp_ge_u32 s14, {thr}\ns_cbranch_scc1 {D}")
        else:
            a("s_waitcnt lgkmcnt(0)")
            for j in range(max(nq * 8, 2)):
                a(f"s_cmp_eq_u64 s[{64+2*j}:{65+2*j}], s[12:13]\ns_cbranch_scc0 {R}")
            a(f"s_branch {D}\n{R}:")
        if hsleep: a(f"s_sleep {hsleep}")
        spin(L, code)
        a(f"{D}:")
    def untag(G, n, vacc):
        for j in range(4 * n): a(f"v_xor_b32 v{G+j}, v{G+j}, v{vTb+(j&3)}")
        a(f"v_or3_b32 v{vacc}, v{G}, v{G+1}, v{G+2}")
        j = 3
        while j < 4 * n:
            if j + 1 < 4 * n: a(f"v_or3_b32 v{vacc}, v{vacc}, v{G+j}, v{G+j+1}"); j += 2
            else: a(f"v_or_b32 v{vacc}, v{vacc}, v{G+j}"); j += 1
        a(f"v_lshlrev_b32 v{vacc}, 24, v{vacc}")
    def retry_if(vacc, L, code):
        D = newlab("RD")
        a(f"v_cmp_ne_u32 vcc, 0, v{vacc}\ns_cbranch_vccz {D}")
        spin(L, code)
        a(f"{D}:")
    G = 16
    QRS = QR.bit_length() - 1; ORS = OR.bit_length() - 1
    vKa, vQw, vQr, vVa0, vVa1, vMl, vPw, vMw, vOd, vLs, vOh, vLg, vOw = 52, 53, 54, 55, 56, 57, 58, 59, 60, 61, 62, 63, 14
    a(f"""v_and_b32 v16, 15, v1
v_lshrrev_b32 v17, 4, v1
v_lshrrev_b32 v18, 2, v16
v_and_b32 v19, 3, v1
v_mul_u32_u24 v{vKa}, {KSTR}, v18
v_lshl_add_u32 v{vKa}, v19, 8, v{vKa}
v_xor_b32 v20, v17, v19
v_lshl_add_u32 v{vKa}, v20, 4, v{vKa}
s_mul_i32 s14, s3, {8*KSTR}
v_add_u32 v{vKa}, s14, v{vKa}
v_lshrrev_b32 v20, 5, v1
v_mul_u32_u24 v20, 288, v20
v_and_b32 v21, 31, v1
v_lshl_add_u32 v{vQw}, v21, 3, v20
s_mul_i32 s14, s3, 576
v_add_u32 v{vQw}, s14, v{vQw}
v_and_b32 v20, 7, v1
v_mul_u32_u24 v20, 288, v20
v_lshl_add_u32 v{vQr}, v17, 4, v20
v_mul_u32_u24 v20, {VSTR}, v17
v_lshl_add_u32 v20, v18, 8, v20
v_and_b32 v21, 1, v1
v_lshl_add_u32 v20, v21, 3, v20
v_add_u32 v20, {L_V}, v20
v_bfe_u32 v21, v1, 1, 1
s_lshl_b32 s14, s3, 2
v_add_u32 v21, s14, v21
v_lshlrev_b32 v22, 1, v18
v_xor_b32 v21, v21, v22
v_lshl_add_u32 v{vVa0}, v21, 4, v20
v_xor_b32 v21, 2, v21
v_lshl_add_u32 v{vVa1}, v21, 4, v20
v_lshlrev_b32 v{vMl}, 3, v16
v_and_b32 v20, 0x37, v1
v_lshlrev_b32 v13, 4, v20
v_and_b32 v21, 8, v1
{f"v_add_u32 v{vPw}, v13, v21" if half else f"v_mov_b32 v{vPw}, v{vL16}"}
{"" if half else f"v_mov_b32 v13, v{vL16}"}
s_lshl_b32 s14, s3, 10
v_add_u32 v{vPw}, s14, v{vPw}
s_lshl_b32 s14, s3, 7
v_add_u32 v{vMw}, s14, v{vMl}
v_and_b32 v20, 7, v1
v_bfe_u32 v21, v1, 3, 1
v_lshlrev_b32 v{vOd}, 14, v20
v_lshl_add_u32 v{vOd}, v21, 6, v{vOd}
v_lshl_add_u32 v{vOd}, v17, 4, v{vOd}
v_lshlrev_b32 v{vLs}, 10, v20
v_lshlrev_b32 v{vOh}, 7, v1
v_lshrrev_b32 v{vLg}, 3, v1
v_lshlrev_b32 v{vLg}, 3, v{vLg}
v_lshl_add_u32 v{vOw}, v20, 2, v17
v_lshlrev_b32 v{vOw}, 2, v{vOw}
v_add_u32 v{vOw}, s14, v{vOw}
s_lshl_b32 s14, s4, 5
s_add_u32 s14, s14, s3
s_lshl_b32 s28, s14, 12
s_lshl_b32 s17, s5, 7
s_add_u32 s28, s28, s17
s_add_u32 s28, s28, {WS_OP}
s_lshl_b32 s29, s14, 8
s_lshl_b32 s17, s5, 3
s_add_u32 s29, s29, s17
s_add_u32 s29, s29, {WS_LS}
s_lshl_b32 s31, s4, 2
s_add_u32 s31, s31, s3
s_lshl_b32 s31, s31, {7+ORS}
s_lshl_b32 s17, s5, 2
s_add_u32 s31, s31, s17
s_add_u32 s31, s31, {WS_OH}
s_mov_b32 s18, 0xff00ff00
s_mov_b32 s19, 0xff00ff00
v_mov_b32 v48, 0x3db504f3
v_mov_b32 v50, 0x3fb8aa3b""")
    a("s_call_b64 s[94:95], L_oaddr")
    poll_lds(F_K if qwait else F_Q, 4, 32, 19, sleep=2)
    poll_hints(1, 6)
    stamp(4)
    Lq = newlab("GQ")
    a(f"{Lq}:")
    for i in range(4): a(f"buffer_load_dwordx4 v[{G+4*i}:{G+4*i+3}], v{vL16}, s[56:59], s62 offen offset:{1024*i} sc1")
    if g1 is not None: signal(F_QG)
    KF, VF, QF = 64, 96, 128
    poll_lds(F_K, 4, 32, 7, "\n".join(f"ds_read_b128 v[{KF+16*t+4*s}:{KF+16*t+4*s+3}], v{vKa} offset:{L_K+4*KSTR*t+64*s}" for t in range(2) for s in range(4)))
    vreads = []
    for w in range(4):
        for t, va in ((0, vVa0), (1, vVa1)):
            for T in range(2):
                r = VF + 8 * w + 4 * t + 2 * T
                vreads.append(f"ds_read_b64_tr_b16 v[{r}:{r+1}], v{va} offset:{(8*w+4*T)*VSTR}")
    a("s_waitcnt vmcnt(0)")
    if vpre: a(f"ds_read_b32 v33, v2 offset:{F_V}")
    for j in range(16): a(f"v_xor_b32 v{G+j}, v{G+j}, v{vTb+(j&3)}")
    pk("add", 36, G, G + 4); pk("add", 38, G + 2, G + 6); pk("add", 40, G + 8, G + 12); pk("add", 42, G + 10, G + 14)
    pk("add", 36, 36, 40); pk("add", 38, 38, 42)
    a(f"v_cvt_pk_bf16_f32 v36, v36, v37\nv_cvt_pk_bf16_f32 v37, v38, v39")
    a(f"ds_write_b64 v{vQw}, v[36:37] offset:{L_QBUF}")
    a(f"v_or3_b32 v32, v{G}, v{G+1}, v{G+2}\nv_or3_b32 v34, v{G+3}, v{G+4}, v{G+5}")
    for j in range(6, 14, 4): a(f"v_or3_b32 v32, v32, v{G+j}, v{G+j+1}\nv_or3_b32 v34, v34, v{G+j+2}, v{G+j+3}")
    a(f"v_or3_b32 v32, v32, v{G+14}, v{G+15}\nv_or_b32 v32, v32, v34\nv_lshlrev_b32 v32, 24, v32")
    retry_if(32, Lq, 8)
    signal(F_B1)
    stamp(5)
    poll_lds(F_B1, 4, 32, 9, "\n".join(f"ds_read_b128 v[{QF+4*s}:{QF+4*s+3}], v{vQr} offset:{L_QBUF+64*s}" for s in range(4)))
    S = 40
    for s in range(4):
        for t in range(2):
            c = "0" if s == 0 else f"v[{S+4*t}:{S+4*t+3}]"
            a(f"v_mfma_f32_16x16x32_bf16 v[{S+4*t}:{S+4*t+3}], v[{KF+16*t+4*s}:{KF+16*t+4*s+3}], v[{QF+4*s}:{QF+4*s+3}], {c}")
    if vpre:
        a("v_readfirstlane_b32 s35, v33\ns_cmp_lt_u32 s35, 4\ns_cbranch_scc1 L_vlater")
        a("\n".join(vreads))
        a("L_vlater:\ns_nop 7")
    def xlane(v, tmp, op, fill=((), ())):
        for n_, sw in enumerate(("v_permlane16_swap_b32", "v_permlane32_swap_b32")):
            a(f"v_mov_b32 v{tmp}, v{v}")
            for f in fill[n_]: f()
            a(f"{sw} v{v}, v{tmp}\n{op} v{v}, v{v}, v{tmp}")
    if half:
        for k in range(4): a(f"v_cndmask_b32 v{S+k}, v{S+k}, v{S+4+k}, s[18:19]")
        nv_ = 4
    else: nv_ = 8
    for k in range(0, nv_, 2): a(f"v_cvt_pk_bf16_f32 v{32+k//2}, v{S+k}, v{S+k+1}")
    for k in range(0, nv_, 2): a(f"v_lshlrev_b32 v{S+k}, 16, v{32+k//2}\nv_and_b32 v{S+k+1}, v{vHi}, v{32+k//2}")
    for k in range(0, nv_, 2): pk("mul", S + k, S + k, 48, mods="op_sel_hi:[1,0]")
    for k in range(0, nv_, 2): a(f"v_cvt_pk_bf16_f32 v{32+k//2}, v{S+k}, v{S+k+1}")
    for k in range(0, nv_, 2): a(f"v_lshlrev_b32 v{S+k}, 16, v{32+k//2}\nv_and_b32 v{S+k+1}, v{vHi}, v{32+k//2}")
    l2 = lambda k: (lambda: pk("mul", S + k, S + k, 50, mods="op_sel_hi:[1,0]"))
    if half:
        a(f"v_max3_f32 v32, v{S}, v{S+1}, v{S+2}\nv_max_f32 v32, v32, v{S+3}")
        l2(0)(); l2(2)()
        a("v_max_f32_dpp v32, v32, v32 row_ror:8 row_mask:0xf bank_mask:0xf")
        xlane(32, 33, "v_max_f32")
    else:
        a(f"v_max3_f32 v32, v{S}, v{S+1}, v{S+2}\nv_max3_f32 v33, v{S+3}, v{S+4}, v{S+5}\nv_max3_f32 v32, v32, v{S+6}, v{S+7}\nv_max_f32 v32, v32, v33")
        xlane(32, 33, "v_max_f32", ((l2(0), l2(2)), (l2(4), l2(6))))
    a("v_mul_f32 v32, v50, v32")
    for k in range(0, nv_, 2): pk("add", S + k, S + k, 32, mods="op_sel_hi:[1,0] neg_lo:[0,1] neg_hi:[0,1]")
    for k in range(nv_): a(f"v_exp_f32 v{S+k}, v{S+k}")
    pk("add", 34, S, S + 2)
    if half:
        a(f"v_cvt_pk_bf16_f32 v36, v{S}, v{S+1}\nv_add_f32 v33, v34, v35\nv_cvt_pk_bf16_f32 v37, v{S+2}, v{S+3}")
        a(f"ds_write_b64 v{vPw}, v[36:37] offset:{L_P}")
        a("v_add_f32_dpp v33, v33, v33 row_ror:8 row_mask:0xf bank_mask:0xf")
    else:
        for k in range(0, 4, 2): a(f"v_cvt_pk_bf16_f32 v{36+k//2}, v{S+k}, v{S+k+1}")
        pk("add", 34, 34, S + 4)
        for k in range(4, 8, 2): a(f"v_cvt_pk_bf16_f32 v{36+k//2}, v{S+k}, v{S+k+1}")
        pk("add", 34, 34, S + 6)
        a(f"ds_write_b128 v{vPw}, v[36:39] offset:{L_P}")
        a(f"v_add_f32 v33, v34, v35")
    xlane(33, 35, "v_add_f32")
    a(f"ds_write_b64 v{vMw}, v[32:33] offset:{L_ML}")
    signal(F_B2)
    stamp(6)
    if vpre: a("s_cmp_ge_u32 s35, 4\ns_cbranch_scc1 L_vdone")
    poll_lds(F_V, 4, 32, 10)
    a("\n".join(vreads))
    if vpre: a("L_vdone:")
    PW = 16; ML = 32; AC = 128
    poll_lds(F_B2, 4, 40, 11, "\n".join([f"ds_read_b128 v[{PW+4*w}:{PW+4*w+3}], v13 offset:{L_P+1024*w}" for w in range(4)] +
                                       [f"ds_read_b64 v[{ML+2*w}:{ML+2*w+1}], v{vMl} offset:{L_ML+128*w}" for w in range(4)]))
    stamp(7)
    fill = [f"v_max3_f32 v41, v{ML}, v{ML+2}, v{ML+4}\nv_max_f32 v41, v41, v{ML+6}",
            f"v_sub_f32 v40, v{ML}, v41\nv_sub_f32 v42, v{ML+2}, v41",
            f"v_sub_f32 v44, v{ML+4}, v41\nv_sub_f32 v46, v{ML+6}, v41",
            "v_exp_f32 v40, v40", "v_exp_f32 v42, v42", "v_exp_f32 v44, v44", "v_exp_f32 v46, v46",
            f"v_mul_f32 v43, v40, v{ML+1}\nv_fmac_f32 v43, v42, v{ML+3}"]
    for w in range(4):
        for t in range(2):
            r = AC + 8 * w + 4 * t
            a(f"v_mfma_f32_16x16x32_bf16 v[{r}:{r+3}], v[{VF+8*w+4*t}:{VF+8*w+4*t+3}], v[{PW+4*w}:{PW+4*w+3}], 0")
            a(fill[2 * w + t])
    a(f"v_fmac_f32 v43, v44, v{ML+5}\nv_fmac_f32 v43, v46, v{ML+7}")
    for k in range(4): a(f"v_cndmask_b32 v{AC+k}, v{AC+k}, v{AC+4+k}, s[18:19]")
    a("v_rcp_f32 v48, v43\nv_log_f32 v43, v43")
    for w in range(1, 4):
        for k in range(4): a(f"v_cndmask_b32 v{AC+8*w+k}, v{AC+8*w+k}, v{AC+8*w+4+k}, s[18:19]")
    for k in (0, 2): pk("mul", 16 + k, AC + k, 40, mods="op_sel_hi:[1,0]")
    for w in range(1, 4):
        for k in (0, 2): pk("fma", 16 + k, AC + 8 * w + k, 40 + 2 * w, 16 + k, mods="op_sel_hi:[1,0,1]")
    for k in (0, 2): pk("mul", 16 + k, 16 + k, 48, mods="op_sel_hi:[1,0]")
    tag4(16, 16, vT)
    a(f"""buffer_store_dwordx4 v[16:19], v{vOd}, s[56:59], s28 offen sc1
v_add_f32 v46, v41, v43
v_mov_b32 v47, v{vT}
s_mov_b64 exec, 0xff
{HST2} v[46:47], v{vLs}, s[56:59], s29 offen sc1
s_mov_b32 exec_lo, {hex((1<<OR)-1)}
{HST} v{vT}, v{vOh}, s[56:59], s31 offen sc1
s_mov_b64 exec, -1
s_mov_b32 s60, s36
s_mov_b32 s61, s37""")
    if g3 is not None: signal(F_OP)
    stamp(8)
    if oack: a("s_waitcnt vmcnt(0)")
    if othr: poll_hints(2, 13, othr)
    elif touch: a("s_branch L_no13\nT_13:\ns_setpc_b64 s[94:95]\nL_no13:")
    stamp(9)
    Lo = newlab("GO")
    a("s_mov_b64 vcc, -1")
    a(f"{Lo}:")
    for i in range(4): a(f"buffer_load_dwordx2 v[{32+2*i}:{33+2*i}], v{vLg}, s[56:59], s39 offen offset:{64*i} sc1")
    a("s_mov_b64 exec, vcc")
    for i in range(4): a(f"buffer_load_dwordx4 v[{G+4*i}:{G+4*i+3}], v{vL16}, s[56:59], s38 offen offset:{1024*i} sc1")
    if g2 is not None and not ogs: signal(F_OG)
    else: a("s_mov_b64 exec, -1")
    a("s_waitcnt vmcnt(4)")
    a("v_max3_f32 v40, v32, v34, v36\nv_max_f32 v40, v40, v38")
    a(f"v_xor_b32 v41, v33, v{vT}\nv_bitop3_b32 v41, v41, v35, v{vT} bitop3:0xf6")
    a("v_max_f32_dpp v40, v40, v40 row_ror:8 row_mask:0xf bank_mask:0xf")
    xlane(40, 42, "v_max_f32", ((lambda: a(f"v_bitop3_b32 v41, v41, v37, v{vT} bitop3:0xf6\nv_bitop3_b32 v41, v41, v39, v{vT} bitop3:0xf6"),), ()))
    for i in range(4): a(f"v_sub_f32 v{32+2*i}, v{32+2*i}, v40")
    for i in range(4): a(f"v_exp_f32 v{32+2*i}, v{32+2*i}")
    a("s_waitcnt vmcnt(0)")
    xs = [f"v_xor_b32 v{G+j}, v{G+j}, v{vTb+(j&3)}" for j in range(16)]
    a("v_add_f32 v43, v32, v34\nv_add_f32 v42, v36, v38\nv_add_f32 v43, v43, v42")
    a("\n".join(xs[0:2])); a("v_add_f32_dpp v43, v43, v43 row_ror:8 row_mask:0xf bank_mask:0xf")
    xlane(43, 42, "v_add_f32", ((lambda: a("\n".join(xs[2:6])),), (lambda: a("\n".join(xs[6:10])),)))
    a("v_rcp_f32 v43, v43"); a("\n".join(xs[10:16]))
    for k in (0, 2): pk("mul", 44 + k, G + k, 32, mods="op_sel_hi:[1,0]")
    for i in range(1, 4):
        for k in (0, 2): pk("fma", 44 + k, G + 4 * i + k, 32 + 2 * i, 44 + k, mods="op_sel_hi:[1,0,1]")
    ors = [f"v_or3_b32 v42, v{G}, v{G+1}, v{G+2}"] + [f"v_or3_b32 v42, v42, v{G+j}, v{G+j+1}" for j in range(3, 15, 2)] + [f"v_or_b32 v42, v42, v{G+15}", "v_lshl_or_b32 v42, v42, 24, v41"]
    def rscatter(v, fill=((), (), ())):
        for f in fill[0]: a(f)
        a(f"v_permlane32_swap_b32 v{v}, v{v+2}\nv_permlane32_swap_b32 v{v+1}, v{v+3}")
        a(f"v_add_f32 v{v}, v{v}, v{v+2}\nv_add_f32 v{v+1}, v{v+1}, v{v+3}")
        for f in fill[1]: a(f)
        a(f"v_permlane16_swap_b32 v{v}, v{v+1}\nv_add_f32 v{v}, v{v}, v{v+1}")
        for f in fill[2]: a(f)
    rscatter(44, (ors[0:2], ors[2:4], ors[4:6]))
    a("v_add_f32_dpp v44, v44, v44 row_ror:8 row_mask:0xf bank_mask:0xf")
    a("\n".join(ors[6:]))
    a("v_mul_f32 v44, v44, v43\nv_cvt_pk_bf16_f32 v44, v44, v44")
    a("v_cmp_ne_u32 vcc, 0, v42\ns_cbranch_vccnz L_oretry")
    a(f"ds_write_b32 v{vOw}, v44 offset:{L_O}")
    signal(F_O)
    if g2 is not None and ogs: signal(F_OG)
    stamp(11)
    a("s_branch L_exit")
    if align >= 2: a(".p2align 12")
    if touch: a("T_y:\ns_setpc_b64 s[94:95]")
    a("L_ypath:")
    roundbf(56, 4)
    normalize(F, 16)
    roundbf(F, 16)
    stats(F)
    normalize(56, 4)
    for k in range(4): a(f"v_cvt_pk_bf16_f32 v{60+k}, v{56+k}, v{56+k}")
    a(f"ds_write_b128 v16, v[60:63] offset:{L_Y}")
    signal(F_Y)
    stamp(3)
    a("s_branch L_lndone")

    a("L_oretry:")
    a("\n".join(xs))
    spin(Lo, 14)
    a("L_oaddr:")
    a(f"""s_and_b32 s14, s4, 3
s_lshl_b32 s14, s14, 2
s_add_u32 s14, s14, s3
s_lshl_b32 s14, s14, {6+QRS}
s_lshr_b32 s15, s4, 2
s_lshl_b32 s15, s15, 5
s_add_u32 s15, s15, s5
s_lshr_b32 s15, s15, {6-QRS}
s_lshl_b32 s15, s15, 6
s_add_u32 s14, s14, s15
s_add_u32 s14, s14, {WS_QH}
s_add_u32 s60, s56, s14
s_addc_u32 s61, s57, 0
s_and_b32 s14, s4, 3
s_lshl_b32 s14, s14, 1
s_lshr_b32 s15, s4, 2
s_add_u32 s14, s14, s15
s_lshl_b32 s14, s14, 14
s_lshl_b32 s15, s3, 12
s_add_u32 s14, s14, s15
s_add_u32 s62, s14, {WS_QP}""")
    a(f"""s_lshr_b32 s14, s3, 1
s_and_b32 s15, s6, 1
s_lshl_b32 s15, s15, 1
s_and_b32 s16, s3, 1
s_add_u32 s15, s15, s16
s_lshl_b32 s16, s14, 2
s_lshr_b32 s17, s6, 4
s_add_u32 s16, s16, s17
s_lshl_b32 s16, s16, 2
s_add_u32 s16, s16, s15
s_lshl_b32 s16, s16, {ORS}
s_bfe_u32 s17, s6, 0x30001
s_lshl_b32 s17, s17, 2
s_add_u32 s17, s17, s7
s_lshr_b32 s17, s17, {5-ORS}
s_add_u32 s16, s16, s17
s_lshl_b32 s16, s16, 7
s_add_u32 s16, s16, {WS_OH}
s_add_u32 s36, s56, s16
s_addc_u32 s37, s57, 0
s_lshl_b32 s16, s14, 5
s_lshr_b32 s17, s6, 1
s_add_u32 s16, s16, s17
s_lshl_b32 s16, s16, 2
s_add_u32 s16, s16, s15
s_lshl_b32 s38, s16, 12
s_add_u32 s38, s38, {WS_OP}
s_lshl_b32 s39, s16, 8
s_add_u32 s39, s39, {WS_LS}""")
    a("s_setpc_b64 s[94:95]")
    a("L_H:")
    if touch and not nt: touches(['y'])
    a("""s_mov_b64 s[36:37], s[86:87]
s_load_dwordx2 s[40:41], s[0:1], 72
s_load_dwordx2 s[44:45], s[0:1], 80""")
    if stamps: a(f"v_writelane_b32 v{vStamp}, s96, 0")
    a(f"""s_mov_b32 s38, 7168
s_mov_b32 s39, 0x20000
s_mov_b32 s42, 2048
s_mov_b32 s43, 0x20000
s_mov_b32 s46, 4096
s_mov_b32 s47, 0x20000
v_and_b32 v16, 1, v1
v_lshrrev_b32 v17, 4, v1
v_lshl_add_u32 v16, v16, 2, v17
v_lshlrev_b32 v14, 1, v16
s_lshl_b32 s34, s4, 5
s_add_u32 s34, s34, s5
s_lshl_b32 s33, s34, 4
s_and_b32 s15, s33, 2047
v_and_b32 v16, 15, v1
v_lshlrev_b32 v16, 3, v16
s_lshl_b32 s17, s8, 7
s_waitcnt lgkmcnt(0)
buffer_load_ushort v{vXf}, v14, s[24:27], s33 offen
buffer_load_ushort v{vB2f}, v14, s[40:43], s15 offen
buffer_load_dwordx2 v[{vB1}:{vB1+1}], v16, s[36:39], s17 offen""")
    tagconsts()
    a(f"""v_lshrrev_b32 v80, 4, v1
v_and_b32 v81, 15, v1
v_lshlrev_b32 v81, 4, v81
v_lshl_add_u32 v80, v80, 14, v81
v_lshlrev_b32 v81, 6, v1
s_lshr_b32 s14, s6, 4
s_lshl_b32 s14, s14, 15
s_bfe_u32 s15, s6, 0x20002
s_lshl_b32 s15, s15, 12
s_add_u32 s14, s14, s15
s_lshl_b32 s15, s7, 10
s_add_u32 s14, s14, s15
s_and_b32 s15, s6, 3
s_lshl_b32 s15, s15, 8
s_add_u32 s14, s14, s15
s_add_u32 s30, s14, {WS_QP}
s_lshr_b32 s15, s6, 2
s_lshl_b32 s15, s15, {6+QRS}
s_and_b32 s17, s6, 3
s_lshl_b32 s17, s17, 2
s_add_u32 s17, s17, s7
s_lshl_b32 s17, s17, 2
s_add_u32 s15, s15, s17
s_add_u32 s31, s15, {WS_QH}""")
    publish_part(L_QPART, F_Q, 5, 80, ("s_mov_b64 exec, -1" if QR == 64 else f"s_mov_b32 exec_lo, {hex((1<<QR)-1)}") + f"\n{HST} v{vT}, v81, s[56:59], s31 offen sc1")
    stamp(3)
    if touch and not nt: touches([12, 16, 18])
    a(f"""v_and_b32 v48, 31, v1
v_lshlrev_b32 v48, 4, v48
s_lshl_b32 s52, s34, 5
s_add_u32 s52, s52, {WS_FP}
s_add_u32 s53, s52, {32*8192}
v_lshrrev_b32 v50, 1, v1
v_lshlrev_b32 v50, 13, v50
v_and_b32 v51, 1, v1
v_lshl_add_u32 v50, v51, 4, v50
s_waitcnt vmcnt(2)
v_lshlrev_b32 v{vXf}, 16, v{vXf}
v_lshlrev_b32 v{vB2f}, 16, v{vB2f}
v_add_f32 v{vXf}, v{vXf}, v{vB2f}
v_mov_b32 v44, 0
v_mov_b32 v45, 0
v_mov_b32 v46, 0
v_mov_b32 v47, 0
s_cmp_eq_u32 s9, 0
s_cbranch_scc1 L_hwrite
s_lshl_b32 s62, s8, 11
s_add_u32 s62, s62, {WS_HP}
s_lshl_b32 s15, s7, 9
s_add_u32 s30, s62, s15""")
    unpack(vB1, 76, 2)
    if hloc:
        a(f"s_add_u32 s31, s30, {WS_HL - WS_HP}\ns_add_u32 s63, s62, {WS_HL - WS_HP}\ns_add_u32 s60, s56, s63\ns_addc_u32 s61, s57, 0\ns_and_b32 s28, s12, 0xff\ns_mov_b32 s17, 0")
        publish_part(L_HPART, F_H, 12, vL16, f"buffer_store_dwordx4 v[96:99], v{vL16}, s[56:59], s31 offen")
        stamp(4)
        L1 = newlab("HA"); L2 = newlab("HB")
        a(f"{L1}:")
        for k in range(4): a(f"s_load_dword s{64+k}, s[60:61], {512*k} glc")
        a(f"s_add_u32 s17, s17, 1\ns_cmp_ge_u32 s17, {hloc}\ns_cbranch_scc1 {L2}\ns_waitcnt lgkmcnt(0)")
        a("s_xor_b32 s64, s64, s28\ns_xor_b32 s65, s65, s28\ns_xor_b32 s66, s66, s28\ns_xor_b32 s67, s67, s28\ns_or_b32 s64, s64, s65\ns_or_b32 s66, s66, s67\ns_or_b32 s64, s64, s66\ns_and_b32 s64, s64, 0xff")
        a(f"s_cbranch_scc1 {L1}")
        for i in range(2): a(f"buffer_load_dwordx4 v[{G+4*i}:{G+4*i+3}], v{vL16}, s[56:59], s63 offen offset:{1024*i} sc1")
        stamp(5)
        a("s_waitcnt vmcnt(0)")
        untag(G, 2, 42)
        a(f"v_cmp_ne_u32 vcc, 0, v42\ns_cbranch_vccz L_hok\ns_branch {L1}\n{L2}:\ns_waitcnt lgkmcnt(0)")
    else:
        a(f"s_lshl_b32 s14, s8, 7\ns_add_u32 s14, s14, {WS_HH}\ns_add_u32 s60, s56, s14\ns_addc_u32 s61, s57, 0\ns_lshl_b32 s17, s7, 2\ns_add_u32 s31, s14, s17")
        publish_part(L_HPART, F_H, 12, vL16, f"s_mov_b32 exec_lo, 1\n{HST} v{vT}, v2, s[56:59], s31 offen sc1")
        stamp(4)
        poll_hints(0, 15)
        stamp(5)
    Lh = newlab("GH")
    a(f"{Lh}:")
    for i in range(2): a(f"buffer_load_dwordx4 v[{G+4*i}:{G+4*i+3}], v{vL16}, s[56:59], s62 offen offset:{1024*i} sc1")
    a("s_waitcnt vmcnt(0)")
    untag(G, 2, 42)
    retry_if(42, Lh, 16)
    a("L_hok:")
    stamp(6)
    pk("add", G, G, G + 4); pk("add", G + 2, G + 2, G + 6)
    for k in range(4): a(f"v_mov_b32 v{G+4+k}, v{G+k}")
    for k in range(4): a(f"v_permlane32_swap_b32 v{G+k}, v{G+4+k}")
    pk("add", G, G, G + 4); pk("add", G + 2, G + 2, G + 6)
    roundbf(G, 4)
    pk("add", G, G, 76); pk("add", G + 2, G + 2, 78)
    roundbf(G, 4)
    a("s_mov_b32 s14, 0x3d372713\ns_mov_b32 s15, 0xc0135761")
    for k in (0, 2): pk("mul", 24 + k, G + k, G + k)
    for k in (0, 2): pk("mul", 24 + k, 24 + k, G + k)
    for k in range(4): a(f"v_fma_f32 v{24+k}, s14, v{24+k}, v{G+k}")
    for k in range(4): a(f"v_mul_f32 v{24+k}, s15, v{24+k}")
    for k in range(4): a(f"v_exp_f32 v{24+k}, v{24+k}")
    for k in range(4): a(f"v_add_f32 v{24+k}, 1.0, v{24+k}")
    for k in range(4): a(f"v_rcp_f32 v{24+k}, v{24+k}")
    for k in (0, 2): pk("mul", 24 + k, 24 + k, G + k)
    for k in range(4): a(f"v_cvt_pk_bf16_f32 v{44+k}, v{24+k}, v{24+k}")
    a(f"L_hwrite:\nds_write_b128 v48, v[44:47] offset:{L_H}")
    signal(F_HD)
    stamp(12)
    if tall == 2: a("s_waitcnt lgkmcnt(0)\ns_barrier")
    poll_lds(F_FP, 4, 32, 18, sleep=0 if tall == 2 else 1)
    stamp(7)
    if fdelay: a(f"s_sleep {fdelay}")
    Lf = newlab("GF"); Ld = newlab("GD")
    sets = [64 + 8 * k for k in range(fsets)]
    def fissue(R):
        for i in range(2): a(f"buffer_load_dwordx4 v[{R+4*i}:{R+4*i+3}], v50, s[56:59], s{52+i} offen sc1")
    for R in sets[:-1]: fissue(R)
    a(f"{Lf}:")
    if fastfin:
        for k, R in enumerate(sets):
            fissue(sets[k - 1])
            a(f"s_waitcnt vmcnt({2*(fsets-1)})")
            for j in range(8): a(f"v_xor_b32 v{R+j}, v{R+j}, v{vTb+(j&3)}")
            pk("add", 44, R, R + 4); pk("add", 46, R + 2, R + 6)
            rscatter(44, ((f"v_or3_b32 v42, v{R}, v{R+1}, v{R+2}", f"v_or3_b32 v42, v42, v{R+3}, v{R+4}"),
                          (f"v_or3_b32 v42, v42, v{R+5}, v{R+6}", f"v_or_b32 v42, v42, v{R+7}"),
                          ("v_lshlrev_b32 v42, 24, v42", "v_cmp_ne_u32 vcc, 0, v42")))
            a("v_add_f32_dpp v44, v44, v44 quad_perm:[2,3,0,1] row_mask:0xf bank_mask:0xf")
            a(f"s_cbranch_vccz {Ld}")
        spin(Lf, 17)
        a(f"{Ld}:")
        stamp(13)
        R = 44
        a("s_nop 0")
        a(f"v_add_f32_dpp v{R}, v{R}, v{R} row_ror:4 row_mask:0xf bank_mask:0xf")
        a(f"v_add_f32_dpp v{R}, v{R}, v{R} row_ror:8 row_mask:0xf bank_mask:0xf")
    else:
        for k, R in enumerate(sets):
            fissue(sets[k - 1])
            a(f"s_waitcnt vmcnt({2*(fsets-1)})")
            untag(R, 2, 42)
            pk("add", 44, R, R + 4); pk("add", 46, R + 2, R + 6)
            a(f"v_cmp_ne_u32 vcc, 0, v42\ns_cbranch_vccz {Ld}")
        spin(Lf, 17)
        a(f"{Ld}:")
        stamp(13)
        R = 44
        rscatter(R)
        for m in ("quad_perm:[2,3,0,1]", "row_ror:4", "row_ror:8"):
            a(f"v_add_f32_dpp v{R}, v{R}, v{R} {m} row_mask:0xf bank_mask:0xf")
    a(f"s_mov_b32 exec_lo, 0x00030003\ns_mov_b32 exec_hi, 0x00030003")
    a(f"v_add_f32 v{R}, v{R}, v{vXf}\nv_cvt_pk_bf16_f32 v{R}, v{R}, v{R}\nbuffer_store_short v{R}, v14, s[44:47], s33 offen {oflags}")
    a(f"s_cmp_lg_u32 s2, 0\ns_cbranch_scc1 L_noep\ns_add_u32 s11, s11, 1\nv_mov_b32 v{R+1}, s11\ns_mov_b64 exec, 1\nbuffer_store_dword v{R+1}, v2, s[56:59], 0 offen {oflags}\nL_noep:\ns_mov_b64 exec, -1")
    stamp(14, True)
    a("L_exit:")
    if stamps:
        a(f"""s_waitcnt vmcnt(0)
v_lshrrev_b32 v20, 6, v0
v_lshlrev_b32 v20, 6, v20
v_lshl_add_u32 v20, v1, 2, v20
s_lshl_b32 s14, s2, 10
s_add_u32 s14, s14, {WS_ST}
s_mov_b64 exec, 0xffff
buffer_store_dword v{vStamp}, v20, s[56:59], s14 offen""")
    a("L_end:\ns_endpgm")
    a("L_fail:")
    a("""s_load_dwordx2 s[48:49], s[0:1], 88
s_mov_b32 s50, 256
s_mov_b32 s51, 0x20000
s_lshl_b32 s14, s15, 2
v_mov_b32 v20, s2
v_add_u32 v20, 1, v20
s_waitcnt lgkmcnt(0)
s_mov_b64 exec, 1
buffer_store_dword v20, v2, s[48:51], s14 offen
s_endpgm""")
    if post: a(f".fill {post}, 4, 0xbf800000")
    nv = 168
    a(f""".section .rodata,"a"
.p2align 6
.amdhsa_kernel {KNAME}
  .amdhsa_next_free_vgpr {nv}
  .amdhsa_next_free_sgpr 102
  .amdhsa_accum_offset {nv}
  .amdhsa_group_segment_fixed_size 0
  .amdhsa_kernarg_size 104
  .amdhsa_user_sgpr_count 2
  .amdhsa_user_sgpr_kernarg_segment_ptr 1
  .amdhsa_system_sgpr_workgroup_id_x 1
  .amdhsa_float_denorm_mode_32 3
.end_amdhsa_kernel""")
    return a.finish()

if __name__ == "__main__":
    out = sys.argv[1] if len(sys.argv) > 1 else "x.s"
    open(out, "w").write(gen())
```

```python
import sys, json
sys.path.insert(0, "gen")
import gen
ref = open("parallel_sum__sliding_block_cached__mixer_channel_mlp__decode.s.ref").read().split("\n")
head = []
for l in ref:
    if l.startswith("; Override launch"): break
    head.append(l)
DOC = """;
;"""
def emit(**kw):
    body = gen.gen(**kw).split("\n")
    assert body[0].startswith("; @launch")
    return "\n".join(head + [body[0]] + DOC.split("\n") + [l for l in body[1:] if l.strip()]) + "\n"
if __name__ == "__main__":
    kw = json.loads(sys.argv[2]) if len(sys.argv) > 2 else {}
    open(sys.argv[1], "w").write(emit(**kw))
```

```python
import sys
from asmlib import Asm

KNAME = "parallel_sum__sliding_block_cached__mixer_channel_mlp__decode_kernel"

WS_HH = 0x1000; WS_QH = 0x4000; WS_OH = 0x8000; WS_LS = 0x18000; WS_QP = 0x28000
WS_HP = 0x48000; WS_HL = 0x64000; WS_FP = 0x80000; WS_OP = 0x100000; WS_ST = 0x200000
WS_BYTES = 0x10000000
KSTR = 1088; VSTR = 1152
L_X = 0
L_Y = L_X + 2048; L_QPART = L_Y + 2048; L_HPART = L_QPART + 2048
L_QBUF = L_HPART + 2048; L_P = L_QBUF + 2304; L_ML = L_P + 4096
L_O = L_ML + 512; L_H = L_O + 512; L_F = L_H + 512
L_K = L_F + 128; L_V = L_K + 32 * KSTR; L_END = L_V + 32 * VSTR
L_FIN = L_K
F_X, F_Y, F_Q, F_K, F_V, F_H, F_B1, F_B2, F_O, F_HD, F_QG, F_OG, F_FP, F_B3, F_OP, F_K2, F_PQ, F_PO = [L_F + 4 * i for i in range(18)]
TO_LIMIT = 1 << 20
NW = 9

def gen(W=(5, 5, 5, 6, 5, 5), stamps=0, ldflags="nt", order="qkv1o2", qstart=5, p1start=0, cprio=3, QR=4, OR=4, g1=None, g2=44,
        sonly=0, fsets=2, fack=1, hloc=0, vpre=1, hat=1, tall=2, fdelay=0, align=2, touch=1, nt=0, tlb=0, oflags='', WE=None, late=4, pre=832, post=0, g3=None, hsleep=0, oack=1, qwait=1, rq=0, r1=4, othr=16, qthr=8, ogs=0, fakebal=0, half=1, tpat=1, pre2=1, fastfin=0, fixdur=0, qpos=None, opos=None, maxper=8, gs=None, wl=2, gq=None, wrot=0, w1t=0, ksw=1, vsw=2, kvr=0, kvc=8, qdir=0):
    a = Asm()
    if isinstance(W, int): W = [W] * 48
    if len(W) == 6: W = [w for w in W for _ in range(8)]
    if isinstance(WE, int): WE = [WE] * 48
    if WE and len(WE) == 6: WE = [w for w in WE for _ in range(8)]
    lab = [0]
    HST = "buffer_atomic_swap" if hat else "buffer_store_dword"
    HST2 = "buffer_atomic_swap_x2" if hat else "buffer_store_dwordx2"
    def newlab(p="L"):
        lab[0] += 1
        return f"{p}_{lab[0]}"
    vStamp = 160
    stubs = (2, 22, 4, 19, 8, 9, 11, 13, 12, 16, 18) if touch else ()
    def touches(codes):
        for c in codes: a(f"s_call_b64 s[94:95], T_{c}")
    def stamp(k, light=False):
        if stamps == 1 or (stamps == 2 and light):
            a(f"s_memrealtime s[98:99]\ns_waitcnt lgkmcnt(0)\nv_writelane_b32 v{vStamp}, s98, {k}")
    def signal(flag):
        a(f"s_mov_b64 exec, 1\nds_add_u32 v2, v3 offset:{flag}\ns_mov_b64 exec, -1")
    def spin(L, code):
        a(f"s_add_u32 s10, s10, 1\ns_cmp_lt_u32 s10, {TO_LIMIT}\ns_cbranch_scc1 {L}\ns_mov_b32 s15, {code}\ns_branch L_fail")
        if code in stubs: a(f"T_{code}:\ns_setpc_b64 s[94:95]")
    def poll_lds(flag, n, vt, code, spec=None, sleep=0):
        L = newlab("PL"); D = newlab("PD")
        a(f"{L}:\nds_read_b32 v{vt}, v2 offset:{flag}")
        if spec: a(spec)
        a(f"s_waitcnt lgkmcnt(0)\nv_readfirstlane_b32 s14, v{vt}\ns_cmp_ge_u32 s14, {n}\ns_cbranch_scc1 {D}")
        if sleep: a(f"s_sleep {sleep}")
        spin(L, code)
        a(f"{D}:")
    def red64(v, s):
        for m in ("quad_perm:[1,0,3,2] row_mask:0xf", "quad_perm:[2,3,0,1] row_mask:0xf", "row_half_mirror row_mask:0xf",
                  "row_mirror row_mask:0xf", "row_bcast:15 row_mask:0xa", "row_bcast:31 row_mask:0xc"):
            a(f"v_add_f32_dpp v{v}, v{v}, v{v} {m} bank_mask:0xf")
        a(f"v_readlane_b32 s{s}, v{v}, 63")
    def nonce():
        a("s_mul_i32 s12, s11, 0x9E3779B1\ns_add_u32 s12, s12, 0x85EBCA77\ns_mov_b32 s13, s12")
        a("s_mov_b32 s20, 0x07060500\ns_mov_b32 s21, 0x07060501\ns_mov_b32 s22, 0x07060502\ns_mov_b32 s23, 0x07060503")
    def tag4(src, dst, vT):
        for k in range(4): a(f"v_perm_b32 v{dst+k}, v{src+k}, v{vT}, s{20+k}")
    def pk(op, d, x, y, z=None, mods=""):
        zz = f", v[{z}:{z+1}]" if z is not None else ""
        a(f"v_pk_{op}_f32 v[{d}:{d+1}], v[{x}:{x+1}], v[{y}:{y+1}]{zz} {mods}")

    a(f"; @launch grid=(256,1,1) block=({64*(NW+nt)},1,1) lds={L_END}")
    a('.amdgcn_target "amdgcn-amd-amdhsa--gfx950"')
    a(f".text\n.globl {KNAME}")
    if align: a(".p2align 12\n.fill {pre}, 4, 0xbf800000".replace("{pre}", str(pre)))
    a(f".p2align 8\n.type {KNAME},@function\n{KNAME}:")
    a("""s_cmp_ge_u32 s2, 256
s_cbranch_scc1 L_end
s_load_dwordx16 s[72:87], s[0:1], 0
s_load_dwordx2 s[56:57], s[0:1], 96""")
    if stamps:
        a(f"s_memrealtime s[96:97]\nv_mov_b32 v{vStamp}, 0")
    if fixdur: a("s_memrealtime s[96:97]")
    a(f"""v_lshrrev_b32 v4, 6, v0
v_and_b32 v1, 63, v0
v_readfirstlane_b32 s3, v4
v_mov_b32 v2, 0
v_mov_b32 v3, 1
s_and_b32 s4, s2, 7
s_lshr_b32 s5, s2, 3
s_lshr_b32 s14, s5, 2
s_lshl_b32 s15, s14, 3
s_add_u32 s6, s4, {rq}
s_and_b32 s6, s6, 7
s_add_u32 s6, s6, s15
s_add_u32 s8, s4, {r1}
s_and_b32 s8, s8, 7
s_add_u32 s8, s8, s15
s_and_b32 s7, s5, 3
s_cmp_lt_u32 s14, 7
s_cselect_b32 s9, 1, 0
s_mov_b32 s10, 0
s_mov_b32 s58, {WS_BYTES}
s_mov_b32 s59, 0x20000
s_cmp_lt_u32 s3, 4
s_cbranch_scc1 L_S""")
    if nt:
        a("s_cmp_lt_u32 s3, 9\ns_cbranch_scc1 L_notw")
        if tlb: a("s_load_dwordx2 s[52:53], s[0:1], 64")
        a("s_waitcnt lgkmcnt(0)\ns_barrier")
        groups = {1: [['y', 19, 8, 11, 13, 12, 2, 4]], 2: [['y', 8, 13, 2], [19, 11, 12, 4]], 3: [['y', 11, 2], [19, 13, 4], [8, 12, 22 if g2 is not None else 4]]}[nt]
        for k, grp in enumerate(groups):
            if k + 1 < len(groups): a(f"s_cmp_lg_u32 s3, {9+k}\ns_cbranch_scc1 L_tw{k+1}")
            if tlb and k == 0:
                a(f"""s_lshl_b32 s14, s4, 22
s_add_u32 s14, s14, {12288*256}
s_load_dword s64, s[36:37], s14
s_load_dword s65, s[40:41], s14
s_mul_i32 s14, s7, {256*7168}
s_load_dword s66, s[44:45], s14
s_add_u32 s14, s14, {255*7168}
s_load_dword s67, s[44:45], s14
s_lshl_b32 s14, s6, 17
s_load_dword s68, s[48:49], s14
s_lshl_b32 s14, s8, 17
s_min_u32 s14, s14, {3583*2048}
s_load_dword s69, s[52:53], s14""")
            touches(grp)
            a("s_endpgm")
            if k + 1 < len(groups): a(f"L_tw{k+1}:")
        a("L_notw:")
    vL16 = 4
    if cprio: a(f"s_setprio {cprio}")
    a(f"""s_sub_u32 s3, s3, 4
s_mov_b32 s26, 4096
s_mov_b32 s27, 0x20000
v_lshlrev_b32 v{vL16}, 4, v1
v_lshlrev_b32 v16, 3, v1
s_and_b32 s16, s3, 1
s_lshl_b32 s14, s16, 11
s_lshl_b32 s15, s7, 9
s_add_u32 s15, s15, s14
v_lshlrev_b32 v17, 2, v1
s_mov_b32 exec_hi, 0
ds_write_b32 v17, v2 offset:{L_F}
s_mov_b64 exec, -1
s_cmp_eq_u32 s3, 4
s_waitcnt lgkmcnt(0)
s_mov_b64 s[24:25], s[72:73]
s_barrier
s_cbranch_scc1 L_C
buffer_load_dwordx4 v[20:23], v{vL16}, s[24:27], s14 offen
buffer_load_dwordx4 v[24:27], v{vL16}, s[24:27], s14 offen offset:1024
buffer_load_dwordx2 v[28:29], v16, s[24:27], s15 offen
s_branch L_C""")

    a("L_S:")
    a("s_load_dwordx2 s[52:53], s[0:1], 64")
    a(f"""s_mov_b32 s34, {1024*8192}
s_mov_b32 s35, 0x20000
s_mov_b32 s38, {2*4*16384*256}
s_mov_b32 s39, 0x20000
s_mov_b32 s42, {2*4*16384*256}
s_mov_b32 s43, 0x20000
s_cmp_lg_u32 s9, 0
s_cselect_b32 s46, {1024*7168}, 0
s_cselect_b32 s54, {3584*2048}, 0
s_mov_b32 s47, 0x20000
s_mov_b32 s50, {4096*2048}
s_mov_b32 s51, 0x20000
s_mov_b32 s55, 0x20000
s_lshl_b32 s14, s7, 8
s_lshl_b32 s15, s3, 6
s_add_u32 s14, s14, s15
s_lshl_b32 s60, s14, 13
s_lshl_b32 s15, s6, 7
s_add_u32 s60, s60, s15
s_mul_i32 s63, s14, 7168
s_lshl_b32 s15, s8, 7
s_add_u32 s63, s63, s15""")
    if w1t:
        if w1t == 1: a("s_lshr_b32 s15, s8, 2\ns_and_b32 s16, s8, 3")
        else: a("s_mul_i32 s16, s8, 4682\ns_lshr_b32 s16, s16, 16\ns_mul_i32 s15, s16, 14\ns_sub_u32 s15, s8, s15")
        a("s_lshl_b32 s16, s16, 2\ns_add_u32 s16, s16, s7\ns_lshl_b32 s16, s16, 2\ns_add_u32 s16, s16, s3\ns_mul_i32 s63, s16, 114688\ns_lshl_b32 s15, s15, 9\ns_add_u32 s63, s63, s15")
    if tall: a("s_lshl_b32 s14, s7, 9\ns_lshl_b32 s15, s3, 15\ns_add_u32 s14, s14, s15")
    else: a("s_lshl_b32 s14, s14, 1")
    a(f"""s_lshl_b32 s64, s6, 17
s_add_u32 s64, s64, s14
s_lshl_b32 s65, s8, 17
s_add_u32 s65, s65, s14
s_lshl_b32 s61, s4, 22
{"s_lshl_b32 s15, s5, 10" if kvc != 8 else ""}
{"s_add_u32 s61, s61, s15" if not kvc else f"s_mul_i32 s69, s3, {kvc*8*1024}" if kvc != 8 else ""}
{"" if kvc in (0, 8) else "s_add_u32 s69, s69, s15"}
{"s_lshl_b32 s15, s3, 18" if not kvr else "s_lshl_b32 s69, s3, 3"}
{"s_add_u32 s61, s61, s15" if not kvr else {1: "s_add_u32 s69, s69, s4", 2: "s_lshl_b32 s15, s4, 2", 3: "s_mul_i32 s15, s4, 5", 0: "s_nop 0"}[kvr & 3]}
{"s_add_u32 s69, s69, s15" if (kvr & 3) >= 2 else ""}
s_add_u32 s61, s61, {12288*256}
s_mov_b32 s62, s61
s_mul_i32 s66, s3, {8*KSTR}
s_add_u32 s66, s66, {L_K}
s_mul_i32 s67, s3, {8*VSTR}
s_add_u32 s67, s67, {L_V}""")
    vOffQ, vOff1, vOffO, vOffK, vOffV = 18, 19, 4, 5, 6
    vLdsX, vLdsO, vPart, vFP, vFin, vT = 7, 12, 13, 14, 15, 17
    vM = 8
    a(f"""v_lshrrev_b32 v20, 4, v1
v_bfe_u32 v21, v1, 3, 1
v_and_b32 v22, 7, v1
v_lshl_add_u32 v23, v20, 2, v21
v_lshlrev_b32 v24, 4, v22
v_lshl_add_u32 v{vOffQ}, v23, 13, v24
v_mul_u32_u24 v25, 7168, v23
v_add_u32 v{vOff1}, v25, v24
v_and_b32 v25, 15, v1""")
    if w1t: a(f"v_mul_u32_u24 v{vOff1}, 28672, v20\nv_lshl_add_u32 v{vOff1}, v25, 4, v{vOff1}")
    if tall:
        a(f"v_lshlrev_b32 v{vOffO}, 4, v25\nv_lshl_add_u32 v{vOffO}, v20, {11 if tpat else 13}, v{vOffO}")
        if tpat == 2:
            a(f"s_bfe_u32 s69, s5, 0x10002\ns_lshl_b32 s14, s69, 8\nv_add_u32 v{vOffO}, s14, v{vOffO}\nv_xor_b32 v63, 0x100, v{vOffO}")
    else: a(f"v_lshl_add_u32 v{vOffO}, v23, 11, v24")
    for sw, vo in ((ksw, vOffK), (vsw, vOffV)):
        if sw == 0: a(f"v_lshlrev_b32 v{vo}, 4, v1")
        else:
            if sw == 1: a("v_xor_b32 v26, v25, v20")
            else: a(f"v_lshlrev_b32 v26, {sw-1}, v20\nv_xor_b32 v26, v25, v26")
            a(f"v_lshlrev_b32 v26, 4, v26\nv_lshl_add_u32 v{vo}, v20, 8, v26")
    DQ, D1, D2, DO = 64, 96, 128, 64
    if ' ' in order:
        seq = []; cntr = {}
        for tok in order.split():
            t, k = tok[0], int(tok[1:])
            for _ in range(k):
                seq.append((t, cntr.get(t, 0))); cntr[t] = cntr.get(t, 0) + 1
        assert all(v == 8 for v in cntr.values()) and len(seq) == 48
    else:
        seq = [(t, i) for t in order for i in range(8)]
    endpos = {t: n + 1 for n, (t, i) in enumerate(seq) if i == 7}
    info = {'q': (32, 60, vOffQ, 8192, DQ), '1': (44, 63, vOff1, 7168, D1), '2': (52, 65, vOffO, 2048, D2), 'o': (48, 64, vOffO, 2048, DO),
            'k': (36, 61, vOffK, None, None), 'v': (40, 62, vOffV, None, None)}
    def issue(t, i):
        srd, so, vo, stride, D = info[t]
        if t in 'kv' and kvr:
            base, st = (66, KSTR) if t == 'k' else (67, VSTR)
            ii = (i + 4) & 7 if (kvr >= 4 and t == 'v') else i
            a(f"s_add_u32 s16, s69, {ii}\ns_and_b32 s16, s16, 31\ns_lshl_b32 s16, s16, 15\ns_add_u32 s16, s16, s{so}\ns_add_u32 m0, s{base}, {ii*st}")
            a(f"buffer_load_dwordx4 v{vo}, s[{srd}:{srd+3}], s16 offen {ldflags} lds")
        elif t in 'kv' and kvc == 8:
            base, st = (66, KSTR) if t == 'k' else (67, VSTR)
            if i > 0: a(f"s_add_u32 s{so}, s{so}, s92")
            a(f"s_add_u32 s16, s{88 + (i & 3)}, s{so}\ns_add_u32 m0, s{base}, {i*st}")
            a(f"buffer_load_dwordx4 v{vo}, s[{srd}:{srd+3}], s16 offen {ldflags} lds")
        elif t in 'kv' and kvc:
            base, st = (66, KSTR) if t == 'k' else (67, VSTR)
            if i > 0: a(f"s_add_u32 s{so}, s{so}, 32768")
            a(f"s_add_u32 s16, s69, {(kvc*i*1024) & 0x7fff}\ns_and_b32 s16, s16, 0x7c00\ns_add_u32 s16, s16, s{so}\ns_add_u32 m0, s{base}, {i*st}")
            a(f"buffer_load_dwordx4 v{vo}, s[{srd}:{srd+3}], s16 offen {ldflags} lds")
        elif t in 'kv':
            if i > 0: a(f"s_add_u32 s{so}, s{so}, 32768")
            base, st = (66, KSTR) if t == 'k' else (67, VSTR)
            a(f"s_add_u32 m0, s{base}, {i*st}")
            a(f"buffer_load_dwordx4 v{vo}, s[{srd}:{srd+3}], s{so} offen {ldflags} lds")
        elif tall and t in '2o':
            if i > 0 and i % 2 == 0: a(f"s_add_u32 s{so}, s{so}, {8192 if tpat else 2048}")
            if tpat == 2: a(f"buffer_load_dwordx4 v[{D+4*i}:{D+4*i+3}], v{63 if i & 1 else vo}, s[{srd}:{srd+3}], s{so} offen {ldflags}")
            else: a(f"buffer_load_dwordx4 v[{D+4*i}:{D+4*i+3}], v{vo}, s[{srd}:{srd+3}], s{so} offen offset:{256*(i&1)} {ldflags}")
        elif w1t and t == '1':
            if i > 0 and i % 2 == 0: a(f"s_add_u32 s{so}, s{so}, 7168")
            a(f"buffer_load_dwordx4 v[{D+4*i}:{D+4*i+3}], v{vo}, s[{srd}:{srd+3}], s{so} offen offset:{256*(i&1)} {ldflags}")
        elif wrot and t in 'q1':
            rs = {1: "s_lshr_b32 s16, s5, 2", 2: "s_mov_b32 s16, s4", 3: "s_lshr_b32 s16, s5, 2\ns_add_u32 s16, s16, s4"}[wrot]
            a(f"{rs}\ns_add_u32 s16, s16, {i>>1}\ns_and_b32 s16, s16, 3\ns_mul_i32 s16, s16, {16*stride}\ns_add_u32 s16, s16, {2*(i&1)*stride}\ns_add_u32 s16, s16, s{so}")
            a(f"buffer_load_dwordx4 v[{D+4*i}:{D+4*i+3}], v{vo}, s[{srd}:{srd+3}], s16 offen {ldflags}")
        elif fakebal and t == '1' and i >= 6:
            a(f"buffer_load_dwordx4 v[{D+4*i}:{D+4*i+3}], v{vo}, s[{srd}:{srd+3}], s{so} offen offset:0")
        else:
            if i > 0:
                rowof = lambda j: 16 * (j >> 1) + 2 * (j & 1)
                a(f"s_add_u32 s{so}, s{so}, {(rowof(i) - rowof(i-1)) * stride}")
            a(f"buffer_load_dwordx4 v[{D+4*i}:{D+4*i+3}], v{vo}, s[{srd}:{srd+3}], s{so} offen {'' if (fakebal and t == '1' and i == 5) else ldflags}")
    DUP, A0, A1, AC0, AC1, X = 20, 36, 40, 52, 56, 60
    def buildA(i, h):
        Ar = (A0, A1)[h]
        src = DUP + 4 * (i >> 1) + 2 * (i & 1) + h
        for r in range(4): a(f"v_and_b32 v{Ar+r}, v{src}, v{vM+r}")
    def mm(D, i, first, last):
        for h, (Ar, AC) in enumerate(((A0, AC0), (A1, AC1))):
            c = "0" if first else f"v[{AC}:{AC+3}]"
            a(f"v_mfma_f32_16x16x32_bf16 v[{AC}:{AC+3}], v[{Ar}:{Ar+3}], v[{D+4*i}:{D+4*i+3}], {c}")
            if not last: buildA(i + 1, h)
    AT = [36, 40, 44, 48]
    def buildT(j, rs=range(4)):
        for r in rs: a(f"v_and_b32 v{AT[j]+r}, v{DUP+j}, v{vM+r}")
    def mmT(D, i, first):
        AC = (AC0, AC1)[i & 1]
        c = "0" if first else f"v[{AC}:{AC+3}]"
        a(f"v_mfma_f32_16x16x32_bf16 v[{AC}:{AC+3}], v[{AT[i>>1]}:{AT[i>>1]+3}], v[{D+4*i}:{D+4*i+3}], {c}")
        j = (i >> 1) + 1
        if j < 4: buildT(j, (0, 1) if i % 2 == 0 else (2, 3))
    def dupreads(vaddr, base, n=4):
        return "\n".join(f"ds_read_b128 v[{DUP+4*t}:{DUP+4*t+3}], v{vaddr} offset:{base+64*t}" for t in range(n))
    def combine():
        for r in range(4): a(f"v_cndmask_b32 v{X+r}, v{AC0+r}, v{AC1+r}, s[18:19]")
        for r in range(4): a(f"v_add_f32_dpp v{X+r}, v{X+r}, v{X+r} row_ror:8 row_mask:0xf bank_mask:0xf")
    a("s_waitcnt lgkmcnt(0)\ns_mov_b64 s[32:33], s[78:79]")
    if not pre2: a("s_barrier")
    if fakebal:
        a("s_cmp_lg_u32 s9, 0\ns_cselect_b32 s44, s44, s36\ns_cselect_b32 s45, s45, s37\ns_cselect_b32 s52, s52, s40\ns_cselect_b32 s53, s53, s41\ns_cselect_b32 s46, s46, 0x2000000\ns_cselect_b32 s54, s54, 0x2000000")
    if stamps: a(f"v_writelane_b32 v{vStamp}, s96, 0")
    stamp(1)
    st = dict(landed=0, setup=False)
    def setup():
        if st['setup']: return
        st['setup'] = True
        a("s_load_dword s11, s[56:57], 0")
        if kvc == 8:
            a("s_lshl_b32 s88, s5, 10\ns_mov_b32 s92, 0x8000")
            for k in range(1, 4): a(f"s_add_u32 s{88+k}, s{87+k}, 0x2000\ns_and_b32 s{88+k}, s{88+k}, 0x7c00")
        a("s_mov_b64 s[36:37], s[74:75]\ns_mov_b64 s[40:41], s[76:77]\ns_mov_b64 s[44:45], s[84:85]\ns_mov_b64 s[48:49], s[80:81]")
        a(f"""v_and_b32 v25, 1, v1
v_bfe_u32 v26, v1, 1, 2
v_mov_b32 v27, 0xffff
v_lshlrev_b32 v25, 4, v25
v_lshlrev_b32 v27, v25, v27""")
        for r in range(4):
            a(f"v_cmp_eq_u32 vcc, {r}, v26\nv_cndmask_b32 v{vM+r}, 0, v27, vcc")
        a(f"""v_lshlrev_b32 v25, 4, v20
v_lshl_add_u32 v{vLdsO}, v21, 8, v25
v_lshl_add_u32 v{vLdsX}, v21, 10, v25
s_lshl_b32 s14, s3, 8
v_add_u32 v{vLdsX}, s14, v{vLdsX}
v_lshrrev_b32 v25, 1, v20
v_and_b32 v26, 1, v20
v_lshlrev_b32 v27, 5, v22
v_lshl_add_u32 v27, v26, 4, v27
v_lshl_add_u32 v{vPart}, v25, 8, v27
s_lshl_b32 s14, s3, 9
v_add_u32 v{vPart}, s14, v{vPart}
s_mov_b32 s18, 0xff00ff00
s_mov_b32 s19, 0xff00ff00""")
        if WE:
            a(f"s_getreg_b32 s14, hwreg(HW_REG_XCC_ID, 0, 4)\ns_cmp_ge_u32 s14, {late}\ns_cselect_b64 vcc, -1, 0")
        if tall:
            a(f"""s_lshl_b32 s14, s3, 6
v_add_u32 v{vLdsO}, s14, v{vLdsO}
v_lshlrev_b32 v{vFin}, 4, v1
s_lshl_b32 s14, s3, 11
v_add_u32 v16, s14, v{vFin}
s_and_b32 s14, s3, 1
s_lshl_b32 s14, s14, 10
s_lshr_b32 s15, s3, 1
s_lshl_b32 s15, s15, 9
s_add_u32 s14, s14, s15
v_add_u32 v{vFin}, s14, v{vFin}
v_and_b32 v27, 15, v1
v_lshlrev_b32 v27, 5, v27
v_lshl_add_u32 v{vFP}, v26, 4, v27
s_lshl_b32 s14, s7, 10
s_and_b32 s15, s3, 1
s_lshl_b32 s15, s15, 9
s_add_u32 s14, s14, s15
s_lshr_b32 s15, s3, 1
s_lshl_b32 s15, s15, 12
s_add_u32 s14, s14, s15""")
        else:
            a(f"""v_lshl_add_u32 v{vFP}, v25, 12, v27
s_lshl_b32 s14, s7, 10
s_lshl_b32 s15, s3, 8
s_add_u32 s14, s14, s15""")
        a(f"s_lshl_b32 s15, s6, 13\ns_add_u32 s14, s14, s15\ns_add_u32 s68, s14, {WS_FP}")
    def process(t, i):
        if sonly:
            if i == 7: stamp({'q': 2, 'k': 3, 'v': 4, '1': 5}[t])
            return
        if t in 'q1':
            if i == 0:
                poll_lds(F_X if t == 'q' else F_Y, 2, 60, 1 if t == 'q' else 2, dupreads(vLdsX, L_X if t == 'q' else L_Y))
                buildA(0, 0); buildA(0, 1)
            mm(info[t][4], i, i == 0, i == 7)
            if i == 7:
                combine()
                a("s_mov_b32 exec_lo, 0x00ff00ff\ns_mov_b32 exec_hi, 0x00ff00ff")
                a(f"ds_write_b128 v{vPart}, v[{X}:{X+3}] offset:{L_QPART if t == 'q' else L_HPART}")
                signal(F_Q if t == 'q' else F_H)
                stamp(2 if t == 'q' else 5)
        elif t == 'k' and qwait >= 2 and i == qwait - 2:
            signal(F_K2)
        elif t in 'kv' and i == 7:
            signal(F_K if t == 'k' else F_V)
            stamp(3 if t == 'k' else 4)
    gates = {}
    if g1 is not None and not sonly: gates[g1] = (F_QG, 4, '', 21)
    if g2 is not None and not sonly: gates[g2] = (F_OG, 4, 'q1kv', 22)
    if g3 is not None and not sonly: gates[g3] = (F_OP, 4, 'q1kv', 24)
    N = len(seq)
    pend = list(range(N))
    def ready(m, n):
        t, i = seq[m]
        if t in '2o': return False
        if t == 'q' and st['landed'] < qstart: return False
        if t == '1' and n < p1start: return False
        return True
    assert all(endpos['q'] <= n - 8 for n, (t, i) in enumerate(seq) if t == 'o')
    for n, (t, i) in enumerate(seq):
        want = n - W[n] + 1
        if n in gates:
            flag, cnt, need, code = gates[n]
            for m in [m for m in pend if seq[m][0] in need and m < n]:
                if m >= st['landed'] and not (seq[m][0] in 'kv' and seq[m][1] < 7):
                    a(f"s_waitcnt vmcnt({n - 1 - m})"); st['landed'] = m + 1
                process(*seq[m]); pend.remove(m)
            poll_lds(flag, cnt, 60, code, sleep=1)
        if want > st['landed']:
            setup()
            a(f"s_waitcnt vmcnt({n - want})"); st['landed'] = want
        if not sonly and ((gs is not None and n >= gs) or (gq is not None and gq[0] <= n < gq[1])):
            fl = F_OG if (gs is not None and n >= gs) else F_QG
            for m in [m for m in pend if seq[m][0] in 'q1kv' and m < n - wl + 1 and (seq[m][0] in 'kv' or fl == F_OG)]:
                pass
            Lk = newlab("SG")
            a(f"ds_read_b32 v60, v2 offset:{fl}\ns_waitcnt lgkmcnt(0)\nv_readfirstlane_b32 s14, v60\ns_cmp_ge_u32 s14, 4\ns_cbranch_scc1 {Lk}\ns_waitcnt vmcnt({wl - 1})\n{Lk}:")
        if WE and WE[n] < W[n] and n - WE[n] + 1 > st['landed']:
            setup()
            Lk = newlab("WK")
            a(f"s_cbranch_vccnz {Lk}\ns_waitcnt vmcnt({WE[n] - 1})\n{Lk}:")
        if t != 'q': setup()
        issue(t, i)
        if pre2 and n == pre2 - 1: a("s_barrier")
        if n == qpos and not sonly: signal(F_PQ)
        if n == opos and not sonly: signal(F_PO)
        cnt_ = 0
        for m in [m for m in pend if m < st['landed'] and ready(m, n)]:
            if seq[m][0] in 'q1':
                if cnt_ >= maxper: continue
                cnt_ += 1
            process(*seq[m]); pend.remove(m)
    setup()
    stamp(6)
    nmm = 0
    tail = [m for m in pend if seq[m][0] not in '2o'] + [m for m in pend if seq[m][0] in '2o']
    for m in tail:
        t, i = seq[m]
        if sonly:
            if m >= st['landed'] and i == 7:
                a(f"s_waitcnt vmcnt({N - 1 - m})"); st['landed'] = m + 1
            if i == 7: stamp({'q': 2, 'k': 3, 'v': 4, '1': 5, '2': 7, 'o': 8}[t])
            continue
        if t in '2o' and i == 0:
            if nmm == 0:
                nonce(); a(f"v_mov_b32 v{vT}, s12")
            poll_lds(F_HD if t == '2' else F_O, 1 if t == '2' else 4, 60, 3 if t == '2' else 4, dupreads(vLdsO, L_H if t == '2' else L_O, 1 if tall else 4))
            stamp(7 if t == '2' else 8)
            if tall: buildT(0)
            else: buildA(0, 0); buildA(0, 1)
        if m >= st['landed'] and not (t in 'kv' and i < 7):
            a(f"s_waitcnt vmcnt({N - 1 - m})"); st['landed'] = m + 1
        if t in '2o':
            if tall: mmT(info[t][4], i, nmm < 2)
            else: mm(info[t][4], i, nmm == 0, i == 7)
            nmm += 1
        else:
            process(t, i)
    stamp(9)
    if sonly: a("s_branch L_exit")
    if tall:
        a(f"ds_write_b128 v16, v[{AC0}:{AC0+3}] offset:{L_FIN}\nds_write_b128 v16, v[{AC1}:{AC1+3}] offset:{L_FIN+1024}")
        if tall == 2:
            a("s_waitcnt lgkmcnt(0)\ns_barrier")
            for w in range(4): a(f"ds_read_b128 v[{20+4*w}:{23+4*w}], v{vFin} offset:{L_FIN+2048*w}")
            a("s_waitcnt lgkmcnt(0)")
        else:
            signal(F_B3)
            poll_lds(F_B3, 4, 60, 23, "\n".join(f"ds_read_b128 v[{20+4*w}:{23+4*w}], v{vFin} offset:{L_FIN+2048*w}" for w in range(4)))
        pk("add", 20, 20, 24); pk("add", 22, 22, 26); pk("add", 28, 28, 32); pk("add", 30, 30, 34)
        pk("add", X, 20, 28); pk("add", X + 2, 22, 30)
        tag4(X, X, vT)
        a("s_mov_b32 exec_hi, 0")
    else:
        combine()
        tag4(X, X, vT)
        a("s_mov_b32 exec_lo, 0x00ff00ff\ns_mov_b32 exec_hi, 0x00ff00ff")
    a(f"buffer_store_dwordx4 v[{X}:{X+3}], v{vFP}, s[56:59], s68 offen sc1\ns_mov_b64 exec, -1")
    stamp(10)
    if fack: a("s_waitcnt vmcnt(0)")
    signal(F_FP)
    a("s_branch L_exit")

    if align: a(".p2align 12")
    a("L_C:")
    if sonly:
        if stamps: a(f"v_writelane_b32 v{vStamp}, s96, 0")
        a("s_branch L_exit")
    vT, vTb, vHi = 5, 6, 15
    vXf, vB2f, vB1 = 10, 11, 12
    a(f"""s_load_dword s11, s[56:57], 0
v_mov_b32 v{vHi}, 0xffff0000
s_cmp_eq_u32 s3, 4
s_cbranch_scc1 L_H""")
    if stamps: a(f"v_writelane_b32 v{vStamp}, s96, 0")
    F = 32
    def unpack(src, dst, n):
        for k in range(n):
            a(f"v_lshlrev_b32 v{dst+2*k}, 16, v{src+k}\nv_and_b32 v{dst+2*k+1}, v{vHi}, v{src+k}")
    def stats(F):
        pk("add", 48, F, F + 2); pk("add", 50, F + 4, F + 6); pk("add", 52, F + 8, F + 10); pk("add", 54, F + 12, F + 14)
        pk("add", 48, 48, 50); pk("add", 52, 52, 54); pk("add", 48, 48, 52)
        a("v_add_f32 v48, v48, v49")
        red64(48, 14)
        a("v_mov_b32 v60, 0x3a800000\nv_mul_f32 v48, s14, v60")
        for k in range(0, 16, 4):
            pk("add", 52, F + k, 48, mods="op_sel_hi:[1,0] neg_lo:[0,1] neg_hi:[0,1]")
            pk("add", 54, F + k + 2, 48, mods="op_sel_hi:[1,0] neg_lo:[0,1] neg_hi:[0,1]")
            if k == 0: pk("mul", 50, 52, 52); pk("mul", 62, 54, 54)
            else: pk("fma", 50, 52, 52, 50); pk("fma", 62, 54, 54, 62)
        pk("add", 50, 50, 62)
        a("v_add_f32 v49, v50, v51")
        red64(49, 14)
        a(f"""v_mul_f32 v49, s14, v60
v_cvt_pk_bf16_f32 v48, v48, v49
v_and_b32 v49, v{vHi}, v48
v_lshlrev_b32 v48, 16, v48
v_add_f32 v49, 0x3727c5ac, v49
v_cvt_pk_bf16_f32 v49, v49, v49
v_and_b32 v49, v{vHi}, v49
v_sqrt_f32 v49, v49
v_cvt_pk_bf16_f32 v49, v49, v49
v_and_b32 v49, v{vHi}, v49
v_rcp_f32 v50, v49""")
    def normalize(F, n):
        for k in range(0, n, 2):
            pk("add", F + k, F + k, 48, mods="op_sel_hi:[1,0] neg_lo:[0,1] neg_hi:[0,1]")
        for k in range(0, n, 2):
            a(f"v_cvt_pk_bf16_f32 v52, v{F+k}, v{F+k+1}")
            a(f"v_lshlrev_b32 v{F+k}, 16, v52\nv_and_b32 v{F+k+1}, v{vHi}, v52")
            pk("mul", 52, F + k, 50, mods="op_sel_hi:[1,0]")
            pk("fma", F + k, 52, 48, F + k, mods="op_sel:[0,1,0] op_sel_hi:[1,1,1] neg_lo:[1,0,0] neg_hi:[1,0,0]")
            pk("fma", F + k, F + k, 50, 52, mods="op_sel_hi:[1,0,1]")
    def roundbf(F, n):
        for k in range(0, n, 2):
            a(f"v_cvt_pk_bf16_f32 v52, v{F+k}, v{F+k+1}")
            a(f"v_lshlrev_b32 v{F+k}, 16, v52\nv_and_b32 v{F+k+1}, v{vHi}, v52")
    def tagconsts():
        nonce()
        a(f"""v_mov_b32 v{vT}, s12
v_and_b32 v{vTb}, 0xff, v{vT}
v_bfe_u32 v{vTb+1}, v{vT}, 8, 8
v_bfe_u32 v{vTb+2}, v{vT}, 16, 8
v_lshrrev_b32 v{vTb+3}, 24, v{vT}""")
    a("s_waitcnt vmcnt(1)")
    stamp(1)
    unpack(20, F, 8)
    stats(F)
    a("s_waitcnt vmcnt(0)")
    unpack(28, 56, 2)
    normalize(56, 4)
    a(f"s_lshl_b32 s14, s16, 10\nv_add_u32 v16, s14, v{vL16}")
    a("s_cmp_ge_u32 s3, 2\ns_cbranch_scc1 L_ypath")
    for k in range(4): a(f"v_cvt_pk_bf16_f32 v{60+k}, v{56+k}, v{56+k}")
    a(f"ds_write_b128 v16, v[60:63] offset:{L_X}")
    signal(F_X)
    stamp(2)
    if touch and not nt:
        a("s_cmp_eq_u32 s3, 0\ns_cbranch_scc1 L_t0")
        touches([9, 13] + ([22] if g2 is not None else []) + [4])
        a("s_branch L_lndone\nL_t0:")
        touches([19, 8, 11, 2])
    a("L_lndone:")
    a("s_waitcnt lgkmcnt(0)")
    tagconsts()
    def publish_part(lbase, flag, code, vaddr, extra, B=96):
        poll_lds(flag, 4, B + 16, code, "\n".join(f"ds_read_b128 v[{B+4*w}:{B+3+4*w}], v{vL16} offset:{lbase+512*w}" for w in range(4)))
        pk("add", B, B, B + 4); pk("add", B + 2, B + 2, B + 6); pk("add", B + 8, B + 8, B + 12); pk("add", B + 10, B + 10, B + 14)
        pk("add", B, B, B + 8); pk("add", B + 2, B + 2, B + 10)
        tag4(B, B, vT)
        a("s_mov_b32 exec_hi, 0")
        a(f"buffer_store_dwordx4 v[{B}:{B+3}], v{vaddr}, s[56:59], s30 offen sc1")
        a(extra)
        a("s_mov_b64 exec, -1")
    def poll_hints(nq, code, thr=None):
        L = newlab("HL"); D = newlab("HD"); R = newlab("HR")
        a(f"{L}:")
        if nq == 0: a("s_load_dwordx4 s[64:67], s[60:61], 0 glc")
        for q in range(nq): a(f"s_load_dwordx16 s[{64+16*q}:{79+16*q}], s[60:61], {64*q} glc")
        if thr is not None and thr < nq * 8:
            a("s_mov_b32 s14, 0\ns_waitcnt lgkmcnt(0)")
            for j in range(nq * 8): a(f"s_cmp_eq_u64 s[{64+2*j}:{65+2*j}], s[12:13]\ns_addc_u32 s14, s14, 0")
            a(f"s_cmp_ge_u32 s14, {thr}\ns_cbranch_scc1 {D}")
        else:
            a("s_waitcnt lgkmcnt(0)")
            for j in range(max(nq * 8, 2)):
                a(f"s_cmp_eq_u64 s[{64+2*j}:{65+2*j}], s[12:13]\ns_cbranch_scc0 {R}")
            a(f"s_branch {D}\n{R}:")
        if hsleep: a(f"s_sleep {hsleep}")
        spin(L, code)
        a(f"{D}:")
    def untag(G, n, vacc):
        for j in range(4 * n): a(f"v_xor_b32 v{G+j}, v{G+j}, v{vTb+(j&3)}")
        a(f"v_or3_b32 v{vacc}, v{G}, v{G+1}, v{G+2}")
        j = 3
        while j < 4 * n:
            if j + 1 < 4 * n: a(f"v_or3_b32 v{vacc}, v{vacc}, v{G+j}, v{G+j+1}"); j += 2
            else: a(f"v_or_b32 v{vacc}, v{vacc}, v{G+j}"); j += 1
        a(f"v_lshlrev_b32 v{vacc}, 24, v{vacc}")
    def retry_if(vacc, L, code):
        D = newlab("RD")
        a(f"v_cmp_ne_u32 vcc, 0, v{vacc}\ns_cbranch_vccz {D}")
        spin(L, code)
        a(f"{D}:")
    G = 16
    QRS = QR.bit_length() - 1; ORS = OR.bit_length() - 1
    vKa, vQw, vQr, vVa0, vVa1, vMl, vPw, vMw, vOd, vLs, vOh, vLg, vOw = 52, 53, 54, 55, 56, 57, 58, 59, 60, 61, 62, 63, 14
    a(f"""v_and_b32 v16, 15, v1
v_lshrrev_b32 v17, 4, v1
v_lshrrev_b32 v18, 2, v16
v_and_b32 v19, 3, v1
v_mul_u32_u24 v{vKa}, {KSTR}, v18
v_lshl_add_u32 v{vKa}, v19, 8, v{vKa}
v_xor_b32 v20, v17, v19
v_lshl_add_u32 v{vKa}, v20, 4, v{vKa}
s_mul_i32 s14, s3, {8*KSTR}
v_add_u32 v{vKa}, s14, v{vKa}
v_lshrrev_b32 v20, 5, v1
v_mul_u32_u24 v20, 288, v20
v_and_b32 v21, 31, v1
v_lshl_add_u32 v{vQw}, v21, 3, v20
s_mul_i32 s14, s3, 576
v_add_u32 v{vQw}, s14, v{vQw}
v_and_b32 v20, 7, v1
v_mul_u32_u24 v20, 288, v20
v_lshl_add_u32 v{vQr}, v17, 4, v20
v_mul_u32_u24 v20, {VSTR}, v17
v_lshl_add_u32 v20, v18, 8, v20
v_and_b32 v21, 1, v1
v_lshl_add_u32 v20, v21, 3, v20
v_add_u32 v20, {L_V}, v20
v_bfe_u32 v21, v1, 1, 1
s_lshl_b32 s14, s3, 2
v_add_u32 v21, s14, v21
v_lshlrev_b32 v22, 1, v18
v_xor_b32 v21, v21, v22
v_lshl_add_u32 v{vVa0}, v21, 4, v20
v_xor_b32 v21, 2, v21
v_lshl_add_u32 v{vVa1}, v21, 4, v20
v_lshlrev_b32 v{vMl}, 3, v16
v_and_b32 v20, 0x37, v1
v_lshlrev_b32 v13, 4, v20
v_and_b32 v21, 8, v1
{f"v_add_u32 v{vPw}, v13, v21" if half else f"v_mov_b32 v{vPw}, v{vL16}"}
{"" if half else f"v_mov_b32 v13, v{vL16}"}
s_lshl_b32 s14, s3, 10
v_add_u32 v{vPw}, s14, v{vPw}
s_lshl_b32 s14, s3, 7
v_add_u32 v{vMw}, s14, v{vMl}
v_and_b32 v20, 7, v1
v_bfe_u32 v21, v1, 3, 1
v_lshlrev_b32 v{vOd}, 14, v20
v_lshl_add_u32 v{vOd}, v21, 6, v{vOd}
v_lshl_add_u32 v{vOd}, v17, 4, v{vOd}
v_lshlrev_b32 v{vLs}, 10, v20
v_lshlrev_b32 v{vOh}, 7, v1
v_lshrrev_b32 v{vLg}, 3, v1
v_lshlrev_b32 v{vLg}, 3, v{vLg}
{f"v_lshl_add_u32 v{vOw}, v20, 2, v17" if not tpat else f"v_bfe_u32 v{vOw}, v1, 2, 1"}
{"" if not tpat else f"v_lshl_add_u32 v{vOw}, v{vOw}, 2, v17"}
{"" if not tpat else f"v_lshl_add_u32 v{vOw}, v{vOw}, 2, v19"}
v_lshlrev_b32 v{vOw}, 2, v{vOw}
v_add_u32 v{vOw}, s14, v{vOw}
s_lshl_b32 s14, s4, 5
s_add_u32 s14, s14, s3
s_lshl_b32 s28, s14, 12
s_lshl_b32 s17, s5, 7
s_add_u32 s28, s28, s17
s_add_u32 s28, s28, {WS_OP}
s_lshl_b32 s29, s14, 8
s_lshl_b32 s17, s5, 3
s_add_u32 s29, s29, s17
s_add_u32 s29, s29, {WS_LS}
s_lshl_b32 s31, s4, 2
s_add_u32 s31, s31, s3
s_lshl_b32 s31, s31, {7+ORS}
s_lshl_b32 s17, s5, 2
s_add_u32 s31, s31, s17
s_add_u32 s31, s31, {WS_OH}
s_mov_b32 s18, 0xff00ff00
s_mov_b32 s19, 0xff00ff00
v_mov_b32 v48, 0x3db504f3
v_mov_b32 v50, 0x3fb8aa3b""")
    a("s_call_b64 s[94:95], L_oaddr")
    poll_lds(F_PQ if qpos else F_K2 if qwait >= 2 else F_K if qwait else F_Q, 4, 32, 19, sleep=2)
    Lq = newlab("GQ")
    if qdir == 2:
        a(f"s_branch {Lq}\nL_qslow:")
    if qdir != 1: poll_hints(1, 6)
    stamp(4)
    a(f"{Lq}:")
    for i in range(4): a(f"buffer_load_dwordx4 v[{G+4*i}:{G+4*i+3}], v{vL16}, s[56:59], s62 offen offset:{1024*i} sc1")
    if g1 is not None or gq is not None: signal(F_QG)
    KF, VF, QF = 64, 96, 128
    poll_lds(F_K, 4, 32, 7, "\n".join(f"ds_read_b128 v[{KF+16*t+4*s}:{KF+16*t+4*s+3}], v{vKa} offset:{L_K+4*KSTR*t+64*s}" for t in range(2) for s in range(4)))
    vreads = []
    for w in range(4):
        for t, va in ((0, vVa0), (1, vVa1)):
            for T in range(2):
                r = VF + 8 * w + 4 * t + 2 * T
                vreads.append(f"ds_read_b64_tr_b16 v[{r}:{r+1}], v{va} offset:{(8*w+4*T)*VSTR}")
    a("s_waitcnt vmcnt(0)")
    if vpre: a(f"ds_read_b32 v33, v2 offset:{F_V}")
    for j in range(16): a(f"v_xor_b32 v{G+j}, v{G+j}, v{vTb+(j&3)}")
    pk("add", 36, G, G + 4); pk("add", 38, G + 2, G + 6); pk("add", 40, G + 8, G + 12); pk("add", 42, G + 10, G + 14)
    pk("add", 36, 36, 40); pk("add", 38, 38, 42)
    a(f"v_cvt_pk_bf16_f32 v36, v36, v37\nv_cvt_pk_bf16_f32 v37, v38, v39")
    a(f"ds_write_b64 v{vQw}, v[36:37] offset:{L_QBUF}")
    a(f"v_or3_b32 v32, v{G}, v{G+1}, v{G+2}\nv_or3_b32 v34, v{G+3}, v{G+4}, v{G+5}")
    for j in range(6, 14, 4): a(f"v_or3_b32 v32, v32, v{G+j}, v{G+j+1}\nv_or3_b32 v34, v34, v{G+j+2}, v{G+j+3}")
    a(f"v_or3_b32 v32, v32, v{G+14}, v{G+15}\nv_or_b32 v32, v32, v34\nv_lshlrev_b32 v32, 24, v32")
    retry_if(32, 'L_qslow' if qdir == 2 else Lq, 8)
    signal(F_B1)
    stamp(5)
    poll_lds(F_B1, 4, 32, 9, "\n".join(f"ds_read_b128 v[{QF+4*s}:{QF+4*s+3}], v{vQr} offset:{L_QBUF+64*s}" for s in range(4)))
    S = 40
    for s in range(4):
        for t in range(2):
            c = "0" if s == 0 else f"v[{S+4*t}:{S+4*t+3}]"
            a(f"v_mfma_f32_16x16x32_bf16 v[{S+4*t}:{S+4*t+3}], v[{KF+16*t+4*s}:{KF+16*t+4*s+3}], v[{QF+4*s}:{QF+4*s+3}], {c}")
    if vpre:
        a("v_readfirstlane_b32 s35, v33\ns_cmp_lt_u32 s35, 4\ns_cbranch_scc1 L_vlater")
        a("\n".join(vreads))
        a("L_vlater:\ns_nop 7")
    def xlane(v, tmp, op, fill=((), ())):
        for n_, sw in enumerate(("v_permlane16_swap_b32", "v_permlane32_swap_b32")):
            a(f"v_mov_b32 v{tmp}, v{v}")
            for f in fill[n_]: f()
            a(f"{sw} v{v}, v{tmp}\n{op} v{v}, v{v}, v{tmp}")
    if half:
        for k in range(4): a(f"v_cndmask_b32 v{S+k}, v{S+k}, v{S+4+k}, s[18:19]")
        nv_ = 4
    else: nv_ = 8
    for k in range(0, nv_, 2): a(f"v_cvt_pk_bf16_f32 v{32+k//2}, v{S+k}, v{S+k+1}")
    for k in range(0, nv_, 2): a(f"v_lshlrev_b32 v{S+k}, 16, v{32+k//2}\nv_and_b32 v{S+k+1}, v{vHi}, v{32+k//2}")
    for k in range(0, nv_, 2): pk("mul", S + k, S + k, 48, mods="op_sel_hi:[1,0]")
    for k in range(0, nv_, 2): a(f"v_cvt_pk_bf16_f32 v{32+k//2}, v{S+k}, v{S+k+1}")
    for k in range(0, nv_, 2): a(f"v_lshlrev_b32 v{S+k}, 16, v{32+k//2}\nv_and_b32 v{S+k+1}, v{vHi}, v{32+k//2}")
    l2 = lambda k: (lambda: pk("mul", S + k, S + k, 50, mods="op_sel_hi:[1,0]"))
    if half:
        a(f"v_max3_f32 v32, v{S}, v{S+1}, v{S+2}\nv_max_f32 v32, v32, v{S+3}")
        l2(0)(); l2(2)()
        a("v_max_f32_dpp v32, v32, v32 row_ror:8 row_mask:0xf bank_mask:0xf")
        xlane(32, 33, "v_max_f32")
    else:
        a(f"v_max3_f32 v32, v{S}, v{S+1}, v{S+2}\nv_max3_f32 v33, v{S+3}, v{S+4}, v{S+5}\nv_max3_f32 v32, v32, v{S+6}, v{S+7}\nv_max_f32 v32, v32, v33")
        xlane(32, 33, "v_max_f32", ((l2(0), l2(2)), (l2(4), l2(6))))
    a("v_mul_f32 v32, v50, v32")
    for k in range(0, nv_, 2): pk("add", S + k, S + k, 32, mods="op_sel_hi:[1,0] neg_lo:[0,1] neg_hi:[0,1]")
    for k in range(nv_): a(f"v_exp_f32 v{S+k}, v{S+k}")
    pk("add", 34, S, S + 2)
    if half:
        a(f"v_cvt_pk_bf16_f32 v36, v{S}, v{S+1}\nv_add_f32 v33, v34, v35\nv_cvt_pk_bf16_f32 v37, v{S+2}, v{S+3}")
        a(f"ds_write_b64 v{vPw}, v[36:37] offset:{L_P}")
        a("v_add_f32_dpp v33, v33, v33 row_ror:8 row_mask:0xf bank_mask:0xf")
    else:
        for k in range(0, 4, 2): a(f"v_cvt_pk_bf16_f32 v{36+k//2}, v{S+k}, v{S+k+1}")
        pk("add", 34, 34, S + 4)
        for k in range(4, 8, 2): a(f"v_cvt_pk_bf16_f32 v{36+k//2}, v{S+k}, v{S+k+1}")
        pk("add", 34, 34, S + 6)
        a(f"ds_write_b128 v{vPw}, v[36:39] offset:{L_P}")
        a(f"v_add_f32 v33, v34, v35")
    xlane(33, 35, "v_add_f32")
    a(f"ds_write_b64 v{vMw}, v[32:33] offset:{L_ML}")
    signal(F_B2)
    stamp(6)
    if vpre: a("s_cmp_ge_u32 s35, 4\ns_cbranch_scc1 L_vdone")
    poll_lds(F_V, 4, 32, 10)
    a("\n".join(vreads))
    if vpre: a("L_vdone:")
    PW = 16; ML = 32; AC = 128
    poll_lds(F_B2, 4, 40, 11, "\n".join([f"ds_read_b128 v[{PW+4*w}:{PW+4*w+3}], v13 offset:{L_P+1024*w}" for w in range(4)] +
                                       [f"ds_read_b64 v[{ML+2*w}:{ML+2*w+1}], v{vMl} offset:{L_ML+128*w}" for w in range(4)]))
    stamp(7)
    fill = [f"v_max3_f32 v41, v{ML}, v{ML+2}, v{ML+4}\nv_max_f32 v41, v41, v{ML+6}",
            f"v_sub_f32 v40, v{ML}, v41\nv_sub_f32 v42, v{ML+2}, v41",
            f"v_sub_f32 v44, v{ML+4}, v41\nv_sub_f32 v46, v{ML+6}, v41",
            "v_exp_f32 v40, v40", "v_exp_f32 v42, v42", "v_exp_f32 v44, v44", "v_exp_f32 v46, v46",
            f"v_mul_f32 v43, v40, v{ML+1}\nv_fmac_f32 v43, v42, v{ML+3}"]
    for w in range(4):
        for t in range(2):
            r = AC + 8 * w + 4 * t
            a(f"v_mfma_f32_16x16x32_bf16 v[{r}:{r+3}], v[{VF+8*w+4*t}:{VF+8*w+4*t+3}], v[{PW+4*w}:{PW+4*w+3}], 0")
            a(fill[2 * w + t])
    a(f"v_fmac_f32 v43, v44, v{ML+5}\nv_fmac_f32 v43, v46, v{ML+7}")
    for k in range(4): a(f"v_cndmask_b32 v{AC+k}, v{AC+k}, v{AC+4+k}, s[18:19]")
    a("v_rcp_f32 v48, v43\nv_log_f32 v43, v43")
    for w in range(1, 4):
        for k in range(4): a(f"v_cndmask_b32 v{AC+8*w+k}, v{AC+8*w+k}, v{AC+8*w+4+k}, s[18:19]")
    for k in (0, 2): pk("mul", 16 + k, AC + k, 40, mods="op_sel_hi:[1,0]")
    for w in range(1, 4):
        for k in (0, 2): pk("fma", 16 + k, AC + 8 * w + k, 40 + 2 * w, 16 + k, mods="op_sel_hi:[1,0,1]")
    for k in (0, 2): pk("mul", 16 + k, 16 + k, 48, mods="op_sel_hi:[1,0]")
    tag4(16, 16, vT)
    a(f"""buffer_store_dwordx4 v[16:19], v{vOd}, s[56:59], s28 offen sc1
v_add_f32 v46, v41, v43
v_mov_b32 v47, v{vT}
s_mov_b64 exec, 0xff
{HST2} v[46:47], v{vLs}, s[56:59], s29 offen sc1
s_mov_b32 exec_lo, {hex((1<<OR)-1)}
{HST} v{vT}, v{vOh}, s[56:59], s31 offen sc1
s_mov_b64 exec, -1
s_mov_b32 s60, s36
s_mov_b32 s61, s37""")
    if g3 is not None: signal(F_OP)
    stamp(8)
    if oack: a("s_waitcnt vmcnt(0)")
    if opos: poll_lds(F_PO, 4, 32, 25, sleep=2)
    if othr: poll_hints(2, 13, othr)
    elif touch: a("s_branch L_no13\nT_13:\ns_setpc_b64 s[94:95]\nL_no13:")
    stamp(9)
    Lo = newlab("GO")
    a("s_mov_b64 vcc, -1")
    a(f"{Lo}:")
    for i in range(4): a(f"buffer_load_dwordx2 v[{32+2*i}:{33+2*i}], v{vLg}, s[56:59], s39 offen offset:{64*i} sc1")
    a("s_mov_b64 exec, vcc")
    for i in range(4): a(f"buffer_load_dwordx4 v[{G+4*i}:{G+4*i+3}], v{vL16}, s[56:59], s38 offen offset:{1024*i} sc1")
    if (g2 is not None or gs is not None) and not ogs: signal(F_OG)
    else: a("s_mov_b64 exec, -1")
    a("s_waitcnt vmcnt(4)")
    a("v_max3_f32 v40, v32, v34, v36\nv_max_f32 v40, v40, v38")
    a(f"v_xor_b32 v41, v33, v{vT}\nv_bitop3_b32 v41, v41, v35, v{vT} bitop3:0xf6")
    a("v_max_f32_dpp v40, v40, v40 row_ror:8 row_mask:0xf bank_mask:0xf")
    xlane(40, 42, "v_max_f32", ((lambda: a(f"v_bitop3_b32 v41, v41, v37, v{vT} bitop3:0xf6\nv_bitop3_b32 v41, v41, v39, v{vT} bitop3:0xf6"),), ()))
    for i in range(4): a(f"v_sub_f32 v{32+2*i}, v{32+2*i}, v40")
    for i in range(4): a(f"v_exp_f32 v{32+2*i}, v{32+2*i}")
    a("s_waitcnt vmcnt(0)")
    xs = [f"v_xor_b32 v{G+j}, v{G+j}, v{vTb+(j&3)}" for j in range(16)]
    a("v_add_f32 v43, v32, v34\nv_add_f32 v42, v36, v38\nv_add_f32 v43, v43, v42")
    a("\n".join(xs[0:2])); a("v_add_f32_dpp v43, v43, v43 row_ror:8 row_mask:0xf bank_mask:0xf")
    xlane(43, 42, "v_add_f32", ((lambda: a("\n".join(xs[2:6])),), (lambda: a("\n".join(xs[6:10])),)))
    a("v_rcp_f32 v43, v43"); a("\n".join(xs[10:16]))
    for k in (0, 2): pk("mul", 44 + k, G + k, 32, mods="op_sel_hi:[1,0]")
    for i in range(1, 4):
        for k in (0, 2): pk("fma", 44 + k, G + 4 * i + k, 32 + 2 * i, 44 + k, mods="op_sel_hi:[1,0,1]")
    ors = [f"v_or3_b32 v42, v{G}, v{G+1}, v{G+2}"] + [f"v_or3_b32 v42, v42, v{G+j}, v{G+j+1}" for j in range(3, 15, 2)] + [f"v_or_b32 v42, v42, v{G+15}", "v_lshl_or_b32 v42, v42, 24, v41"]
    def rscatter(v, fill=((), (), ())):
        for f in fill[0]: a(f)
        a(f"v_permlane32_swap_b32 v{v}, v{v+2}\nv_permlane32_swap_b32 v{v+1}, v{v+3}")
        a(f"v_add_f32 v{v}, v{v}, v{v+2}\nv_add_f32 v{v+1}, v{v+1}, v{v+3}")
        for f in fill[1]: a(f)
        a(f"v_permlane16_swap_b32 v{v}, v{v+1}\nv_add_f32 v{v}, v{v}, v{v+1}")
        for f in fill[2]: a(f)
    rscatter(44, (ors[0:2], ors[2:4], ors[4:6]))
    a("v_add_f32_dpp v44, v44, v44 row_ror:8 row_mask:0xf bank_mask:0xf")
    a("\n".join(ors[6:]))
    a("v_mul_f32 v44, v44, v43\nv_cvt_pk_bf16_f32 v44, v44, v44")
    a("v_cmp_ne_u32 vcc, 0, v42\ns_cbranch_vccnz L_oretry")
    a(f"ds_write_b32 v{vOw}, v44 offset:{L_O}")
    signal(F_O)
    if g2 is not None and ogs: signal(F_OG)
    stamp(11)
    a("s_branch L_exit")
    if align >= 2: a(".p2align 12")
    if touch: a("T_y:\ns_setpc_b64 s[94:95]")
    a("L_ypath:")
    roundbf(56, 4)
    normalize(F, 16)
    roundbf(F, 16)
    stats(F)
    normalize(56, 4)
    for k in range(4): a(f"v_cvt_pk_bf16_f32 v{60+k}, v{56+k}, v{56+k}")
    a(f"ds_write_b128 v16, v[60:63] offset:{L_Y}")
    signal(F_Y)
    stamp(3)
    a("s_branch L_lndone")

    a("L_oretry:")
    a("\n".join(xs))
    spin(Lo, 14)
    a("L_oaddr:")
    a(f"""s_and_b32 s14, s4, 3
s_lshl_b32 s14, s14, 2
s_add_u32 s14, s14, s3
s_lshl_b32 s14, s14, {6+QRS}
s_lshr_b32 s15, s4, 2
s_lshl_b32 s15, s15, 5
s_add_u32 s15, s15, s5
s_lshr_b32 s15, s15, {6-QRS}
s_lshl_b32 s15, s15, 6
s_add_u32 s14, s14, s15
s_add_u32 s14, s14, {WS_QH}
s_add_u32 s60, s56, s14
s_addc_u32 s61, s57, 0
s_and_b32 s14, s4, 3
s_lshl_b32 s14, s14, 1
s_lshr_b32 s15, s4, 2
s_add_u32 s14, s14, s15
s_lshl_b32 s14, s14, 14
s_lshl_b32 s15, s3, 12
s_add_u32 s14, s14, s15
s_add_u32 s62, s14, {WS_QP}""")
    a(f"""s_lshr_b32 s14, s3, 1
s_and_b32 s15, s6, 1
s_lshl_b32 s15, s15, 1
s_and_b32 s16, s3, 1
s_add_u32 s15, s15, s16
s_lshl_b32 s16, s14, 2
s_lshr_b32 s17, s6, 4
s_add_u32 s16, s16, s17
s_lshl_b32 s16, s16, 2
s_add_u32 s16, s16, s15
s_lshl_b32 s16, s16, {ORS}
s_bfe_u32 s17, s6, 0x30001
s_lshl_b32 s17, s17, 2
s_add_u32 s17, s17, s7
s_lshr_b32 s17, s17, {5-ORS}
s_add_u32 s16, s16, s17
s_lshl_b32 s16, s16, 7
s_add_u32 s16, s16, {WS_OH}
s_add_u32 s36, s56, s16
s_addc_u32 s37, s57, 0
s_lshl_b32 s16, s14, 5
s_lshr_b32 s17, s6, 1
s_add_u32 s16, s16, s17
s_lshl_b32 s16, s16, 2
s_add_u32 s16, s16, s15
s_lshl_b32 s38, s16, 12
s_add_u32 s38, s38, {WS_OP}
s_lshl_b32 s39, s16, 8
s_add_u32 s39, s39, {WS_LS}""")
    a("s_setpc_b64 s[94:95]")
    a("L_H:")
    if touch and not nt: touches(['y'])
    a("""s_mov_b64 s[36:37], s[86:87]
s_load_dwordx2 s[40:41], s[0:1], 72
s_load_dwordx2 s[44:45], s[0:1], 80""")
    if stamps: a(f"v_writelane_b32 v{vStamp}, s96, 0")
    a(f"""s_mov_b32 s38, 7168
s_mov_b32 s39, 0x20000
s_mov_b32 s42, 2048
s_mov_b32 s43, 0x20000
s_mov_b32 s46, 4096
s_mov_b32 s47, 0x20000
v_and_b32 v16, 1, v1
v_lshrrev_b32 v17, 4, v1
v_lshl_add_u32 v16, v16, 2, v17
v_lshlrev_b32 v14, 1, v16
s_lshl_b32 s34, s4, 5
s_add_u32 s34, s34, s5
s_lshl_b32 s33, s34, 4
s_and_b32 s15, s33, 2047
v_and_b32 v16, 15, v1
v_lshlrev_b32 v16, 3, v16
s_lshl_b32 s17, s8, 7
s_waitcnt lgkmcnt(0)
buffer_load_ushort v{vXf}, v14, s[24:27], s33 offen
buffer_load_ushort v{vB2f}, v14, s[40:43], s15 offen
buffer_load_dwordx2 v[{vB1}:{vB1+1}], v16, s[36:39], s17 offen""")
    tagconsts()
    a(f"""v_lshrrev_b32 v80, 4, v1
v_and_b32 v81, 15, v1
v_lshlrev_b32 v81, 4, v81
v_lshl_add_u32 v80, v80, 14, v81
v_lshlrev_b32 v81, 6, v1
s_lshr_b32 s14, s6, 4
s_lshl_b32 s14, s14, 15
s_bfe_u32 s15, s6, 0x20002
s_lshl_b32 s15, s15, 12
s_add_u32 s14, s14, s15
s_lshl_b32 s15, s7, 10
s_add_u32 s14, s14, s15
s_and_b32 s15, s6, 3
s_lshl_b32 s15, s15, 8
s_add_u32 s14, s14, s15
s_add_u32 s30, s14, {WS_QP}
s_lshr_b32 s15, s6, 2
s_lshl_b32 s15, s15, {6+QRS}
s_and_b32 s17, s6, 3
s_lshl_b32 s17, s17, 2
s_add_u32 s17, s17, s7
s_lshl_b32 s17, s17, 2
s_add_u32 s15, s15, s17
s_add_u32 s31, s15, {WS_QH}""")
    if qdir == 1: publish_part(L_QPART, F_Q, 5, 80, "s_nop 0")
    else: publish_part(L_QPART, F_Q, 5, 80, ("s_mov_b64 exec, -1" if QR == 64 else f"s_mov_b32 exec_lo, {hex((1<<QR)-1)}") + f"\n{HST} v{vT}, v81, s[56:59], s31 offen sc1")
    stamp(3)
    if touch and not nt: touches([12, 16, 18])
    if tpat: a("v_bfe_u32 v48, v1, 2, 3\nv_lshlrev_b32 v48, 6, v48\nv_and_b32 v49, 3, v1\nv_lshl_add_u32 v48, v49, 2, v48")
    else: a("v_and_b32 v48, 31, v1\nv_lshlrev_b32 v48, 4, v48")
    a(f"""s_nop 0
s_lshl_b32 s52, s34, 5
s_add_u32 s52, s52, {WS_FP}
s_add_u32 s53, s52, {32*8192}
v_lshrrev_b32 v50, 1, v1
v_lshlrev_b32 v50, 13, v50
v_and_b32 v51, 1, v1
v_lshl_add_u32 v50, v51, 4, v50
s_waitcnt vmcnt(2)
v_lshlrev_b32 v{vXf}, 16, v{vXf}
v_lshlrev_b32 v{vB2f}, 16, v{vB2f}
v_add_f32 v{vXf}, v{vXf}, v{vB2f}
v_mov_b32 v44, 0
v_mov_b32 v45, 0
v_mov_b32 v46, 0
v_mov_b32 v47, 0
s_cmp_eq_u32 s9, 0
s_cbranch_scc1 L_hwrite
s_lshl_b32 s62, s8, 11
s_add_u32 s62, s62, {WS_HP}
s_lshl_b32 s15, s7, 9
s_add_u32 s30, s62, s15""")
    unpack(vB1, 76, 2)
    if hloc:
        a(f"s_add_u32 s31, s30, {WS_HL - WS_HP}\ns_add_u32 s63, s62, {WS_HL - WS_HP}\ns_add_u32 s60, s56, s63\ns_addc_u32 s61, s57, 0\ns_and_b32 s28, s12, 0xff\ns_mov_b32 s17, 0")
        publish_part(L_HPART, F_H, 12, vL16, f"buffer_store_dwordx4 v[96:99], v{vL16}, s[56:59], s31 offen")
        stamp(4)
        L1 = newlab("HA"); L2 = newlab("HB")
        a(f"{L1}:")
        for k in range(4): a(f"s_load_dword s{64+k}, s[60:61], {512*k} glc")
        a(f"s_add_u32 s17, s17, 1\ns_cmp_ge_u32 s17, {hloc}\ns_cbranch_scc1 {L2}\ns_waitcnt lgkmcnt(0)")
        a("s_xor_b32 s64, s64, s28\ns_xor_b32 s65, s65, s28\ns_xor_b32 s66, s66, s28\ns_xor_b32 s67, s67, s28\ns_or_b32 s64, s64, s65\ns_or_b32 s66, s66, s67\ns_or_b32 s64, s64, s66\ns_and_b32 s64, s64, 0xff")
        a(f"s_cbranch_scc1 {L1}")
        for i in range(2): a(f"buffer_load_dwordx4 v[{G+4*i}:{G+4*i+3}], v{vL16}, s[56:59], s63 offen offset:{1024*i} sc1")
        stamp(5)
        a("s_waitcnt vmcnt(0)")
        untag(G, 2, 42)
        a(f"v_cmp_ne_u32 vcc, 0, v42\ns_cbranch_vccz L_hok\ns_branch {L1}\n{L2}:\ns_waitcnt lgkmcnt(0)")
    else:
        a(f"s_lshl_b32 s14, s8, 7\ns_add_u32 s14, s14, {WS_HH}\ns_add_u32 s60, s56, s14\ns_addc_u32 s61, s57, 0\ns_lshl_b32 s17, s7, 2\ns_add_u32 s31, s14, s17")
        publish_part(L_HPART, F_H, 12, vL16, f"s_mov_b32 exec_lo, 1\n{HST} v{vT}, v2, s[56:59], s31 offen sc1")
        stamp(4)
        poll_hints(0, 15)
        stamp(5)
    Lh = newlab("GH")
    a(f"{Lh}:")
    for i in range(2): a(f"buffer_load_dwordx4 v[{G+4*i}:{G+4*i+3}], v{vL16}, s[56:59], s62 offen offset:{1024*i} sc1")
    a("s_waitcnt vmcnt(0)")
    untag(G, 2, 42)
    retry_if(42, Lh, 16)
    a("L_hok:")
    stamp(6)
    pk("add", G, G, G + 4); pk("add", G + 2, G + 2, G + 6)
    for k in range(4): a(f"v_mov_b32 v{G+4+k}, v{G+k}")
    for k in range(4): a(f"v_permlane32_swap_b32 v{G+k}, v{G+4+k}")
    pk("add", G, G, G + 4); pk("add", G + 2, G + 2, G + 6)
    roundbf(G, 4)
    pk("add", G, G, 76); pk("add", G + 2, G + 2, 78)
    roundbf(G, 4)
    a("s_mov_b32 s14, 0x3d372713\ns_mov_b32 s15, 0xc0135761")
    for k in (0, 2): pk("mul", 24 + k, G + k, G + k)
    for k in (0, 2): pk("mul", 24 + k, 24 + k, G + k)
    for k in range(4): a(f"v_fma_f32 v{24+k}, s14, v{24+k}, v{G+k}")
    for k in range(4): a(f"v_mul_f32 v{24+k}, s15, v{24+k}")
    for k in range(4): a(f"v_exp_f32 v{24+k}, v{24+k}")
    for k in range(4): a(f"v_add_f32 v{24+k}, 1.0, v{24+k}")
    for k in range(4): a(f"v_rcp_f32 v{24+k}, v{24+k}")
    for k in (0, 2): pk("mul", 24 + k, 24 + k, G + k)
    for k in range(4): a(f"v_cvt_pk_bf16_f32 v{44+k}, v{24+k}, v{24+k}")
    a("L_hwrite:")
    if tpat:
        for k in range(4): a(f"ds_write_b32 v48, v{44+k} offset:{L_H+16*k}")
    else: a(f"ds_write_b128 v48, v[44:47] offset:{L_H}")
    signal(F_HD)
    stamp(12)
    if tall == 2: a("s_waitcnt lgkmcnt(0)\ns_barrier")
    poll_lds(F_FP, 4, 32, 18, sleep=0 if tall == 2 else 1)
    stamp(7)
    if fdelay: a(f"s_sleep {fdelay}")
    Lf = newlab("GF"); Ld = newlab("GD")
    sets = [64 + 8 * k for k in range(fsets)]
    def fissue(R):
        for i in range(2): a(f"buffer_load_dwordx4 v[{R+4*i}:{R+4*i+3}], v50, s[56:59], s{52+i} offen sc1")
    for R in sets[:-1]: fissue(R)
    a(f"{Lf}:")
    if fastfin:
        for k, R in enumerate(sets):
            fissue(sets[k - 1])
            a(f"s_waitcnt vmcnt({2*(fsets-1)})")
            for j in range(8): a(f"v_xor_b32 v{R+j}, v{R+j}, v{vTb+(j&3)}")
            pk("add", 44, R, R + 4); pk("add", 46, R + 2, R + 6)
            rscatter(44, ((f"v_or3_b32 v42, v{R}, v{R+1}, v{R+2}", f"v_or3_b32 v42, v42, v{R+3}, v{R+4}"),
                          (f"v_or3_b32 v42, v42, v{R+5}, v{R+6}", f"v_or_b32 v42, v42, v{R+7}"),
                          ("v_lshlrev_b32 v42, 24, v42", "v_cmp_ne_u32 vcc, 0, v42")))
            a("v_add_f32_dpp v44, v44, v44 quad_perm:[2,3,0,1] row_mask:0xf bank_mask:0xf")
            a(f"s_cbranch_vccz {Ld}")
        spin(Lf, 17)
        a(f"{Ld}:")
        stamp(13)
        R = 44
        a("s_nop 0")
        a(f"v_add_f32_dpp v{R}, v{R}, v{R} row_ror:4 row_mask:0xf bank_mask:0xf")
        a(f"v_add_f32_dpp v{R}, v{R}, v{R} row_ror:8 row_mask:0xf bank_mask:0xf")
    else:
        for k, R in enumerate(sets):
            fissue(sets[k - 1])
            a(f"s_waitcnt vmcnt({2*(fsets-1)})")
            untag(R, 2, 42)
            pk("add", 44, R, R + 4); pk("add", 46, R + 2, R + 6)
            a(f"v_cmp_ne_u32 vcc, 0, v42\ns_cbranch_vccz {Ld}")
        spin(Lf, 17)
        a(f"{Ld}:")
        stamp(13)
        R = 44
        rscatter(R)
        for m in ("quad_perm:[2,3,0,1]", "row_ror:4", "row_ror:8"):
            a(f"v_add_f32_dpp v{R}, v{R}, v{R} {m} row_mask:0xf bank_mask:0xf")
    a(f"s_mov_b32 exec_lo, 0x00030003\ns_mov_b32 exec_hi, 0x00030003")
    a(f"v_add_f32 v{R}, v{R}, v{vXf}\nv_cvt_pk_bf16_f32 v{R}, v{R}, v{R}\nbuffer_store_short v{R}, v14, s[44:47], s33 offen {oflags}")
    a(f"s_cmp_lg_u32 s2, 0\ns_cbranch_scc1 L_noep\ns_add_u32 s11, s11, 1\nv_mov_b32 v{R+1}, s11\ns_mov_b64 exec, 1\nbuffer_store_dword v{R+1}, v2, s[56:59], 0 offen {oflags}\nL_noep:\ns_mov_b64 exec, -1")
    stamp(14, True)
    if fixdur:
        a(f"s_add_u32 s96, s96, {fixdur}\nL_fix:\ns_memrealtime s[98:99]\ns_waitcnt lgkmcnt(0)\ns_sub_u32 s98, s98, s96\ns_cmp_lt_i32 s98, 0\ns_cbranch_scc1 L_fix")
    a("L_exit:")
    if stamps:
        a(f"""s_waitcnt vmcnt(0)
v_lshrrev_b32 v20, 6, v0
v_lshlrev_b32 v20, 6, v20
v_lshl_add_u32 v20, v1, 2, v20
s_lshl_b32 s14, s2, 10
s_add_u32 s14, s14, {WS_ST}
s_mov_b64 exec, 0xffff
buffer_store_dword v{vStamp}, v20, s[56:59], s14 offen""")
    a("L_end:\ns_endpgm")
    a("L_fail:")
    a("""s_load_dwordx2 s[48:49], s[0:1], 88
s_mov_b32 s50, 256
s_mov_b32 s51, 0x20000
s_lshl_b32 s14, s15, 2
v_mov_b32 v20, s2
v_add_u32 v20, 1, v20
s_waitcnt lgkmcnt(0)
s_mov_b64 exec, 1
buffer_store_dword v20, v2, s[48:51], s14 offen
s_endpgm""")
    if post: a(f".fill {post}, 4, 0xbf800000")
    nv = 168
    a(f""".section .rodata,"a"
.p2align 6
.amdhsa_kernel {KNAME}
  .amdhsa_next_free_vgpr {nv}
  .amdhsa_next_free_sgpr 102
  .amdhsa_accum_offset {nv}
  .amdhsa_group_segment_fixed_size 0
  .amdhsa_kernarg_size 104
  .amdhsa_user_sgpr_count 2
  .amdhsa_user_sgpr_kernarg_segment_ptr 1
  .amdhsa_system_sgpr_workgroup_id_x 1
  .amdhsa_float_denorm_mode_32 3
.end_amdhsa_kernel""")
    return a.finish()

if __name__ == "__main__":
    out = sys.argv[1] if len(sys.argv) > 1 else "x.s"
    open(out, "w").write(gen())
```

```python
import sys
from asmlib import Asm

KNAME = "parallel_sum__sliding_block_cached__mixer_channel_mlp__decode_kernel"

WS_HH = 0x1000; WS_QH = 0x4000; WS_OH = 0x8000; WS_LS = 0x18000; WS_QP = 0x28000
WS_HP = 0x48000; WS_HL = 0x64000; WS_FP = 0x64000; WS_OP = 0x100000; WS_ST = 0x200000
WS_BYTES = 0x10000000
KSTR = 1088; VSTR = 1152
L_X = 0
L_Y = L_X + 2048; L_QPART = L_Y + 2048; L_HPART = L_QPART + 2048
L_QBUF = L_HPART + 2048; L_P = L_QBUF + 2304; L_ML = L_P + 4096
L_O = L_ML + 512; L_H = L_O + 512; L_F = L_H + 512
L_K = L_F + 128; L_V = L_K + 32 * KSTR; L_END = L_V + 32 * VSTR
L_FIN = L_K
F_X, F_Y, F_Q, F_K, F_V, F_H, F_B1, F_B2, F_O, F_HD, F_QG, F_OG, F_FP, F_B3, F_OP, F_K2, F_PQ, F_PO = [L_F + 4 * i for i in range(18)]
TO_LIMIT = 1 << 20
NW = 9

def gen(W=(5, 5, 5, 6, 5, 5), stamps=0, ldflags="nt", order="qkv1o2", qstart=5, p1start=0, cprio=3, QR=4, OR=4, g1=None, g2=44,
        sonly=0, fsets=2, fack=1, hloc=0, vpre=1, hat=1, tall=2, fdelay=0, align=2, touch=1, nt=0, tlb=0, oflags='', WE=None, late=4, pre=832, post=0, g3=None, hsleep=0, oack=1, qwait=1, rq=3, r1=2, othr=16, qthr=8, ogs=0, fakebal=0, half=1, tpat=1, pre2=1, fastfin=0, fixdur=0, qpos=None, opos=None, maxper=8, gs=None, wl=2, gq=None, wrot=0, w1t=0, ksw=1, vsw=2, kvr=0, kvc=8, qdir=0, fps=8192, ops=0, g2n=4, gsl=1, ocnt=0, qhw=16, ohw=16):
    a = Asm()
    if isinstance(W, int): W = [W] * 48
    if len(W) == 6: W = [w for w in W for _ in range(8)]
    if isinstance(WE, int): WE = [WE] * 48
    if WE and len(WE) == 6: WE = [w for w in WE for _ in range(8)]
    lab = [0]
    HST = "buffer_atomic_swap" if hat else "buffer_store_dword"
    HST2 = "buffer_atomic_swap_x2" if hat else "buffer_store_dwordx2"
    def newlab(p="L"):
        lab[0] += 1
        return f"{p}_{lab[0]}"
    vStamp = 160
    stubs = (2, 22, 4, 19, 8, 9, 11, 13, 12, 16, 18) if touch else ()
    def touches(codes):
        for c in codes: a(f"s_call_b64 s[94:95], T_{c}")
    def stamp(k, light=False):
        if stamps == 1 or (stamps == 2 and light):
            a(f"s_memrealtime s[98:99]\ns_waitcnt lgkmcnt(0)\nv_writelane_b32 v{vStamp}, s98, {k}")
    def signal(flag):
        a(f"s_mov_b64 exec, 1\nds_add_u32 v2, v3 offset:{flag}\ns_mov_b64 exec, -1")
    def spin(L, code):
        a(f"s_add_u32 s10, s10, 1\ns_cmp_lt_u32 s10, {TO_LIMIT}\ns_cbranch_scc1 {L}\ns_mov_b32 s15, {code}\ns_branch L_fail")
        if code in stubs: a(f"T_{code}:\ns_setpc_b64 s[94:95]")
    def poll_lds(flag, n, vt, code, spec=None, sleep=0):
        L = newlab("PL"); D = newlab("PD")
        a(f"{L}:\nds_read_b32 v{vt}, v2 offset:{flag}")
        if spec: a(spec)
        a(f"s_waitcnt lgkmcnt(0)\nv_readfirstlane_b32 s14, v{vt}\ns_cmp_ge_u32 s14, {n}\ns_cbranch_scc1 {D}")
        if sleep: a(f"s_sleep {sleep}")
        spin(L, code)
        a(f"{D}:")
    def red64(v, s):
        for m in ("quad_perm:[1,0,3,2] row_mask:0xf", "quad_perm:[2,3,0,1] row_mask:0xf", "row_half_mirror row_mask:0xf",
                  "row_mirror row_mask:0xf", "row_bcast:15 row_mask:0xa", "row_bcast:31 row_mask:0xc"):
            a(f"v_add_f32_dpp v{v}, v{v}, v{v} {m} bank_mask:0xf")
        a(f"v_readlane_b32 s{s}, v{v}, 63")
    def nonce():
        a("s_mul_i32 s12, s11, 0x9E3779B1\ns_add_u32 s12, s12, 0x85EBCA77\ns_mov_b32 s13, s12")
        a("s_mov_b32 s20, 0x07060500\ns_mov_b32 s21, 0x07060501\ns_mov_b32 s22, 0x07060502\ns_mov_b32 s23, 0x07060503")
    def tag4(src, dst, vT):
        for k in range(4): a(f"v_perm_b32 v{dst+k}, v{src+k}, v{vT}, s{20+k}")
    def pk(op, d, x, y, z=None, mods=""):
        zz = f", v[{z}:{z+1}]" if z is not None else ""
        a(f"v_pk_{op}_f32 v[{d}:{d+1}], v[{x}:{x+1}], v[{y}:{y+1}]{zz} {mods}")

    a(f"; @launch grid=(256,1,1) block=({64*(NW+nt)},1,1) lds={L_END}")
    a('.amdgcn_target "amdgcn-amd-amdhsa--gfx950"')
    a(f".text\n.globl {KNAME}")
    if align: a(".p2align 12\n.fill {pre}, 4, 0xbf800000".replace("{pre}", str(pre)))
    a(f".p2align 8\n.type {KNAME},@function\n{KNAME}:")
    a("""s_cmp_ge_u32 s2, 256
s_cbranch_scc1 L_end
s_load_dwordx16 s[72:87], s[0:1], 0
s_load_dwordx2 s[56:57], s[0:1], 96""")
    if stamps:
        a(f"s_memrealtime s[96:97]\nv_mov_b32 v{vStamp}, 0")
    if fixdur: a("s_memrealtime s[96:97]")
    a(f"""v_lshrrev_b32 v4, 6, v0
v_and_b32 v1, 63, v0
v_readfirstlane_b32 s3, v4
v_mov_b32 v2, 0
v_mov_b32 v3, 1
s_and_b32 s4, s2, 7
s_lshr_b32 s5, s2, 3
s_lshr_b32 s14, s5, 2
s_lshl_b32 s15, s14, 3
s_add_u32 s6, s4, {rq}
s_and_b32 s6, s6, 7
s_add_u32 s6, s6, s15
s_add_u32 s8, s4, {r1}
s_and_b32 s8, s8, 7
s_add_u32 s8, s8, s15
s_and_b32 s7, s5, 3
s_cmp_lt_u32 s14, 7
s_cselect_b32 s9, 1, 0
s_mov_b32 s10, 0
s_mov_b32 s58, {WS_BYTES}
s_mov_b32 s59, 0x20000
s_cmp_lt_u32 s3, 4
s_cbranch_scc1 L_S""")
    if nt:
        a("s_cmp_lt_u32 s3, 9\ns_cbranch_scc1 L_notw")
        if tlb: a("s_load_dwordx2 s[52:53], s[0:1], 64")
        a("s_waitcnt lgkmcnt(0)\ns_barrier")
        groups = {1: [['y', 19, 8, 11, 13, 12, 2, 4]], 2: [['y', 8, 13, 2], [19, 11, 12, 4]], 3: [['y', 11, 2], [19, 13, 4], [8, 12, 22 if g2 is not None else 4]]}[nt]
        for k, grp in enumerate(groups):
            if k + 1 < len(groups): a(f"s_cmp_lg_u32 s3, {9+k}\ns_cbranch_scc1 L_tw{k+1}")
            if tlb and k == 0:
                a(f"""s_lshl_b32 s14, s4, 22
s_add_u32 s14, s14, {12288*256}
s_load_dword s64, s[36:37], s14
s_load_dword s65, s[40:41], s14
s_mul_i32 s14, s7, {256*7168}
s_load_dword s66, s[44:45], s14
s_add_u32 s14, s14, {255*7168}
s_load_dword s67, s[44:45], s14
s_lshl_b32 s14, s6, 17
s_load_dword s68, s[48:49], s14
s_lshl_b32 s14, s8, 17
s_min_u32 s14, s14, {3583*2048}
s_load_dword s69, s[52:53], s14""")
            touches(grp)
            a("s_endpgm")
            if k + 1 < len(groups): a(f"L_tw{k+1}:")
        a("L_notw:")
    vL16 = 4
    if cprio: a(f"s_setprio {cprio}")
    a(f"""s_sub_u32 s3, s3, 4
s_mov_b32 s26, 4096
s_mov_b32 s27, 0x20000
v_lshlrev_b32 v{vL16}, 4, v1
v_lshlrev_b32 v16, 3, v1
s_and_b32 s16, s3, 1
s_lshl_b32 s14, s16, 11
s_lshl_b32 s15, s7, 9
s_add_u32 s15, s15, s14
v_lshlrev_b32 v17, 2, v1
s_mov_b32 exec_hi, 0
ds_write_b32 v17, v2 offset:{L_F}
s_mov_b64 exec, -1
s_cmp_eq_u32 s3, 4
s_waitcnt lgkmcnt(0)
s_mov_b64 s[24:25], s[72:73]
s_barrier
s_cbranch_scc1 L_C
buffer_load_dwordx4 v[20:23], v{vL16}, s[24:27], s14 offen
buffer_load_dwordx4 v[24:27], v{vL16}, s[24:27], s14 offen offset:1024
buffer_load_dwordx2 v[28:29], v16, s[24:27], s15 offen
s_branch L_C""")

    a("L_S:")
    a("s_load_dwordx2 s[52:53], s[0:1], 64")
    a(f"""s_mov_b32 s34, {1024*8192}
s_mov_b32 s35, 0x20000
s_mov_b32 s38, {2*4*16384*256}
s_mov_b32 s39, 0x20000
s_mov_b32 s42, {2*4*16384*256}
s_mov_b32 s43, 0x20000
s_cmp_lg_u32 s9, 0
s_cselect_b32 s46, {1024*7168}, 0
s_cselect_b32 s54, {3584*2048}, 0
s_mov_b32 s47, 0x20000
s_mov_b32 s50, {4096*2048}
s_mov_b32 s51, 0x20000
s_mov_b32 s55, 0x20000
s_lshl_b32 s14, s7, 8
s_lshl_b32 s15, s3, 6
s_add_u32 s14, s14, s15
s_lshl_b32 s60, s14, 13
s_lshl_b32 s15, s6, 7
s_add_u32 s60, s60, s15
s_mul_i32 s63, s14, 7168
s_lshl_b32 s15, s8, 7
s_add_u32 s63, s63, s15""")
    if w1t:
        if w1t == 1: a("s_lshr_b32 s15, s8, 2\ns_and_b32 s16, s8, 3")
        else: a("s_mul_i32 s16, s8, 4682\ns_lshr_b32 s16, s16, 16\ns_mul_i32 s15, s16, 14\ns_sub_u32 s15, s8, s15")
        a("s_lshl_b32 s16, s16, 2\ns_add_u32 s16, s16, s7\ns_lshl_b32 s16, s16, 2\ns_add_u32 s16, s16, s3\ns_mul_i32 s63, s16, 114688\ns_lshl_b32 s15, s15, 9\ns_add_u32 s63, s63, s15")
    if tall: a("s_lshl_b32 s14, s7, 9\ns_lshl_b32 s15, s3, 15\ns_add_u32 s14, s14, s15")
    else: a("s_lshl_b32 s14, s14, 1")
    a(f"""s_lshl_b32 s64, s6, 17
s_add_u32 s64, s64, s14
s_lshl_b32 s65, s8, 17
s_add_u32 s65, s65, s14
s_lshl_b32 s61, s4, 22
{"s_lshl_b32 s15, s5, 10" if kvc != 8 else ""}
{"s_add_u32 s61, s61, s15" if not kvc else f"s_mul_i32 s69, s3, {kvc*8*1024}" if kvc != 8 else ""}
{"" if kvc in (0, 8) else "s_add_u32 s69, s69, s15"}
{"s_lshl_b32 s15, s3, 18" if not kvr else "s_lshl_b32 s69, s3, 3"}
{"s_add_u32 s61, s61, s15" if not kvr else {1: "s_add_u32 s69, s69, s4", 2: "s_lshl_b32 s15, s4, 2", 3: "s_mul_i32 s15, s4, 5", 0: "s_nop 0"}[kvr & 3]}
{"s_add_u32 s69, s69, s15" if (kvr & 3) >= 2 else ""}
s_add_u32 s61, s61, {12288*256}
s_mov_b32 s62, s61
s_mul_i32 s66, s3, {8*KSTR}
s_add_u32 s66, s66, {L_K}
s_mul_i32 s67, s3, {8*VSTR}
s_add_u32 s67, s67, {L_V}""")
    vOffQ, vOff1, vOffO, vOffK, vOffV = 18, 19, 4, 5, 6
    vLdsX, vLdsO, vPart, vFP, vFin, vT = 7, 12, 13, 14, 15, 17
    vM = 8
    a(f"""v_lshrrev_b32 v20, 4, v1
v_bfe_u32 v21, v1, 3, 1
v_and_b32 v22, 7, v1
v_lshl_add_u32 v23, v20, 2, v21
v_lshlrev_b32 v24, 4, v22
v_lshl_add_u32 v{vOffQ}, v23, 13, v24
v_mul_u32_u24 v25, 7168, v23
v_add_u32 v{vOff1}, v25, v24
v_and_b32 v25, 15, v1""")
    if w1t: a(f"v_mul_u32_u24 v{vOff1}, 28672, v20\nv_lshl_add_u32 v{vOff1}, v25, 4, v{vOff1}")
    if tall:
        a(f"v_lshlrev_b32 v{vOffO}, 4, v25\nv_lshl_add_u32 v{vOffO}, v20, {11 if tpat else 13}, v{vOffO}")
        if tpat == 2:
            a(f"s_bfe_u32 s69, s5, 0x10002\ns_lshl_b32 s14, s69, 8\nv_add_u32 v{vOffO}, s14, v{vOffO}\nv_xor_b32 v63, 0x100, v{vOffO}")
    else: a(f"v_lshl_add_u32 v{vOffO}, v23, 11, v24")
    for sw, vo in ((ksw, vOffK), (vsw, vOffV)):
        if sw == 0: a(f"v_lshlrev_b32 v{vo}, 4, v1")
        else:
            if sw == 1: a("v_xor_b32 v26, v25, v20")
            else: a(f"v_lshlrev_b32 v26, {sw-1}, v20\nv_xor_b32 v26, v25, v26")
            a(f"v_lshlrev_b32 v26, 4, v26\nv_lshl_add_u32 v{vo}, v20, 8, v26")
    DQ, D1, D2, DO = 64, 96, 128, 64
    if ' ' in order:
        seq = []; cntr = {}
        for tok in order.split():
            t, k = tok[0], int(tok[1:])
            for _ in range(k):
                seq.append((t, cntr.get(t, 0))); cntr[t] = cntr.get(t, 0) + 1
        assert all(v == 8 for v in cntr.values()) and len(seq) == 48
    else:
        seq = [(t, i) for t in order for i in range(8)]
    endpos = {t: n + 1 for n, (t, i) in enumerate(seq) if i == 7}
    info = {'q': (32, 60, vOffQ, 8192, DQ), '1': (44, 63, vOff1, 7168, D1), '2': (52, 65, vOffO, 2048, D2), 'o': (48, 64, vOffO, 2048, DO),
            'k': (36, 61, vOffK, None, None), 'v': (40, 62, vOffV, None, None)}
    def issue(t, i):
        srd, so, vo, stride, D = info[t]
        if t in 'kv' and kvr:
            base, st = (66, KSTR) if t == 'k' else (67, VSTR)
            ii = (i + 4) & 7 if (kvr >= 4 and t == 'v') else i
            a(f"s_add_u32 s16, s69, {ii}\ns_and_b32 s16, s16, 31\ns_lshl_b32 s16, s16, 15\ns_add_u32 s16, s16, s{so}\ns_add_u32 m0, s{base}, {ii*st}")
            a(f"buffer_load_dwordx4 v{vo}, s[{srd}:{srd+3}], s16 offen {ldflags} lds")
        elif t in 'kv' and kvc == 8:
            base, st = (66, KSTR) if t == 'k' else (67, VSTR)
            if i > 0: a(f"s_add_u32 s{so}, s{so}, s92")
            a(f"s_add_u32 s16, s{88 + (i & 3)}, s{so}\ns_add_u32 m0, s{base}, {i*st}")
            a(f"buffer_load_dwordx4 v{vo}, s[{srd}:{srd+3}], s16 offen {ldflags} lds")
        elif t in 'kv' and kvc:
            base, st = (66, KSTR) if t == 'k' else (67, VSTR)
            if i > 0: a(f"s_add_u32 s{so}, s{so}, 32768")
            a(f"s_add_u32 s16, s69, {(kvc*i*1024) & 0x7fff}\ns_and_b32 s16, s16, 0x7c00\ns_add_u32 s16, s16, s{so}\ns_add_u32 m0, s{base}, {i*st}")
            a(f"buffer_load_dwordx4 v{vo}, s[{srd}:{srd+3}], s16 offen {ldflags} lds")
        elif t in 'kv':
            if i > 0: a(f"s_add_u32 s{so}, s{so}, 32768")
            base, st = (66, KSTR) if t == 'k' else (67, VSTR)
            a(f"s_add_u32 m0, s{base}, {i*st}")
            a(f"buffer_load_dwordx4 v{vo}, s[{srd}:{srd+3}], s{so} offen {ldflags} lds")
        elif tall and t in '2o':
            if i > 0 and i % 2 == 0: a(f"s_add_u32 s{so}, s{so}, {8192 if tpat else 2048}")
            if tpat == 2: a(f"buffer_load_dwordx4 v[{D+4*i}:{D+4*i+3}], v{63 if i & 1 else vo}, s[{srd}:{srd+3}], s{so} offen {ldflags}")
            else: a(f"buffer_load_dwordx4 v[{D+4*i}:{D+4*i+3}], v{vo}, s[{srd}:{srd+3}], s{so} offen offset:{256*(i&1)} {ldflags}")
        elif w1t and t == '1':
            if i > 0 and i % 2 == 0: a(f"s_add_u32 s{so}, s{so}, 7168")
            a(f"buffer_load_dwordx4 v[{D+4*i}:{D+4*i+3}], v{vo}, s[{srd}:{srd+3}], s{so} offen offset:{256*(i&1)} {ldflags}")
        elif wrot and t in 'q1':
            rs = {1: "s_lshr_b32 s16, s5, 2", 2: "s_mov_b32 s16, s4", 3: "s_lshr_b32 s16, s5, 2\ns_add_u32 s16, s16, s4"}[wrot]
            a(f"{rs}\ns_add_u32 s16, s16, {i>>1}\ns_and_b32 s16, s16, 3\ns_mul_i32 s16, s16, {16*stride}\ns_add_u32 s16, s16, {2*(i&1)*stride}\ns_add_u32 s16, s16, s{so}")
            a(f"buffer_load_dwordx4 v[{D+4*i}:{D+4*i+3}], v{vo}, s[{srd}:{srd+3}], s16 offen {ldflags}")
        elif fakebal and t == '1' and i >= 6:
            a(f"buffer_load_dwordx4 v[{D+4*i}:{D+4*i+3}], v{vo}, s[{srd}:{srd+3}], s{so} offen offset:0")
        else:
            if i > 0:
                rowof = lambda j: 16 * (j >> 1) + 2 * (j & 1)
                a(f"s_add_u32 s{so}, s{so}, {(rowof(i) - rowof(i-1)) * stride}")
            a(f"buffer_load_dwordx4 v[{D+4*i}:{D+4*i+3}], v{vo}, s[{srd}:{srd+3}], s{so} offen {'' if (fakebal and t == '1' and i == 5) else ldflags}")
    DUP, A0, A1, AC0, AC1, X = 20, 36, 40, 52, 56, 60
    def buildA(i, h):
        Ar = (A0, A1)[h]
        src = DUP + 4 * (i >> 1) + 2 * (i & 1) + h
        for r in range(4): a(f"v_and_b32 v{Ar+r}, v{src}, v{vM+r}")
    def mm(D, i, first, last):
        for h, (Ar, AC) in enumerate(((A0, AC0), (A1, AC1))):
            c = "0" if first else f"v[{AC}:{AC+3}]"
            a(f"v_mfma_f32_16x16x32_bf16 v[{AC}:{AC+3}], v[{Ar}:{Ar+3}], v[{D+4*i}:{D+4*i+3}], {c}")
            if not last: buildA(i + 1, h)
    AT = [36, 40, 44, 48]
    def buildT(j, rs=range(4)):
        for r in rs: a(f"v_and_b32 v{AT[j]+r}, v{DUP+j}, v{vM+r}")
    def mmT(D, i, first):
        AC = (AC0, AC1)[i & 1]
        c = "0" if first else f"v[{AC}:{AC+3}]"
        a(f"v_mfma_f32_16x16x32_bf16 v[{AC}:{AC+3}], v[{AT[i>>1]}:{AT[i>>1]+3}], v[{D+4*i}:{D+4*i+3}], {c}")
        j = (i >> 1) + 1
        if j < 4: buildT(j, (0, 1) if i % 2 == 0 else (2, 3))
    def dupreads(vaddr, base, n=4):
        return "\n".join(f"ds_read_b128 v[{DUP+4*t}:{DUP+4*t+3}], v{vaddr} offset:{base+64*t}" for t in range(n))
    def combine():
        for r in range(4): a(f"v_cndmask_b32 v{X+r}, v{AC0+r}, v{AC1+r}, s[18:19]")
        for r in range(4): a(f"v_add_f32_dpp v{X+r}, v{X+r}, v{X+r} row_ror:8 row_mask:0xf bank_mask:0xf")
    a("s_waitcnt lgkmcnt(0)\ns_mov_b64 s[32:33], s[78:79]")
    if not pre2: a("s_barrier")
    if fakebal:
        a("s_cmp_lg_u32 s9, 0\ns_cselect_b32 s44, s44, s36\ns_cselect_b32 s45, s45, s37\ns_cselect_b32 s52, s52, s40\ns_cselect_b32 s53, s53, s41\ns_cselect_b32 s46, s46, 0x2000000\ns_cselect_b32 s54, s54, 0x2000000")
    if stamps: a(f"v_writelane_b32 v{vStamp}, s96, 0")
    stamp(1)
    st = dict(landed=0, setup=False)
    def setup():
        if st['setup']: return
        st['setup'] = True
        a("s_load_dword s11, s[56:57], 0")
        if kvc == 8:
            a("s_lshl_b32 s88, s5, 10\ns_mov_b32 s92, 0x8000")
            for k in range(1, 4): a(f"s_add_u32 s{88+k}, s{87+k}, 0x2000\ns_and_b32 s{88+k}, s{88+k}, 0x7c00")
        a("s_mov_b64 s[36:37], s[74:75]\ns_mov_b64 s[40:41], s[76:77]\ns_mov_b64 s[44:45], s[84:85]\ns_mov_b64 s[48:49], s[80:81]")
        a(f"""v_and_b32 v25, 1, v1
v_bfe_u32 v26, v1, 1, 2
v_mov_b32 v27, 0xffff
v_lshlrev_b32 v25, 4, v25
v_lshlrev_b32 v27, v25, v27""")
        for r in range(4):
            a(f"v_cmp_eq_u32 vcc, {r}, v26\nv_cndmask_b32 v{vM+r}, 0, v27, vcc")
        a(f"""v_lshlrev_b32 v25, 4, v20
v_lshl_add_u32 v{vLdsO}, v21, 8, v25
v_lshl_add_u32 v{vLdsX}, v21, 10, v25
s_lshl_b32 s14, s3, 8
v_add_u32 v{vLdsX}, s14, v{vLdsX}
v_lshrrev_b32 v25, 1, v20
v_and_b32 v26, 1, v20
v_lshlrev_b32 v27, 5, v22
v_lshl_add_u32 v27, v26, 4, v27
v_lshl_add_u32 v{vPart}, v25, 8, v27
s_lshl_b32 s14, s3, 9
v_add_u32 v{vPart}, s14, v{vPart}
s_mov_b32 s18, 0xff00ff00
s_mov_b32 s19, 0xff00ff00""")
        if WE:
            a(f"s_getreg_b32 s14, hwreg(HW_REG_XCC_ID, 0, 4)\ns_cmp_ge_u32 s14, {late}\ns_cselect_b64 vcc, -1, 0")
        if tall:
            a(f"""s_lshl_b32 s14, s3, 6
v_add_u32 v{vLdsO}, s14, v{vLdsO}
v_lshlrev_b32 v{vFin}, 4, v1
s_lshl_b32 s14, s3, 11
v_add_u32 v16, s14, v{vFin}
s_and_b32 s14, s3, 1
s_lshl_b32 s14, s14, 10
s_lshr_b32 s15, s3, 1
s_lshl_b32 s15, s15, 9
s_add_u32 s14, s14, s15
v_add_u32 v{vFin}, s14, v{vFin}
v_and_b32 v27, 15, v1
v_lshlrev_b32 v27, 5, v27
v_lshl_add_u32 v{vFP}, v26, 4, v27
s_lshl_b32 s14, s7, 10
s_and_b32 s15, s3, 1
s_lshl_b32 s15, s15, 9
s_add_u32 s14, s14, s15
s_lshr_b32 s15, s3, 1
s_lshl_b32 s15, s15, 12
s_add_u32 s14, s14, s15""")
        else:
            a(f"""v_lshl_add_u32 v{vFP}, v25, 12, v27
s_lshl_b32 s14, s7, 10
s_lshl_b32 s15, s3, 8
s_add_u32 s14, s14, s15""")
        a(f"s_mul_i32 s15, s6, {fps}\ns_add_u32 s14, s14, s15\ns_add_u32 s68, s14, {WS_FP}")
    def process(t, i):
        if sonly:
            if i == 7: stamp({'q': 2, 'k': 3, 'v': 4, '1': 5}[t])
            return
        if t in 'q1':
            if i == 0:
                poll_lds(F_X if t == 'q' else F_Y, 2, 60, 1 if t == 'q' else 2, dupreads(vLdsX, L_X if t == 'q' else L_Y))
                buildA(0, 0); buildA(0, 1)
            mm(info[t][4], i, i == 0, i == 7)
            if i == 7:
                combine()
                a("s_mov_b32 exec_lo, 0x00ff00ff\ns_mov_b32 exec_hi, 0x00ff00ff")
                a(f"ds_write_b128 v{vPart}, v[{X}:{X+3}] offset:{L_QPART if t == 'q' else L_HPART}")
                signal(F_Q if t == 'q' else F_H)
                stamp(2 if t == 'q' else 5)
        elif t == 'k' and qwait >= 2 and i == qwait - 2:
            signal(F_K2)
        elif t in 'kv' and i == 7:
            signal(F_K if t == 'k' else F_V)
            stamp(3 if t == 'k' else 4)
    gates = {}
    if g1 is not None and not sonly: gates[g1] = (F_QG, 4, '', 21)
    if g2 is not None and not sonly: gates[g2] = (F_OG, g2n, 'q1kv', 22)
    if g3 is not None and not sonly: gates[g3] = (F_OP, 4, 'q1kv', 24)
    N = len(seq)
    pend = list(range(N))
    def ready(m, n):
        t, i = seq[m]
        if t in '2o': return False
        if t == 'q' and st['landed'] < qstart: return False
        if t == '1' and n < p1start: return False
        return True
    assert all(endpos['q'] <= n - 8 for n, (t, i) in enumerate(seq) if t == 'o')
    for n, (t, i) in enumerate(seq):
        want = n - W[n] + 1
        if n in gates:
            flag, cnt, need, code = gates[n]
            for m in [m for m in pend if seq[m][0] in need and m < n]:
                if m >= st['landed'] and not (seq[m][0] in 'kv' and seq[m][1] < 7):
                    a(f"s_waitcnt vmcnt({n - 1 - m})"); st['landed'] = m + 1
                process(*seq[m]); pend.remove(m)
            poll_lds(flag, cnt, 60, code, sleep=gsl)
        if want > st['landed']:
            setup()
            a(f"s_waitcnt vmcnt({n - want})"); st['landed'] = want
        if not sonly and ((gs is not None and n >= gs) or (gq is not None and gq[0] <= n < gq[1])):
            fl = F_OG if (gs is not None and n >= gs) else F_QG
            for m in [m for m in pend if seq[m][0] in 'q1kv' and m < n - wl + 1 and (seq[m][0] in 'kv' or fl == F_OG)]:
                pass
            Lk = newlab("SG")
            a(f"ds_read_b32 v60, v2 offset:{fl}\ns_waitcnt lgkmcnt(0)\nv_readfirstlane_b32 s14, v60\ns_cmp_ge_u32 s14, 4\ns_cbranch_scc1 {Lk}\ns_waitcnt vmcnt({wl - 1})\n{Lk}:")
        if WE and WE[n] < W[n] and n - WE[n] + 1 > st['landed']:
            setup()
            Lk = newlab("WK")
            a(f"s_cbranch_vccnz {Lk}\ns_waitcnt vmcnt({WE[n] - 1})\n{Lk}:")
        if t != 'q': setup()
        issue(t, i)
        if pre2 and n == pre2 - 1: a("s_barrier")
        if n == qpos and not sonly: signal(F_PQ)
        if n == opos and not sonly: signal(F_PO)
        cnt_ = 0
        for m in [m for m in pend if m < st['landed'] and ready(m, n)]:
            if seq[m][0] in 'q1':
                if cnt_ >= maxper: continue
                cnt_ += 1
            process(*seq[m]); pend.remove(m)
    setup()
    stamp(6)
    nmm = 0
    tail = [m for m in pend if seq[m][0] not in '2o'] + [m for m in pend if seq[m][0] in '2o']
    for m in tail:
        t, i = seq[m]
        if sonly:
            if m >= st['landed'] and i == 7:
                a(f"s_waitcnt vmcnt({N - 1 - m})"); st['landed'] = m + 1
            if i == 7: stamp({'q': 2, 'k': 3, 'v': 4, '1': 5, '2': 7, 'o': 8}[t])
            continue
        if t in '2o' and i == 0:
            if nmm == 0:
                nonce(); a(f"v_mov_b32 v{vT}, s12")
            poll_lds(F_HD if t == '2' else F_O, 1 if t == '2' else 4, 60, 3 if t == '2' else 4, dupreads(vLdsO, L_H if t == '2' else L_O, 1 if tall else 4))
            stamp(7 if t == '2' else 8)
            if tall: buildT(0)
            else: buildA(0, 0); buildA(0, 1)
        if m >= st['landed'] and not (t in 'kv' and i < 7):
            a(f"s_waitcnt vmcnt({N - 1 - m})"); st['landed'] = m + 1
        if t in '2o':
            if tall: mmT(info[t][4], i, nmm < 2)
            else: mm(info[t][4], i, nmm == 0, i == 7)
            nmm += 1
        else:
            process(t, i)
    stamp(9)
    if sonly: a("s_branch L_exit")
    if tall:
        a(f"ds_write_b128 v16, v[{AC0}:{AC0+3}] offset:{L_FIN}\nds_write_b128 v16, v[{AC1}:{AC1+3}] offset:{L_FIN+1024}")
        if tall == 2:
            a("s_waitcnt lgkmcnt(0)\ns_barrier")
            for w in range(4): a(f"ds_read_b128 v[{20+4*w}:{23+4*w}], v{vFin} offset:{L_FIN+2048*w}")
            a("s_waitcnt lgkmcnt(0)")
        else:
            signal(F_B3)
            poll_lds(F_B3, 4, 60, 23, "\n".join(f"ds_read_b128 v[{20+4*w}:{23+4*w}], v{vFin} offset:{L_FIN+2048*w}" for w in range(4)))
        pk("add", 20, 20, 24); pk("add", 22, 22, 26); pk("add", 28, 28, 32); pk("add", 30, 30, 34)
        pk("add", X, 20, 28); pk("add", X + 2, 22, 30)
        tag4(X, X, vT)
        a("s_mov_b32 exec_hi, 0")
    else:
        combine()
        tag4(X, X, vT)
        a("s_mov_b32 exec_lo, 0x00ff00ff\ns_mov_b32 exec_hi, 0x00ff00ff")
    a(f"buffer_store_dwordx4 v[{X}:{X+3}], v{vFP}, s[56:59], s68 offen sc1\ns_mov_b64 exec, -1")
    stamp(10)
    if fack: a("s_waitcnt vmcnt(0)")
    signal(F_FP)
    a("s_branch L_exit")

    if align: a(".p2align 12")
    a("L_C:")
    if sonly:
        if stamps: a(f"v_writelane_b32 v{vStamp}, s96, 0")
        a("s_branch L_exit")
    vT, vTb, vHi = 5, 6, 15
    vXf, vB2f, vB1 = 10, 11, 12
    a(f"""s_load_dword s11, s[56:57], 0
v_mov_b32 v{vHi}, 0xffff0000
s_cmp_eq_u32 s3, 4
s_cbranch_scc1 L_H""")
    if stamps: a(f"v_writelane_b32 v{vStamp}, s96, 0")
    F = 32
    def unpack(src, dst, n):
        for k in range(n):
            a(f"v_lshlrev_b32 v{dst+2*k}, 16, v{src+k}\nv_and_b32 v{dst+2*k+1}, v{vHi}, v{src+k}")
    def stats(F):
        pk("add", 48, F, F + 2); pk("add", 50, F + 4, F + 6); pk("add", 52, F + 8, F + 10); pk("add", 54, F + 12, F + 14)
        pk("add", 48, 48, 50); pk("add", 52, 52, 54); pk("add", 48, 48, 52)
        a("v_add_f32 v48, v48, v49")
        red64(48, 14)
        a("v_mov_b32 v60, 0x3a800000\nv_mul_f32 v48, s14, v60")
        for k in range(0, 16, 4):
            pk("add", 52, F + k, 48, mods="op_sel_hi:[1,0] neg_lo:[0,1] neg_hi:[0,1]")
            pk("add", 54, F + k + 2, 48, mods="op_sel_hi:[1,0] neg_lo:[0,1] neg_hi:[0,1]")
            if k == 0: pk("mul", 50, 52, 52); pk("mul", 62, 54, 54)
            else: pk("fma", 50, 52, 52, 50); pk("fma", 62, 54, 54, 62)
        pk("add", 50, 50, 62)
        a("v_add_f32 v49, v50, v51")
        red64(49, 14)
        a(f"""v_mul_f32 v49, s14, v60
v_cvt_pk_bf16_f32 v48, v48, v49
v_and_b32 v49, v{vHi}, v48
v_lshlrev_b32 v48, 16, v48
v_add_f32 v49, 0x3727c5ac, v49
v_cvt_pk_bf16_f32 v49, v49, v49
v_and_b32 v49, v{vHi}, v49
v_sqrt_f32 v49, v49
v_cvt_pk_bf16_f32 v49, v49, v49
v_and_b32 v49, v{vHi}, v49
v_rcp_f32 v50, v49""")
    def normalize(F, n):
        for k in range(0, n, 2):
            pk("add", F + k, F + k, 48, mods="op_sel_hi:[1,0] neg_lo:[0,1] neg_hi:[0,1]")
        for k in range(0, n, 2):
            a(f"v_cvt_pk_bf16_f32 v52, v{F+k}, v{F+k+1}")
            a(f"v_lshlrev_b32 v{F+k}, 16, v52\nv_and_b32 v{F+k+1}, v{vHi}, v52")
            pk("mul", 52, F + k, 50, mods="op_sel_hi:[1,0]")
            pk("fma", F + k, 52, 48, F + k, mods="op_sel:[0,1,0] op_sel_hi:[1,1,1] neg_lo:[1,0,0] neg_hi:[1,0,0]")
            pk("fma", F + k, F + k, 50, 52, mods="op_sel_hi:[1,0,1]")
    def roundbf(F, n):
        for k in range(0, n, 2):
            a(f"v_cvt_pk_bf16_f32 v52, v{F+k}, v{F+k+1}")
            a(f"v_lshlrev_b32 v{F+k}, 16, v52\nv_and_b32 v{F+k+1}, v{vHi}, v52")
    def tagconsts():
        nonce()
        a(f"""v_mov_b32 v{vT}, s12
v_and_b32 v{vTb}, 0xff, v{vT}
v_bfe_u32 v{vTb+1}, v{vT}, 8, 8
v_bfe_u32 v{vTb+2}, v{vT}, 16, 8
v_lshrrev_b32 v{vTb+3}, 24, v{vT}""")
    a("s_waitcnt vmcnt(1)")
    stamp(1)
    unpack(20, F, 8)
    stats(F)
    a("s_waitcnt vmcnt(0)")
    unpack(28, 56, 2)
    normalize(56, 4)
    a(f"s_lshl_b32 s14, s16, 10\nv_add_u32 v16, s14, v{vL16}")
    a("s_cmp_ge_u32 s3, 2\ns_cbranch_scc1 L_ypath")
    for k in range(4): a(f"v_cvt_pk_bf16_f32 v{60+k}, v{56+k}, v{56+k}")
    a(f"ds_write_b128 v16, v[60:63] offset:{L_X}")
    signal(F_X)
    stamp(2)
    if touch and not nt:
        a("s_cmp_eq_u32 s3, 0\ns_cbranch_scc1 L_t0")
        touches([9, 13] + ([22] if g2 is not None else []) + [4])
        a("s_branch L_lndone\nL_t0:")
        touches([19, 8, 11, 2])
    a("L_lndone:")
    a("s_waitcnt lgkmcnt(0)")
    tagconsts()
    def publish_part(lbase, flag, code, vaddr, extra, B=96):
        poll_lds(flag, 4, B + 16, code, "\n".join(f"ds_read_b128 v[{B+4*w}:{B+3+4*w}], v{vL16} offset:{lbase+512*w}" for w in range(4)))
        pk("add", B, B, B + 4); pk("add", B + 2, B + 2, B + 6); pk("add", B + 8, B + 8, B + 12); pk("add", B + 10, B + 10, B + 14)
        pk("add", B, B, B + 8); pk("add", B + 2, B + 2, B + 10)
        tag4(B, B, vT)
        a("s_mov_b32 exec_hi, 0")
        a(f"buffer_store_dwordx4 v[{B}:{B+3}], v{vaddr}, s[56:59], s30 offen sc1")
        a(extra)
        a("s_mov_b64 exec, -1")
    def poll_hints(nq, code, thr=None, hw=16):
        L = newlab("HL"); D = newlab("HD"); R = newlab("HR")
        a(f"{L}:")
        if nq == 0: a("s_load_dwordx4 s[64:67], s[60:61], 0 glc")
        for q in range(nq * 16 // hw): a(f"s_load_dwordx{hw} s[{64+hw*q}:{63+hw*q+hw}], s[60:61], {64*q} glc")
        if thr is not None and thr < nq * 8:
            a("s_mov_b32 s14, 0\ns_waitcnt lgkmcnt(0)")
            for j in range(nq * 8): a(f"s_cmp_eq_u64 s[{64+2*j}:{65+2*j}], s[12:13]\ns_addc_u32 s14, s14, 0")
            a(f"s_cmp_ge_u32 s14, {thr}\ns_cbranch_scc1 {D}")
        else:
            a("s_waitcnt lgkmcnt(0)")
            for j in range(max(nq * 8, 2)):
                a(f"s_cmp_eq_u64 s[{64+2*j}:{65+2*j}], s[12:13]\ns_cbranch_scc0 {R}")
            a(f"s_branch {D}\n{R}:")
        if hsleep: a(f"s_sleep {hsleep}")
        spin(L, code)
        a(f"{D}:")
    def untag(G, n, vacc):
        for j in range(4 * n): a(f"v_xor_b32 v{G+j}, v{G+j}, v{vTb+(j&3)}")
        a(f"v_or3_b32 v{vacc}, v{G}, v{G+1}, v{G+2}")
        j = 3
        while j < 4 * n:
            if j + 1 < 4 * n: a(f"v_or3_b32 v{vacc}, v{vacc}, v{G+j}, v{G+j+1}"); j += 2
            else: a(f"v_or_b32 v{vacc}, v{vacc}, v{G+j}"); j += 1
        a(f"v_lshlrev_b32 v{vacc}, 24, v{vacc}")
    def retry_if(vacc, L, code):
        D = newlab("RD")
        a(f"v_cmp_ne_u32 vcc, 0, v{vacc}\ns_cbranch_vccz {D}")
        spin(L, code)
        a(f"{D}:")
    G = 16
    QRS = QR.bit_length() - 1; ORS = OR.bit_length() - 1
    QB = 6 + (16 // qhw).bit_length() - 1; OB = 7 + (16 // ohw).bit_length() - 1
    assert 16 * QR << QB <= WS_OH - WS_QH and 32 * OR << OB <= WS_LS - WS_OH
    vKa, vQw, vQr, vVa0, vVa1, vMl, vPw, vMw, vOd, vLs, vOh, vLg, vOw = 52, 53, 54, 55, 56, 57, 58, 59, 60, 61, 62, 63, 14
    a(f"""v_and_b32 v16, 15, v1
v_lshrrev_b32 v17, 4, v1
v_lshrrev_b32 v18, 2, v16
v_and_b32 v19, 3, v1
v_mul_u32_u24 v{vKa}, {KSTR}, v18
v_lshl_add_u32 v{vKa}, v19, 8, v{vKa}
v_xor_b32 v20, v17, v19
v_lshl_add_u32 v{vKa}, v20, 4, v{vKa}
s_mul_i32 s14, s3, {8*KSTR}
v_add_u32 v{vKa}, s14, v{vKa}
v_lshrrev_b32 v20, 5, v1
v_mul_u32_u24 v20, 288, v20
v_and_b32 v21, 31, v1
v_lshl_add_u32 v{vQw}, v21, 3, v20
s_mul_i32 s14, s3, 576
v_add_u32 v{vQw}, s14, v{vQw}
v_and_b32 v20, 7, v1
v_mul_u32_u24 v20, 288, v20
v_lshl_add_u32 v{vQr}, v17, 4, v20
v_mul_u32_u24 v20, {VSTR}, v17
v_lshl_add_u32 v20, v18, 8, v20
v_and_b32 v21, 1, v1
v_lshl_add_u32 v20, v21, 3, v20
v_add_u32 v20, {L_V}, v20
v_bfe_u32 v21, v1, 1, 1
s_lshl_b32 s14, s3, 2
v_add_u32 v21, s14, v21
v_lshlrev_b32 v22, 1, v18
v_xor_b32 v21, v21, v22
v_lshl_add_u32 v{vVa0}, v21, 4, v20
v_xor_b32 v21, 2, v21
v_lshl_add_u32 v{vVa1}, v21, 4, v20
v_lshlrev_b32 v{vMl}, 3, v16
v_and_b32 v20, 0x37, v1
v_lshlrev_b32 v13, 4, v20
v_and_b32 v21, 8, v1
{f"v_add_u32 v{vPw}, v13, v21" if half else f"v_mov_b32 v{vPw}, v{vL16}"}
{"" if half else f"v_mov_b32 v13, v{vL16}"}
s_lshl_b32 s14, s3, 10
v_add_u32 v{vPw}, s14, v{vPw}
s_lshl_b32 s14, s3, 7
v_add_u32 v{vMw}, s14, v{vMl}
v_and_b32 v20, 7, v1
v_bfe_u32 v21, v1, 3, 1
v_lshlrev_b32 v{vOd}, 14, v20
v_lshl_add_u32 v{vOd}, v21, 6, v{vOd}
v_lshl_add_u32 v{vOd}, v17, 4, v{vOd}
v_lshlrev_b32 v{vLs}, 10, v20
v_lshlrev_b32 v{vOh}, {OB}, v1
v_lshrrev_b32 v{vLg}, 3, v1
v_lshlrev_b32 v{vLg}, 3, v{vLg}
{f"v_lshl_add_u32 v{vOw}, v20, 2, v17" if not tpat else f"v_bfe_u32 v{vOw}, v1, 2, 1"}
{"" if not tpat else f"v_lshl_add_u32 v{vOw}, v{vOw}, 2, v17"}
{"" if not tpat else f"v_lshl_add_u32 v{vOw}, v{vOw}, 2, v19"}
v_lshlrev_b32 v{vOw}, 2, v{vOw}
v_add_u32 v{vOw}, s14, v{vOw}
s_lshl_b32 s14, s4, 5
s_add_u32 s14, s14, s3
s_lshl_b32 s28, s14, 12
s_lshl_b32 s17, s5, 7
s_add_u32 s28, s28, s17
s_add_u32 s28, s28, {WS_OP}
s_lshl_b32 s29, s14, 8
s_lshl_b32 s17, s5, 3
s_add_u32 s29, s29, s17
s_add_u32 s29, s29, {WS_LS}
s_lshl_b32 s31, s4, 2
s_add_u32 s31, s31, s3
s_lshl_b32 s31, s31, {OB+ORS}
s_lshr_b32 s17, s5, {ohw.bit_length()-1}
s_lshl_b32 s17, s17, 6
{"s_add_u32 s31, s31, s17" if not ocnt else ""}
s_and_b32 s17, s5, {ohw-1}
s_lshl_b32 s17, s17, 2
{"s_add_u32 s31, s31, s17" if not ocnt else ""}
s_add_u32 s31, s31, {WS_OH}
s_mov_b32 s18, 0xff00ff00
s_mov_b32 s19, 0xff00ff00
v_mov_b32 v48, 0x3db504f3
v_mov_b32 v50, 0x3fb8aa3b""")
    a("s_call_b64 s[94:95], L_oaddr")
    poll_lds(F_PQ if qpos else F_K2 if qwait >= 2 else F_K if qwait else F_Q, 4, 32, 19, sleep=2)
    Lq = newlab("GQ")
    if qdir == 2:
        a(f"s_branch {Lq}\nL_qslow:")
    if qdir != 1: poll_hints(1, 6, hw=qhw)
    stamp(4)
    a(f"{Lq}:")
    for i in range(4): a(f"buffer_load_dwordx4 v[{G+4*i}:{G+4*i+3}], v{vL16}, s[56:59], s62 offen offset:{1024*i} sc1")
    if g1 is not None or gq is not None: signal(F_QG)
    KF, VF, QF = 64, 96, 128
    poll_lds(F_K, 4, 32, 7, "\n".join(f"ds_read_b128 v[{KF+16*t+4*s}:{KF+16*t+4*s+3}], v{vKa} offset:{L_K+4*KSTR*t+64*s}" for t in range(2) for s in range(4)))
    vreads = []
    for w in range(4):
        for t, va in ((0, vVa0), (1, vVa1)):
            for T in range(2):
                r = VF + 8 * w + 4 * t + 2 * T
                vreads.append(f"ds_read_b64_tr_b16 v[{r}:{r+1}], v{va} offset:{(8*w+4*T)*VSTR}")
    a("s_waitcnt vmcnt(0)")
    if vpre: a(f"ds_read_b32 v33, v2 offset:{F_V}")
    for j in range(16): a(f"v_xor_b32 v{G+j}, v{G+j}, v{vTb+(j&3)}")
    pk("add", 36, G, G + 4); pk("add", 38, G + 2, G + 6); pk("add", 40, G + 8, G + 12); pk("add", 42, G + 10, G + 14)
    pk("add", 36, 36, 40); pk("add", 38, 38, 42)
    a(f"v_cvt_pk_bf16_f32 v36, v36, v37\nv_cvt_pk_bf16_f32 v37, v38, v39")
    a(f"ds_write_b64 v{vQw}, v[36:37] offset:{L_QBUF}")
    a(f"v_or3_b32 v32, v{G}, v{G+1}, v{G+2}\nv_or3_b32 v34, v{G+3}, v{G+4}, v{G+5}")
    for j in range(6, 14, 4): a(f"v_or3_b32 v32, v32, v{G+j}, v{G+j+1}\nv_or3_b32 v34, v34, v{G+j+2}, v{G+j+3}")
    a(f"v_or3_b32 v32, v32, v{G+14}, v{G+15}\nv_or_b32 v32, v32, v34\nv_lshlrev_b32 v32, 24, v32")
    retry_if(32, 'L_qslow' if qdir == 2 else Lq, 8)
    signal(F_B1)
    stamp(5)
    poll_lds(F_B1, 4, 32, 9, "\n".join(f"ds_read_b128 v[{QF+4*s}:{QF+4*s+3}], v{vQr} offset:{L_QBUF+64*s}" for s in range(4)))
    S = 40
    for s in range(4):
        for t in range(2):
            c = "0" if s == 0 else f"v[{S+4*t}:{S+4*t+3}]"
            a(f"v_mfma_f32_16x16x32_bf16 v[{S+4*t}:{S+4*t+3}], v[{KF+16*t+4*s}:{KF+16*t+4*s+3}], v[{QF+4*s}:{QF+4*s+3}], {c}")
    if vpre:
        a("v_readfirstlane_b32 s35, v33\ns_cmp_lt_u32 s35, 4\ns_cbranch_scc1 L_vlater")
        a("\n".join(vreads))
        a("L_vlater:\ns_nop 7")
    def xlane(v, tmp, op, fill=((), ())):
        for n_, sw in enumerate(("v_permlane16_swap_b32", "v_permlane32_swap_b32")):
            a(f"v_mov_b32 v{tmp}, v{v}")
            for f in fill[n_]: f()
            a(f"{sw} v{v}, v{tmp}\n{op} v{v}, v{v}, v{tmp}")
    if half:
        for k in range(4): a(f"v_cndmask_b32 v{S+k}, v{S+k}, v{S+4+k}, s[18:19]")
        nv_ = 4
    else: nv_ = 8
    for k in range(0, nv_, 2): a(f"v_cvt_pk_bf16_f32 v{32+k//2}, v{S+k}, v{S+k+1}")
    for k in range(0, nv_, 2): a(f"v_lshlrev_b32 v{S+k}, 16, v{32+k//2}\nv_and_b32 v{S+k+1}, v{vHi}, v{32+k//2}")
    for k in range(0, nv_, 2): pk("mul", S + k, S + k, 48, mods="op_sel_hi:[1,0]")
    for k in range(0, nv_, 2): a(f"v_cvt_pk_bf16_f32 v{32+k//2}, v{S+k}, v{S+k+1}")
    for k in range(0, nv_, 2): a(f"v_lshlrev_b32 v{S+k}, 16, v{32+k//2}\nv_and_b32 v{S+k+1}, v{vHi}, v{32+k//2}")
    l2 = lambda k: (lambda: pk("mul", S + k, S + k, 50, mods="op_sel_hi:[1,0]"))
    if half:
        a(f"v_max3_f32 v32, v{S}, v{S+1}, v{S+2}\nv_max_f32 v32, v32, v{S+3}")
        l2(0)(); l2(2)()
        a("v_max_f32_dpp v32, v32, v32 row_ror:8 row_mask:0xf bank_mask:0xf")
        xlane(32, 33, "v_max_f32")
    else:
        a(f"v_max3_f32 v32, v{S}, v{S+1}, v{S+2}\nv_max3_f32 v33, v{S+3}, v{S+4}, v{S+5}\nv_max3_f32 v32, v32, v{S+6}, v{S+7}\nv_max_f32 v32, v32, v33")
        xlane(32, 33, "v_max_f32", ((l2(0), l2(2)), (l2(4), l2(6))))
    a("v_mul_f32 v32, v50, v32")
    for k in range(0, nv_, 2): pk("add", S + k, S + k, 32, mods="op_sel_hi:[1,0] neg_lo:[0,1] neg_hi:[0,1]")
    for k in range(nv_): a(f"v_exp_f32 v{S+k}, v{S+k}")
    pk("add", 34, S, S + 2)
    if half:
        a(f"v_cvt_pk_bf16_f32 v36, v{S}, v{S+1}\nv_add_f32 v33, v34, v35\nv_cvt_pk_bf16_f32 v37, v{S+2}, v{S+3}")
        a(f"ds_write_b64 v{vPw}, v[36:37] offset:{L_P}")
        a("v_add_f32_dpp v33, v33, v33 row_ror:8 row_mask:0xf bank_mask:0xf")
    else:
        for k in range(0, 4, 2): a(f"v_cvt_pk_bf16_f32 v{36+k//2}, v{S+k}, v{S+k+1}")
        pk("add", 34, 34, S + 4)
        for k in range(4, 8, 2): a(f"v_cvt_pk_bf16_f32 v{36+k//2}, v{S+k}, v{S+k+1}")
        pk("add", 34, 34, S + 6)
        a(f"ds_write_b128 v{vPw}, v[36:39] offset:{L_P}")
        a(f"v_add_f32 v33, v34, v35")
    xlane(33, 35, "v_add_f32")
    a(f"ds_write_b64 v{vMw}, v[32:33] offset:{L_ML}")
    signal(F_B2)
    stamp(6)
    if vpre: a("s_cmp_ge_u32 s35, 4\ns_cbranch_scc1 L_vdone")
    poll_lds(F_V, 4, 32, 10)
    a("\n".join(vreads))
    if vpre: a("L_vdone:")
    PW = 16; ML = 32; AC = 128
    poll_lds(F_B2, 4, 40, 11, "\n".join([f"ds_read_b128 v[{PW+4*w}:{PW+4*w+3}], v13 offset:{L_P+1024*w}" for w in range(4)] +
                                       [f"ds_read_b64 v[{ML+2*w}:{ML+2*w+1}], v{vMl} offset:{L_ML+128*w}" for w in range(4)]))
    stamp(7)
    fill = [f"v_max3_f32 v41, v{ML}, v{ML+2}, v{ML+4}\nv_max_f32 v41, v41, v{ML+6}",
            f"v_sub_f32 v40, v{ML}, v41\nv_sub_f32 v42, v{ML+2}, v41",
            f"v_sub_f32 v44, v{ML+4}, v41\nv_sub_f32 v46, v{ML+6}, v41",
            "v_exp_f32 v40, v40", "v_exp_f32 v42, v42", "v_exp_f32 v44, v44", "v_exp_f32 v46, v46",
            f"v_mul_f32 v43, v40, v{ML+1}\nv_fmac_f32 v43, v42, v{ML+3}"]
    for w in range(4):
        for t in range(2):
            r = AC + 8 * w + 4 * t
            a(f"v_mfma_f32_16x16x32_bf16 v[{r}:{r+3}], v[{VF+8*w+4*t}:{VF+8*w+4*t+3}], v[{PW+4*w}:{PW+4*w+3}], 0")
            a(fill[2 * w + t])
    a(f"v_fmac_f32 v43, v44, v{ML+5}\nv_fmac_f32 v43, v46, v{ML+7}")
    for k in range(4): a(f"v_cndmask_b32 v{AC+k}, v{AC+k}, v{AC+4+k}, s[18:19]")
    a("v_rcp_f32 v48, v43\nv_log_f32 v43, v43")
    for w in range(1, 4):
        for k in range(4): a(f"v_cndmask_b32 v{AC+8*w+k}, v{AC+8*w+k}, v{AC+8*w+4+k}, s[18:19]")
    for k in (0, 2): pk("mul", 16 + k, AC + k, 40, mods="op_sel_hi:[1,0]")
    for w in range(1, 4):
        for k in (0, 2): pk("fma", 16 + k, AC + 8 * w + k, 40 + 2 * w, 16 + k, mods="op_sel_hi:[1,0,1]")
    for k in (0, 2): pk("mul", 16 + k, 16 + k, 48, mods="op_sel_hi:[1,0]")
    tag4(16, 16, vT)
    a(f"""buffer_store_dwordx4 v[16:19], v{vOd}, s[56:59], s28 offen sc1
v_add_f32 v46, v41, v43
v_mov_b32 v47, v{vT}
s_mov_b64 exec, 0xff
{HST2} v[46:47], v{vLs}, s[56:59], s29 offen sc1
s_mov_b32 exec_lo, {hex((1<<OR)-1)}
{f"buffer_atomic_add v3, v{vOh}, s[56:59], s31 offen sc1" if ocnt else f"{HST} v{vT}, v{vOh}, s[56:59], s31 offen sc1"}
s_mov_b64 exec, -1
s_mov_b32 s60, s36
s_mov_b32 s61, s37""")
    if g3 is not None: signal(F_OP)
    stamp(8)
    if oack: a("s_waitcnt vmcnt(0)")
    if opos: poll_lds(F_PO, 4, 32, 25, sleep=2)
    if ocnt:
        Lc = newlab("OC"); Dc = newlab("OD")
        a(f"{Lc}:\ns_load_dword s64, s[60:61], 0 glc\ns_waitcnt lgkmcnt(0)\ns_cmp_eq_u32 s64, 32\ns_cbranch_scc1 {Dc}")
        spin(Lc, 13)
        a(f"{Dc}:")
    elif othr: poll_hints(2, 13, othr, hw=ohw)
    elif touch: a("s_branch L_no13\nT_13:\ns_setpc_b64 s[94:95]\nL_no13:")
    stamp(9)
    Lo = newlab("GO")
    a("s_mov_b64 vcc, -1")
    a(f"{Lo}:")
    for i in range(4): a(f"buffer_load_dwordx2 v[{32+2*i}:{33+2*i}], v{vLg}, s[56:59], s39 offen offset:{64*i} sc1")
    a("s_mov_b64 exec, vcc")
    for i in range(4): a(f"buffer_load_dwordx4 v[{G+4*i}:{G+4*i+3}], v{vL16}, s[56:59], s38 offen offset:{1024*i} sc1")
    if (g2 is not None or gs is not None) and not ogs: signal(F_OG)
    else: a("s_mov_b64 exec, -1")
    a("s_waitcnt vmcnt(4)")
    a("v_max3_f32 v40, v32, v34, v36\nv_max_f32 v40, v40, v38")
    a(f"v_xor_b32 v41, v33, v{vT}\nv_bitop3_b32 v41, v41, v35, v{vT} bitop3:0xf6")
    a("v_max_f32_dpp v40, v40, v40 row_ror:8 row_mask:0xf bank_mask:0xf")
    xlane(40, 42, "v_max_f32", ((lambda: a(f"v_bitop3_b32 v41, v41, v37, v{vT} bitop3:0xf6\nv_bitop3_b32 v41, v41, v39, v{vT} bitop3:0xf6"),), ()))
    for i in range(4): a(f"v_sub_f32 v{32+2*i}, v{32+2*i}, v40")
    for i in range(4): a(f"v_exp_f32 v{32+2*i}, v{32+2*i}")
    a("s_waitcnt vmcnt(0)")
    xs = [f"v_xor_b32 v{G+j}, v{G+j}, v{vTb+(j&3)}" for j in range(16)]
    a("v_add_f32 v43, v32, v34\nv_add_f32 v42, v36, v38\nv_add_f32 v43, v43, v42")
    a("\n".join(xs[0:2])); a("v_add_f32_dpp v43, v43, v43 row_ror:8 row_mask:0xf bank_mask:0xf")
    xlane(43, 42, "v_add_f32", ((lambda: a("\n".join(xs[2:6])),), (lambda: a("\n".join(xs[6:10])),)))
    a("v_rcp_f32 v43, v43"); a("\n".join(xs[10:16]))
    for k in (0, 2): pk("mul", 44 + k, G + k, 32, mods="op_sel_hi:[1,0]")
    for i in range(1, 4):
        for k in (0, 2): pk("fma", 44 + k, G + 4 * i + k, 32 + 2 * i, 44 + k, mods="op_sel_hi:[1,0,1]")
    ors = [f"v_or3_b32 v42, v{G}, v{G+1}, v{G+2}"] + [f"v_or3_b32 v42, v42, v{G+j}, v{G+j+1}" for j in range(3, 15, 2)] + [f"v_or_b32 v42, v42, v{G+15}", "v_lshl_or_b32 v42, v42, 24, v41"]
    def rscatter(v, fill=((), (), ())):
        for f in fill[0]: a(f)
        a(f"v_permlane32_swap_b32 v{v}, v{v+2}\nv_permlane32_swap_b32 v{v+1}, v{v+3}")
        a(f"v_add_f32 v{v}, v{v}, v{v+2}\nv_add_f32 v{v+1}, v{v+1}, v{v+3}")
        for f in fill[1]: a(f)
        a(f"v_permlane16_swap_b32 v{v}, v{v+1}\nv_add_f32 v{v}, v{v}, v{v+1}")
        for f in fill[2]: a(f)
    rscatter(44, (ors[0:2], ors[2:4], ors[4:6]))
    a("v_add_f32_dpp v44, v44, v44 row_ror:8 row_mask:0xf bank_mask:0xf")
    a("\n".join(ors[6:]))
    a("v_mul_f32 v44, v44, v43\nv_cvt_pk_bf16_f32 v44, v44, v44")
    a("v_cmp_ne_u32 vcc, 0, v42\ns_cbranch_vccnz L_oretry")
    a(f"ds_write_b32 v{vOw}, v44 offset:{L_O}")
    signal(F_O)
    if g2 is not None and ogs: signal(F_OG)
    stamp(11)
    a("s_branch L_exit")
    if align >= 2: a(".p2align 12")
    if touch: a("T_y:\ns_setpc_b64 s[94:95]")
    a("L_ypath:")
    roundbf(56, 4)
    normalize(F, 16)
    roundbf(F, 16)
    stats(F)
    normalize(56, 4)
    for k in range(4): a(f"v_cvt_pk_bf16_f32 v{60+k}, v{56+k}, v{56+k}")
    a(f"ds_write_b128 v16, v[60:63] offset:{L_Y}")
    signal(F_Y)
    stamp(3)
    a("s_branch L_lndone")

    a("L_oretry:")
    a("\n".join(xs))
    spin(Lo, 14)
    a("L_oaddr:")
    a(f"""s_and_b32 s14, s4, 3
s_lshl_b32 s14, s14, 2
s_add_u32 s14, s14, s3
s_lshl_b32 s14, s14, {QB+QRS}
s_lshr_b32 s15, s4, 2
s_lshl_b32 s15, s15, 5
s_add_u32 s15, s15, s5
s_lshr_b32 s15, s15, {6-QRS}
s_lshl_b32 s15, s15, {QB}
s_add_u32 s14, s14, s15
s_add_u32 s14, s14, {WS_QH}
s_add_u32 s60, s56, s14
s_addc_u32 s61, s57, 0
s_and_b32 s14, s4, 3
s_lshl_b32 s14, s14, 1
s_lshr_b32 s15, s4, 2
s_add_u32 s14, s14, s15
s_lshl_b32 s14, s14, 14
s_lshl_b32 s15, s3, 12
s_add_u32 s14, s14, s15
s_add_u32 s62, s14, {WS_QP}""")
    a(f"""s_lshr_b32 s14, s3, 1
s_and_b32 s15, s6, 1
s_lshl_b32 s15, s15, 1
s_and_b32 s16, s3, 1
s_add_u32 s15, s15, s16
s_lshl_b32 s16, s14, 2
s_lshr_b32 s17, s6, 4
s_add_u32 s16, s16, s17
s_lshl_b32 s16, s16, 2
s_add_u32 s16, s16, s15
s_lshl_b32 s16, s16, {ORS}
s_bfe_u32 s17, s6, 0x30001
s_lshl_b32 s17, s17, 2
s_add_u32 s17, s17, s7
s_lshr_b32 s17, s17, {5-ORS}
s_add_u32 s16, s16, s17
s_lshl_b32 s16, s16, {OB}
s_add_u32 s16, s16, {WS_OH}
s_add_u32 s36, s56, s16
s_addc_u32 s37, s57, 0
s_lshl_b32 s16, s14, 5
s_lshr_b32 s17, s6, 1
s_add_u32 s16, s16, s17
s_lshl_b32 s16, s16, 2
s_add_u32 s16, s16, s15
s_lshl_b32 s38, s16, 12
s_add_u32 s38, s38, {WS_OP}
s_lshl_b32 s39, s16, 8
s_add_u32 s39, s39, {WS_LS}""")
    a("s_setpc_b64 s[94:95]")
    a("L_H:")
    if touch and not nt: touches(['y'])
    a("""s_mov_b64 s[36:37], s[86:87]
s_load_dwordx2 s[40:41], s[0:1], 72
s_load_dwordx2 s[44:45], s[0:1], 80""")
    if stamps: a(f"v_writelane_b32 v{vStamp}, s96, 0")
    a(f"""s_mov_b32 s38, 7168
s_mov_b32 s39, 0x20000
s_mov_b32 s42, 2048
s_mov_b32 s43, 0x20000
s_mov_b32 s46, 4096
s_mov_b32 s47, 0x20000
v_and_b32 v16, 1, v1
v_lshrrev_b32 v17, 4, v1
v_lshl_add_u32 v16, v16, 2, v17
v_lshlrev_b32 v14, 1, v16
s_lshl_b32 s34, s4, 5
s_add_u32 s34, s34, s5
s_lshl_b32 s33, s34, 4
s_and_b32 s15, s33, 2047
v_and_b32 v16, 15, v1
v_lshlrev_b32 v16, 3, v16
s_lshl_b32 s17, s8, 7
s_waitcnt lgkmcnt(0)
buffer_load_ushort v{vXf}, v14, s[24:27], s33 offen
buffer_load_ushort v{vB2f}, v14, s[40:43], s15 offen
buffer_load_dwordx2 v[{vB1}:{vB1+1}], v16, s[36:39], s17 offen""")
    tagconsts()
    if ocnt:
        a(f"""s_and_b32 s14, s6, 15
s_lshl_b32 s14, s14, 2
s_add_u32 s14, s14, s7
s_cmp_ge_u32 s14, {8*OR}
s_cbranch_scc1 L_noclr
s_lshr_b32 s15, s14, {2+ORS}
s_lshl_b32 s15, s15, 2
s_lshr_b32 s17, s6, 4
s_add_u32 s15, s15, s17
s_lshl_b32 s15, s15, {2+ORS}
s_and_b32 s14, s14, {4*OR-1}
s_add_u32 s14, s14, s15
s_lshl_b32 s14, s14, 7
s_add_u32 s14, s14, {WS_OH}
s_mov_b64 exec, 1
buffer_atomic_swap v2, v2, s[56:59], s14 offen sc1
s_mov_b64 exec, -1
s_waitcnt vmcnt(0)
L_noclr:""")
    a(f"""v_lshrrev_b32 v80, 4, v1
v_and_b32 v81, 15, v1
v_lshlrev_b32 v81, 4, v81
v_lshl_add_u32 v80, v80, 14, v81
v_lshlrev_b32 v81, {QB}, v1
s_lshr_b32 s14, s6, 4
s_lshl_b32 s14, s14, 15
s_bfe_u32 s15, s6, 0x20002
s_lshl_b32 s15, s15, 12
s_add_u32 s14, s14, s15
s_lshl_b32 s15, s7, 10
s_add_u32 s14, s14, s15
s_and_b32 s15, s6, 3
s_lshl_b32 s15, s15, 8
s_add_u32 s14, s14, s15
s_add_u32 s30, s14, {WS_QP}
s_lshr_b32 s15, s6, 2
s_lshl_b32 s15, s15, {QB+QRS}
s_and_b32 s17, s6, 3
s_lshl_b32 s17, s17, 2
s_add_u32 s17, s17, s7
s_lshr_b32 s16, s17, {qhw.bit_length()-1}
s_lshl_b32 s16, s16, 6
s_add_u32 s15, s15, s16
s_and_b32 s17, s17, {qhw-1}
s_lshl_b32 s17, s17, 2
s_add_u32 s15, s15, s17
s_add_u32 s31, s15, {WS_QH}""")
    if qdir == 1: publish_part(L_QPART, F_Q, 5, 80, "s_nop 0")
    else: publish_part(L_QPART, F_Q, 5, 80, ("s_mov_b64 exec, -1" if QR == 64 else f"s_mov_b32 exec_lo, {hex((1<<QR)-1)}") + f"\n{HST} v{vT}, v81, s[56:59], s31 offen sc1")
    stamp(3)
    if touch and not nt: touches([12, 16, 18])
    if tpat: a("v_bfe_u32 v48, v1, 2, 3\nv_lshlrev_b32 v48, 6, v48\nv_and_b32 v49, 3, v1\nv_lshl_add_u32 v48, v49, 2, v48")
    else: a("v_and_b32 v48, 31, v1\nv_lshlrev_b32 v48, 4, v48")
    a(f"""s_nop 0
s_lshl_b32 s52, s34, 5
s_add_u32 s52, s52, {WS_FP}
s_add_u32 s53, s52, {32*fps}
v_lshrrev_b32 v50, 1, v1
v_mul_u32_u24 v50, {fps}, v50
v_and_b32 v51, 1, v1
v_lshl_add_u32 v50, v51, 4, v50
s_waitcnt vmcnt(2)
v_lshlrev_b32 v{vXf}, 16, v{vXf}
v_lshlrev_b32 v{vB2f}, 16, v{vB2f}
v_add_f32 v{vXf}, v{vXf}, v{vB2f}
v_mov_b32 v44, 0
v_mov_b32 v45, 0
v_mov_b32 v46, 0
v_mov_b32 v47, 0
s_cmp_eq_u32 s9, 0
s_cbranch_scc1 L_hwrite
s_lshl_b32 s62, s8, 11
s_add_u32 s62, s62, {WS_HP}
s_lshl_b32 s15, s7, 9
s_add_u32 s30, s62, s15""")
    unpack(vB1, 76, 2)
    if hloc:
        a(f"s_add_u32 s31, s30, {WS_HL - WS_HP}\ns_add_u32 s63, s62, {WS_HL - WS_HP}\ns_add_u32 s60, s56, s63\ns_addc_u32 s61, s57, 0\ns_and_b32 s28, s12, 0xff\ns_mov_b32 s17, 0")
        publish_part(L_HPART, F_H, 12, vL16, f"buffer_store_dwordx4 v[96:99], v{vL16}, s[56:59], s31 offen")
        stamp(4)
        L1 = newlab("HA"); L2 = newlab("HB")
        a(f"{L1}:")
        for k in range(4): a(f"s_load_dword s{64+k}, s[60:61], {512*k} glc")
        a(f"s_add_u32 s17, s17, 1\ns_cmp_ge_u32 s17, {hloc}\ns_cbranch_scc1 {L2}\ns_waitcnt lgkmcnt(0)")
        a("s_xor_b32 s64, s64, s28\ns_xor_b32 s65, s65, s28\ns_xor_b32 s66, s66, s28\ns_xor_b32 s67, s67, s28\ns_or_b32 s64, s64, s65\ns_or_b32 s66, s66, s67\ns_or_b32 s64, s64, s66\ns_and_b32 s64, s64, 0xff")
        a(f"s_cbranch_scc1 {L1}")
        for i in range(2): a(f"buffer_load_dwordx4 v[{G+4*i}:{G+4*i+3}], v{vL16}, s[56:59], s63 offen offset:{1024*i} sc1")
        stamp(5)
        a("s_waitcnt vmcnt(0)")
        untag(G, 2, 42)
        a(f"v_cmp_ne_u32 vcc, 0, v42\ns_cbranch_vccz L_hok\ns_branch {L1}\n{L2}:\ns_waitcnt lgkmcnt(0)")
    else:
        a(f"s_lshl_b32 s14, s8, 7\ns_add_u32 s14, s14, {WS_HH}\ns_add_u32 s60, s56, s14\ns_addc_u32 s61, s57, 0\ns_lshl_b32 s17, s7, 2\ns_add_u32 s31, s14, s17")
        publish_part(L_HPART, F_H, 12, vL16, f"s_mov_b32 exec_lo, 1\n{HST} v{vT}, v2, s[56:59], s31 offen sc1")
        stamp(4)
        poll_hints(0, 15)
        stamp(5)
    Lh = newlab("GH")
    a(f"{Lh}:")
    for i in range(2): a(f"buffer_load_dwordx4 v[{G+4*i}:{G+4*i+3}], v{vL16}, s[56:59], s62 offen offset:{1024*i} sc1")
    a("s_waitcnt vmcnt(0)")
    untag(G, 2, 42)
    retry_if(42, Lh, 16)
    a("L_hok:")
    stamp(6)
    pk("add", G, G, G + 4); pk("add", G + 2, G + 2, G + 6)
    for k in range(4): a(f"v_mov_b32 v{G+4+k}, v{G+k}")
    for k in range(4): a(f"v_permlane32_swap_b32 v{G+k}, v{G+4+k}")
    pk("add", G, G, G + 4); pk("add", G + 2, G + 2, G + 6)
    roundbf(G, 4)
    pk("add", G, G, 76); pk("add", G + 2, G + 2, 78)
    roundbf(G, 4)
    a("s_mov_b32 s14, 0x3d372713\ns_mov_b32 s15, 0xc0135761")
    for k in (0, 2): pk("mul", 24 + k, G + k, G + k)
    for k in (0, 2): pk("mul", 24 + k, 24 + k, G + k)
    for k in range(4): a(f"v_fma_f32 v{24+k}, s14, v{24+k}, v{G+k}")
    for k in range(4): a(f"v_mul_f32 v{24+k}, s15, v{24+k}")
    for k in range(4): a(f"v_exp_f32 v{24+k}, v{24+k}")
    for k in range(4): a(f"v_add_f32 v{24+k}, 1.0, v{24+k}")
    for k in range(4): a(f"v_rcp_f32 v{24+k}, v{24+k}")
    for k in (0, 2): pk("mul", 24 + k, 24 + k, G + k)
    for k in range(4): a(f"v_cvt_pk_bf16_f32 v{44+k}, v{24+k}, v{24+k}")
    a("L_hwrite:")
    if tpat:
        for k in range(4): a(f"ds_write_b32 v48, v{44+k} offset:{L_H+16*k}")
    else: a(f"ds_write_b128 v48, v[44:47] offset:{L_H}")
    signal(F_HD)
    stamp(12)
    if tall == 2: a("s_waitcnt lgkmcnt(0)\ns_barrier")
    poll_lds(F_FP, 4, 32, 18, sleep=0 if tall == 2 else 1)
    stamp(7)
    if fdelay: a(f"s_sleep {fdelay}")
    Lf = newlab("GF"); Ld = newlab("GD")
    sets = [64 + 8 * k for k in range(fsets)]
    def fissue(R):
        for i in range(2): a(f"buffer_load_dwordx4 v[{R+4*i}:{R+4*i+3}], v50, s[56:59], s{52+i} offen sc1")
    for R in sets[:-1]: fissue(R)
    a(f"{Lf}:")
    if fastfin:
        for k, R in enumerate(sets):
            fissue(sets[k - 1])
            a(f"s_waitcnt vmcnt({2*(fsets-1)})")
            for j in range(8): a(f"v_xor_b32 v{R+j}, v{R+j}, v{vTb+(j&3)}")
            pk("add", 44, R, R + 4); pk("add", 46, R + 2, R + 6)
            rscatter(44, ((f"v_or3_b32 v42, v{R}, v{R+1}, v{R+2}", f"v_or3_b32 v42, v42, v{R+3}, v{R+4}"),
                          (f"v_or3_b32 v42, v42, v{R+5}, v{R+6}", f"v_or_b32 v42, v42, v{R+7}"),
                          ("v_lshlrev_b32 v42, 24, v42", "v_cmp_ne_u32 vcc, 0, v42")))
            a("v_add_f32_dpp v44, v44, v44 quad_perm:[2,3,0,1] row_mask:0xf bank_mask:0xf")
            a(f"s_cbranch_vccz {Ld}")
        spin(Lf, 17)
        a(f"{Ld}:")
        stamp(13)
        R = 44
        a("s_nop 0")
        a(f"v_add_f32_dpp v{R}, v{R}, v{R} row_ror:4 row_mask:0xf bank_mask:0xf")
        a(f"v_add_f32_dpp v{R}, v{R}, v{R} row_ror:8 row_mask:0xf bank_mask:0xf")
    else:
        for k, R in enumerate(sets):
            fissue(sets[k - 1])
            a(f"s_waitcnt vmcnt({2*(fsets-1)})")
            untag(R, 2, 42)
            pk("add", 44, R, R + 4); pk("add", 46, R + 2, R + 6)
            a(f"v_cmp_ne_u32 vcc, 0, v42\ns_cbranch_vccz {Ld}")
        spin(Lf, 17)
        a(f"{Ld}:")
        stamp(13)
        R = 44
        rscatter(R)
        for m in ("quad_perm:[2,3,0,1]", "row_ror:4", "row_ror:8"):
            a(f"v_add_f32_dpp v{R}, v{R}, v{R} {m} row_mask:0xf bank_mask:0xf")
    a(f"s_mov_b32 exec_lo, 0x00030003\ns_mov_b32 exec_hi, 0x00030003")
    a(f"v_add_f32 v{R}, v{R}, v{vXf}\nv_cvt_pk_bf16_f32 v{R}, v{R}, v{R}\nbuffer_store_short v{R}, v14, s[44:47], s33 offen {oflags}")
    a(f"s_cmp_lg_u32 s2, 0\ns_cbranch_scc1 L_noep\ns_add_u32 s11, s11, 1\nv_mov_b32 v{R+1}, s11\ns_mov_b64 exec, 1\nbuffer_store_dword v{R+1}, v2, s[56:59], 0 offen {oflags}\nL_noep:\ns_mov_b64 exec, -1")
    stamp(14, True)
    if fixdur:
        a(f"s_add_u32 s96, s96, {fixdur}\nL_fix:\ns_memrealtime s[98:99]\ns_waitcnt lgkmcnt(0)\ns_sub_u32 s98, s98, s96\ns_cmp_lt_i32 s98, 0\ns_cbranch_scc1 L_fix")
    a("L_exit:")
    if stamps:
        a(f"""s_waitcnt vmcnt(0)
v_lshrrev_b32 v20, 6, v0
v_lshlrev_b32 v20, 6, v20
v_lshl_add_u32 v20, v1, 2, v20
s_lshl_b32 s14, s2, 10
s_add_u32 s14, s14, {WS_ST}
s_mov_b64 exec, 0xffff
buffer_store_dword v{vStamp}, v20, s[56:59], s14 offen""")
    a("L_end:\ns_endpgm")
    a("L_fail:")
    a("""s_load_dwordx2 s[48:49], s[0:1], 88
s_mov_b32 s50, 256
s_mov_b32 s51, 0x20000
s_lshl_b32 s14, s15, 2
v_mov_b32 v20, s2
v_add_u32 v20, 1, v20
s_waitcnt lgkmcnt(0)
s_mov_b64 exec, 1
buffer_store_dword v20, v2, s[48:51], s14 offen
s_endpgm""")
    if post: a(f".fill {post}, 4, 0xbf800000")
    nv = 168
    a(f""".section .rodata,"a"
.p2align 6
.amdhsa_kernel {KNAME}
  .amdhsa_next_free_vgpr {nv}
  .amdhsa_next_free_sgpr 102
  .amdhsa_accum_offset {nv}
  .amdhsa_group_segment_fixed_size 0
  .amdhsa_kernarg_size 104
  .amdhsa_user_sgpr_count 2
  .amdhsa_user_sgpr_kernarg_segment_ptr 1
  .amdhsa_system_sgpr_workgroup_id_x 1
  .amdhsa_float_denorm_mode_32 3
.end_amdhsa_kernel""")
    return a.finish()

if __name__ == "__main__":
    out = sys.argv[1] if len(sys.argv) > 1 else "x.s"
    open(out, "w").write(gen())
```

```python
import sys
from asmlib import Asm

KNAME = "parallel_sum__sliding_block_cached__mixer_channel_mlp__decode_kernel"

WS_HH = 0x1000; WS_QH = 0x4000; WS_OH = 0x8000; WS_LS = 0x18000; WS_QP = 0x28000
WS_HP = 0x48000; WS_HL = 0x64000; WS_FP = 0x64000; WS_OP = 0x100000; WS_ST = 0x200000
WS_BYTES = 0x10000000
KSTR = 1088; VSTR = 1152
L_X = 0
L_Y = L_X + 2048; L_QPART = L_Y + 2048; L_HPART = L_QPART + 2048
L_QBUF = L_HPART + 2048; L_P = L_QBUF + 2304; L_ML = L_P + 4096
L_O = L_ML + 512; L_H = L_O + 512; L_F = L_H + 512
L_K = L_F + 128; L_V = L_K + 32 * KSTR; L_END = L_V + 32 * VSTR
L_FIN = L_K
F_X, F_Y, F_Q, F_K, F_V, F_H, F_B1, F_B2, F_O, F_HD, F_QG, F_OG, F_FP, F_B3, F_OP, F_K2, F_PQ, F_PO = [L_F + 4 * i for i in range(18)]
TO_LIMIT = 1 << 20
NW = 9

def gen(W=(5, 5, 5, 6, 5, 5), stamps=0, ldflags="nt", order="qkv1o2", qstart=5, p1start=0, cprio=3, QR=4, OR=4, g1=None, g2=44,
        sonly=0, fsets=1, fack=1, hloc=0, vpre=1, hat=1, tall=2, fdelay=0, align=2, touch=1, nt=0, tlb=0, oflags='', WE=None, late=4, pre=832, post=0, g3=None, hsleep=0, oack=1, qwait=1, rq=3, r1=2, othr=16, qthr=8, ogs=0, fakebal=0, half=1, tpat=1, pre2=1, fastfin=0, fixdur=0, qpos=None, opos=None, maxper=8, gs=None, wl=2, gq=None, wrot=0, w1t=0, ksw=1, vsw=2, kvr=0, kvc=8, qdir=0, fps=8192, ops=0, g2n=4, gsl=1, ocnt=0, qhw=16, ohw=16, flate=0, bp=None, bw=8, bt=480, bgate=1, fearly=0, ksl=2, xt=0):
    a = Asm()
    if isinstance(W, int): W = [W] * 48
    if len(W) == 6: W = [w for w in W for _ in range(8)]
    if isinstance(WE, int): WE = [WE] * 48
    if WE and len(WE) == 6: WE = [w for w in WE for _ in range(8)]
    lab = [0]
    HST = "buffer_atomic_swap" if hat else "buffer_store_dword"
    HST2 = "buffer_atomic_swap_x2" if hat else "buffer_store_dwordx2"
    def newlab(p="L"):
        lab[0] += 1
        return f"{p}_{lab[0]}"
    vStamp = 160
    stubs = (2, 22, 4, 19, 8, 9, 11, 13, 12, 16, 18, 32) if touch else ()
    def touches(codes):
        for c in codes: a(f"s_call_b64 s[94:95], T_{c}")
    def stamp(k, light=False):
        if stamps == 1 or (stamps == 2 and light):
            a(f"s_memrealtime s[98:99]\ns_waitcnt lgkmcnt(0)\nv_writelane_b32 v{vStamp}, s98, {k}")
    def signal(flag):
        a(f"s_mov_b64 exec, 1\nds_add_u32 v2, v3 offset:{flag}\ns_mov_b64 exec, -1")
    def spin(L, code):
        a(f"s_add_u32 s10, s10, 1\ns_cmp_lt_u32 s10, {TO_LIMIT}\ns_cbranch_scc1 {L}\ns_mov_b32 s15, {code}\ns_branch L_fail")
        if code in stubs: a(f"T_{code}:\ns_setpc_b64 s[94:95]")
    def poll_lds(flag, n, vt, code, spec=None, sleep=0):
        L = newlab("PL"); D = newlab("PD")
        a(f"{L}:\nds_read_b32 v{vt}, v2 offset:{flag}")
        if spec: a(spec)
        a(f"s_waitcnt lgkmcnt(0)\nv_readfirstlane_b32 s14, v{vt}\ns_cmp_ge_u32 s14, {n}\ns_cbranch_scc1 {D}")
        if sleep: a(f"s_sleep {sleep}")
        spin(L, code)
        a(f"{D}:")
    def red64(v, s):
        for m in ("quad_perm:[1,0,3,2] row_mask:0xf", "quad_perm:[2,3,0,1] row_mask:0xf", "row_half_mirror row_mask:0xf",
                  "row_mirror row_mask:0xf", "row_bcast:15 row_mask:0xa", "row_bcast:31 row_mask:0xc"):
            a(f"v_add_f32_dpp v{v}, v{v}, v{v} {m} bank_mask:0xf")
        a(f"v_readlane_b32 s{s}, v{v}, 63")
    def nonce():
        a("s_mul_i32 s12, s11, 0x9E3779B1\ns_add_u32 s12, s12, 0x85EBCA77\ns_mov_b32 s13, s12")
        a("s_mov_b32 s20, 0x07060500\ns_mov_b32 s21, 0x07060501\ns_mov_b32 s22, 0x07060502\ns_mov_b32 s23, 0x07060503")
    def tag4(src, dst, vT):
        for k in range(4): a(f"v_perm_b32 v{dst+k}, v{src+k}, v{vT}, s{20+k}")
    def pk(op, d, x, y, z=None, mods=""):
        zz = f", v[{z}:{z+1}]" if z is not None else ""
        a(f"v_pk_{op}_f32 v[{d}:{d+1}], v[{x}:{x+1}], v[{y}:{y+1}]{zz} {mods}")

    a(f"; @launch grid=(256,1,1) block=({64*(NW+nt)},1,1) lds={L_END}")
    a('.amdgcn_target "amdgcn-amd-amdhsa--gfx950"')
    a(f".text\n.globl {KNAME}")
    if align: a(".p2align 12\n.fill {pre}, 4, 0xbf800000".replace("{pre}", str(pre)))
    a(f".p2align 8\n.type {KNAME},@function\n{KNAME}:")
    a("""s_cmp_ge_u32 s2, 256
s_cbranch_scc1 L_end
s_load_dwordx16 s[72:87], s[0:1], 0
s_load_dwordx2 s[56:57], s[0:1], 96""")
    if stamps:
        a(f"s_memrealtime s[96:97]\nv_mov_b32 v{vStamp}, 0")
    if fixdur: a("s_memrealtime s[96:97]")
    if bp is not None: a("s_memrealtime s[88:89]")
    a(f"""v_lshrrev_b32 v4, 6, v0
v_and_b32 v1, 63, v0
v_readfirstlane_b32 s3, v4
v_mov_b32 v2, 0
v_mov_b32 v3, 1
s_and_b32 s4, s2, 7
s_lshr_b32 s5, s2, 3
s_lshr_b32 s14, s5, 2
s_lshl_b32 s15, s14, 3
s_add_u32 s6, s4, {rq}
s_and_b32 s6, s6, 7
s_add_u32 s6, s6, s15
s_add_u32 s8, s4, {r1}
s_and_b32 s8, s8, 7
s_add_u32 s8, s8, s15
s_and_b32 s7, s5, 3
s_cmp_lt_u32 s14, 7
s_cselect_b32 s9, 1, 0
s_mov_b32 s10, 0
s_mov_b32 s58, {WS_BYTES}
s_mov_b32 s59, 0x20000
s_cmp_lt_u32 s3, 4
s_cbranch_scc1 L_S""")
    if nt:
        a("s_cmp_lt_u32 s3, 9\ns_cbranch_scc1 L_notw")
        if tlb: a("s_load_dwordx2 s[52:53], s[0:1], 64")
        a("s_waitcnt lgkmcnt(0)\ns_barrier")
        groups = {1: [['y', 19, 8, 11, 13, 12, 2, 4]], 2: [['y', 8, 13, 2], [19, 11, 12, 4]], 3: [['y', 11, 2], [19, 13, 4], [8, 12, 22 if g2 is not None else 4]]}[nt]
        for k, grp in enumerate(groups):
            if k + 1 < len(groups): a(f"s_cmp_lg_u32 s3, {9+k}\ns_cbranch_scc1 L_tw{k+1}")
            if tlb and k == 0:
                a(f"""s_lshl_b32 s14, s4, 22
s_add_u32 s14, s14, {12288*256}
s_load_dword s64, s[36:37], s14
s_load_dword s65, s[40:41], s14
s_mul_i32 s14, s7, {256*7168}
s_load_dword s66, s[44:45], s14
s_add_u32 s14, s14, {255*7168}
s_load_dword s67, s[44:45], s14
s_lshl_b32 s14, s6, 17
s_load_dword s68, s[48:49], s14
s_lshl_b32 s14, s8, 17
s_min_u32 s14, s14, {3583*2048}
s_load_dword s69, s[52:53], s14""")
            touches(grp)
            a("s_endpgm")
            if k + 1 < len(groups): a(f"L_tw{k+1}:")
        a("L_notw:")
    vL16 = 4
    if cprio: a(f"s_setprio {cprio}")
    a(f"""s_sub_u32 s3, s3, 4
s_mov_b32 s26, 4096
s_mov_b32 s27, 0x20000
v_lshlrev_b32 v{vL16}, 4, v1
v_lshlrev_b32 v16, 3, v1
s_and_b32 s16, s3, 1
s_lshl_b32 s14, s16, 11
s_lshl_b32 s15, s7, 9
s_add_u32 s15, s15, s14
v_lshlrev_b32 v17, 2, v1
s_mov_b32 exec_hi, 0
ds_write_b32 v17, v2 offset:{L_F}
s_mov_b64 exec, -1
s_cmp_eq_u32 s3, 4
s_waitcnt lgkmcnt(0)
s_mov_b64 s[24:25], s[72:73]
s_barrier
s_cbranch_scc1 L_C
buffer_load_dwordx4 v[20:23], v{vL16}, s[24:27], s14 offen
buffer_load_dwordx4 v[24:27], v{vL16}, s[24:27], s14 offen offset:1024
buffer_load_dwordx2 v[28:29], v16, s[24:27], s15 offen
s_branch L_C""")

    a("L_S:")
    a("s_load_dwordx2 s[52:53], s[0:1], 64")
    a(f"""s_mov_b32 s34, {1024*8192}
s_mov_b32 s35, 0x20000
s_mov_b32 s38, {2*4*16384*256}
s_mov_b32 s39, 0x20000
s_mov_b32 s42, {2*4*16384*256}
s_mov_b32 s43, 0x20000
s_cmp_lg_u32 s9, 0
s_cselect_b32 s46, {1024*7168}, 0
s_cselect_b32 s54, {3584*2048}, 0
s_mov_b32 s47, 0x20000
s_mov_b32 s50, {4096*2048}
s_mov_b32 s51, 0x20000
s_mov_b32 s55, 0x20000
s_lshl_b32 s14, s7, 8
s_lshl_b32 s15, s3, 6
s_add_u32 s14, s14, s15
s_lshl_b32 s60, s14, 13
s_lshl_b32 s15, s6, 7
s_add_u32 s60, s60, s15
s_mul_i32 s63, s14, 7168
s_lshl_b32 s15, s8, 7
s_add_u32 s63, s63, s15""")
    if w1t:
        if w1t == 1: a("s_lshr_b32 s15, s8, 2\ns_and_b32 s16, s8, 3")
        else: a("s_mul_i32 s16, s8, 4682\ns_lshr_b32 s16, s16, 16\ns_mul_i32 s15, s16, 14\ns_sub_u32 s15, s8, s15")
        a("s_lshl_b32 s16, s16, 2\ns_add_u32 s16, s16, s7\ns_lshl_b32 s16, s16, 2\ns_add_u32 s16, s16, s3\ns_mul_i32 s63, s16, 114688\ns_lshl_b32 s15, s15, 9\ns_add_u32 s63, s63, s15")
    if tall: a("s_lshl_b32 s14, s7, 9\ns_lshl_b32 s15, s3, 15\ns_add_u32 s14, s14, s15")
    else: a("s_lshl_b32 s14, s14, 1")
    a(f"""s_lshl_b32 s64, s6, 17
s_add_u32 s64, s64, s14
s_lshl_b32 s65, s8, 17
s_add_u32 s65, s65, s14
s_lshl_b32 s61, s4, 22
{"s_lshl_b32 s15, s5, 10" if kvc != 8 else ""}
{"s_add_u32 s61, s61, s15" if not kvc else f"s_mul_i32 s69, s3, {kvc*8*1024}" if kvc != 8 else ""}
{"" if kvc in (0, 8) else "s_add_u32 s69, s69, s15"}
{"s_lshl_b32 s15, s3, 18" if not kvr else "s_lshl_b32 s69, s3, 3"}
{"s_add_u32 s61, s61, s15" if not kvr else {1: "s_add_u32 s69, s69, s4", 2: "s_lshl_b32 s15, s4, 2", 3: "s_mul_i32 s15, s4, 5", 0: "s_nop 0"}[kvr & 3]}
{"s_add_u32 s69, s69, s15" if (kvr & 3) >= 2 else ""}
s_add_u32 s61, s61, {12288*256}
s_mov_b32 s62, s61
s_mul_i32 s66, s3, {8*KSTR}
s_add_u32 s66, s66, {L_K}
s_mul_i32 s67, s3, {8*VSTR}
s_add_u32 s67, s67, {L_V}""")
    vOffQ, vOff1, vOffO, vOffK, vOffV = 18, 19, 4, 5, 6
    vLdsX, vLdsO, vPart, vFP, vFin, vT = 7, 12, 13, 14, 15, 17
    vM = 8
    a(f"""v_lshrrev_b32 v20, 4, v1
v_bfe_u32 v21, v1, 3, 1
v_and_b32 v22, 7, v1
v_lshl_add_u32 v23, v20, 2, v21
v_lshlrev_b32 v24, 4, v22
v_lshl_add_u32 v{vOffQ}, v23, 13, v24
v_mul_u32_u24 v25, 7168, v23
v_add_u32 v{vOff1}, v25, v24
v_and_b32 v25, 15, v1""")
    if w1t: a(f"v_mul_u32_u24 v{vOff1}, 28672, v20\nv_lshl_add_u32 v{vOff1}, v25, 4, v{vOff1}")
    if tall:
        a(f"v_lshlrev_b32 v{vOffO}, 4, v25\nv_lshl_add_u32 v{vOffO}, v20, {11 if tpat else 13}, v{vOffO}")
        if tpat == 2:
            a(f"s_bfe_u32 s69, s5, 0x10002\ns_lshl_b32 s14, s69, 8\nv_add_u32 v{vOffO}, s14, v{vOffO}\nv_xor_b32 v63, 0x100, v{vOffO}")
    else: a(f"v_lshl_add_u32 v{vOffO}, v23, 11, v24")
    for sw, vo in ((ksw, vOffK), (vsw, vOffV)):
        if sw == 0: a(f"v_lshlrev_b32 v{vo}, 4, v1")
        else:
            if sw == 1: a("v_xor_b32 v26, v25, v20")
            else: a(f"v_lshlrev_b32 v26, {sw-1}, v20\nv_xor_b32 v26, v25, v26")
            a(f"v_lshlrev_b32 v26, 4, v26\nv_lshl_add_u32 v{vo}, v20, 8, v26")
    DQ, D1, D2, DO = 64, 96, 128, 64
    if ' ' in order:
        seq = []; cntr = {}
        for tok in order.split():
            t, k = tok[0], int(tok[1:])
            for _ in range(k):
                seq.append((t, cntr.get(t, 0))); cntr[t] = cntr.get(t, 0) + 1
        assert all(v == 8 for v in cntr.values()) and len(seq) == 48
    else:
        seq = [(t, i) for t in order for i in range(8)]
    endpos = {t: n + 1 for n, (t, i) in enumerate(seq) if i == 7}
    info = {'q': (32, 60, vOffQ, 8192, DQ), '1': (44, 63, vOff1, 7168, D1), '2': (52, 65, vOffO, 2048, D2), 'o': (48, 64, vOffO, 2048, DO),
            'k': (36, 61, vOffK, None, None), 'v': (40, 62, vOffV, None, None)}
    def issue(t, i):
        srd, so, vo, stride, D = info[t]
        if t in 'kv' and kvr:
            base, st = (66, KSTR) if t == 'k' else (67, VSTR)
            ii = (i + 4) & 7 if (kvr >= 4 and t == 'v') else i
            a(f"s_add_u32 s16, s69, {ii}\ns_and_b32 s16, s16, 31\ns_lshl_b32 s16, s16, 15\ns_add_u32 s16, s16, s{so}\ns_add_u32 m0, s{base}, {ii*st}")
            a(f"buffer_load_dwordx4 v{vo}, s[{srd}:{srd+3}], s16 offen {ldflags} lds")
        elif t in 'kv' and kvc == 8:
            base, st = (66, KSTR) if t == 'k' else (67, VSTR)
            if i > 0: a(f"s_add_u32 s{so}, s{so}, s92")
            a(f"s_add_u32 s16, s{88 + (i & 3)}, s{so}\ns_add_u32 m0, s{base}, {i*st}")
            a(f"buffer_load_dwordx4 v{vo}, s[{srd}:{srd+3}], s16 offen {ldflags} lds")
        elif t in 'kv' and kvc:
            base, st = (66, KSTR) if t == 'k' else (67, VSTR)
            if i > 0: a(f"s_add_u32 s{so}, s{so}, 32768")
            a(f"s_add_u32 s16, s69, {(kvc*i*1024) & 0x7fff}\ns_and_b32 s16, s16, 0x7c00\ns_add_u32 s16, s16, s{so}\ns_add_u32 m0, s{base}, {i*st}")
            a(f"buffer_load_dwordx4 v{vo}, s[{srd}:{srd+3}], s16 offen {ldflags} lds")
        elif t in 'kv':
            if i > 0: a(f"s_add_u32 s{so}, s{so}, 32768")
            base, st = (66, KSTR) if t == 'k' else (67, VSTR)
            a(f"s_add_u32 m0, s{base}, {i*st}")
            a(f"buffer_load_dwordx4 v{vo}, s[{srd}:{srd+3}], s{so} offen {ldflags} lds")
        elif tall and t in '2o':
            if i > 0 and i % 2 == 0: a(f"s_add_u32 s{so}, s{so}, {8192 if tpat else 2048}")
            if tpat == 2: a(f"buffer_load_dwordx4 v[{D+4*i}:{D+4*i+3}], v{63 if i & 1 else vo}, s[{srd}:{srd+3}], s{so} offen {ldflags}")
            else: a(f"buffer_load_dwordx4 v[{D+4*i}:{D+4*i+3}], v{vo}, s[{srd}:{srd+3}], s{so} offen offset:{256*(i&1)} {ldflags}")
        elif w1t and t == '1':
            if i > 0 and i % 2 == 0: a(f"s_add_u32 s{so}, s{so}, 7168")
            a(f"buffer_load_dwordx4 v[{D+4*i}:{D+4*i+3}], v{vo}, s[{srd}:{srd+3}], s{so} offen offset:{256*(i&1)} {ldflags}")
        elif wrot and t in 'q1':
            rs = {1: "s_lshr_b32 s16, s5, 2", 2: "s_mov_b32 s16, s4", 3: "s_lshr_b32 s16, s5, 2\ns_add_u32 s16, s16, s4"}[wrot]
            a(f"{rs}\ns_add_u32 s16, s16, {i>>1}\ns_and_b32 s16, s16, 3\ns_mul_i32 s16, s16, {16*stride}\ns_add_u32 s16, s16, {2*(i&1)*stride}\ns_add_u32 s16, s16, s{so}")
            a(f"buffer_load_dwordx4 v[{D+4*i}:{D+4*i+3}], v{vo}, s[{srd}:{srd+3}], s16 offen {ldflags}")
        elif fakebal and t == '1' and i >= 6:
            a(f"buffer_load_dwordx4 v[{D+4*i}:{D+4*i+3}], v{vo}, s[{srd}:{srd+3}], s{so} offen offset:0")
        else:
            if i > 0:
                rowof = lambda j: 16 * (j >> 1) + 2 * (j & 1)
                a(f"s_add_u32 s{so}, s{so}, {(rowof(i) - rowof(i-1)) * stride}")
            a(f"buffer_load_dwordx4 v[{D+4*i}:{D+4*i+3}], v{vo}, s[{srd}:{srd+3}], s{so} offen {'' if (fakebal and t == '1' and i == 5) else ldflags}")
    DUP, A0, A1, AC0, AC1, X = 20, 36, 40, 52, 56, 60
    def buildA(i, h):
        Ar = (A0, A1)[h]
        src = DUP + 4 * (i >> 1) + 2 * (i & 1) + h
        for r in range(4): a(f"v_and_b32 v{Ar+r}, v{src}, v{vM+r}")
    def mm(D, i, first, last):
        for h, (Ar, AC) in enumerate(((A0, AC0), (A1, AC1))):
            c = "0" if first else f"v[{AC}:{AC+3}]"
            a(f"v_mfma_f32_16x16x32_bf16 v[{AC}:{AC+3}], v[{Ar}:{Ar+3}], v[{D+4*i}:{D+4*i+3}], {c}")
            if not last: buildA(i + 1, h)
    AT = [36, 40, 44, 48]
    def buildT(j, rs=range(4)):
        for r in rs: a(f"v_and_b32 v{AT[j]+r}, v{DUP+j}, v{vM+r}")
    def mmT(D, i, first):
        AC = (AC0, AC1)[i & 1]
        c = "0" if first else f"v[{AC}:{AC+3}]"
        a(f"v_mfma_f32_16x16x32_bf16 v[{AC}:{AC+3}], v[{AT[i>>1]}:{AT[i>>1]+3}], v[{D+4*i}:{D+4*i+3}], {c}")
        j = (i >> 1) + 1
        if j < 4: buildT(j, (0, 1) if i % 2 == 0 else (2, 3))
    def dupreads(vaddr, base, n=4):
        return "\n".join(f"ds_read_b128 v[{DUP+4*t}:{DUP+4*t+3}], v{vaddr} offset:{base+64*t}" for t in range(n))
    def combine():
        for r in range(4): a(f"v_cndmask_b32 v{X+r}, v{AC0+r}, v{AC1+r}, s[18:19]")
        for r in range(4): a(f"v_add_f32_dpp v{X+r}, v{X+r}, v{X+r} row_ror:8 row_mask:0xf bank_mask:0xf")
    a("s_waitcnt lgkmcnt(0)\ns_mov_b64 s[32:33], s[78:79]")
    if bp is not None: a("s_mov_b32 s93, s88")
    if not pre2: a("s_barrier")
    if fakebal:
        a("s_cmp_lg_u32 s9, 0\ns_cselect_b32 s44, s44, s36\ns_cselect_b32 s45, s45, s37\ns_cselect_b32 s52, s52, s40\ns_cselect_b32 s53, s53, s41\ns_cselect_b32 s46, s46, 0x2000000\ns_cselect_b32 s54, s54, 0x2000000")
    if stamps: a(f"v_writelane_b32 v{vStamp}, s96, 0")
    stamp(1)
    st = dict(landed=0, setup=False)
    def setup():
        if st['setup']: return
        st['setup'] = True
        a("s_load_dword s11, s[56:57], 0")
        if kvc == 8:
            a("s_lshl_b32 s88, s5, 10\ns_mov_b32 s92, 0x8000")
            for k in range(1, 4): a(f"s_add_u32 s{88+k}, s{87+k}, 0x2000\ns_and_b32 s{88+k}, s{88+k}, 0x7c00")
        a("s_mov_b64 s[36:37], s[74:75]\ns_mov_b64 s[40:41], s[76:77]\ns_mov_b64 s[44:45], s[84:85]\ns_mov_b64 s[48:49], s[80:81]")
        a(f"""v_and_b32 v25, 1, v1
v_bfe_u32 v26, v1, 1, 2
v_mov_b32 v27, 0xffff
v_lshlrev_b32 v25, 4, v25
v_lshlrev_b32 v27, v25, v27""")
        for r in range(4):
            a(f"v_cmp_eq_u32 vcc, {r}, v26\nv_cndmask_b32 v{vM+r}, 0, v27, vcc")
        a(f"""v_lshlrev_b32 v25, 4, v20
v_lshl_add_u32 v{vLdsO}, v21, 8, v25
v_lshl_add_u32 v{vLdsX}, v21, 10, v25
s_lshl_b32 s14, s3, 8
v_add_u32 v{vLdsX}, s14, v{vLdsX}
v_lshrrev_b32 v25, 1, v20
v_and_b32 v26, 1, v20
v_lshlrev_b32 v27, 5, v22
v_lshl_add_u32 v27, v26, 4, v27
v_lshl_add_u32 v{vPart}, v25, 8, v27
s_lshl_b32 s14, s3, 9
v_add_u32 v{vPart}, s14, v{vPart}
s_mov_b32 s18, 0xff00ff00
s_mov_b32 s19, 0xff00ff00""")
        if WE:
            a(f"s_getreg_b32 s14, hwreg(HW_REG_XCC_ID, 0, 4)\ns_cmp_ge_u32 s14, {late}\ns_cselect_b64 vcc, -1, 0")
        if tall:
            a(f"""s_lshl_b32 s14, s3, 6
v_add_u32 v{vLdsO}, s14, v{vLdsO}
v_lshlrev_b32 v{vFin}, 4, v1
s_lshl_b32 s14, s3, 11
v_add_u32 v16, s14, v{vFin}
s_and_b32 s14, s3, 1
s_lshl_b32 s14, s14, 10
s_lshr_b32 s15, s3, 1
s_lshl_b32 s15, s15, 9
s_add_u32 s14, s14, s15
v_add_u32 v{vFin}, s14, v{vFin}
v_and_b32 v27, 15, v1
v_lshlrev_b32 v27, 5, v27
v_lshl_add_u32 v{vFP}, v26, 4, v27
s_lshl_b32 s14, s7, 10
s_and_b32 s15, s3, 1
s_lshl_b32 s15, s15, 9
s_add_u32 s14, s14, s15
s_lshr_b32 s15, s3, 1
s_lshl_b32 s15, s15, 12
s_add_u32 s14, s14, s15""")
        else:
            a(f"""v_lshl_add_u32 v{vFP}, v25, 12, v27
s_lshl_b32 s14, s7, 10
s_lshl_b32 s15, s3, 8
s_add_u32 s14, s14, s15""")
        a(f"s_mul_i32 s15, s6, {fps}\ns_add_u32 s14, s14, s15\ns_add_u32 s68, s14, {WS_FP}")
    def process(t, i):
        if sonly:
            if i == 7: stamp({'q': 2, 'k': 3, 'v': 4, '1': 5}[t])
            return
        if t in 'q1':
            if i == 0:
                poll_lds(F_X if t == 'q' else F_Y, 2, 60, (1 if t == 'q' else 2) + st.get('cofs', 0), dupreads(vLdsX, L_X if t == 'q' else L_Y))
                buildA(0, 0); buildA(0, 1)
            mm(info[t][4], i, i == 0, i == 7)
            if i == 7:
                combine()
                a("s_mov_b32 exec_lo, 0x00ff00ff\ns_mov_b32 exec_hi, 0x00ff00ff")
                a(f"ds_write_b128 v{vPart}, v[{X}:{X+3}] offset:{L_QPART if t == 'q' else L_HPART}")
                signal(F_Q if t == 'q' else F_H)
                stamp(2 if t == 'q' else 5)
        elif t == 'k' and qwait >= 2 and i == qwait - 2:
            signal(F_K2)
        elif t in 'kv' and i == 7:
            signal(F_K if t == 'k' else F_V)
            stamp(3 if t == 'k' else 4)
    gates = {}
    if g1 is not None and not sonly: gates[g1] = (F_QG, 4, '', 21)
    if g2 is not None and not sonly: gates[g2] = (F_OG, g2n, 'q1kv', 22)
    if g3 is not None and not sonly: gates[g3] = (F_OP, 4, 'q1kv', 24)
    N = len(seq)
    pend = list(range(N))
    def ready(m, n):
        t, i = seq[m]
        if t in '2o': return False
        if t == 'q' and st['landed'] < qstart: return False
        if t == '1' and n < p1start: return False
        return True
    assert all(endpos['q'] <= n - 8 for n, (t, i) in enumerate(seq) if t == 'o')
    fastcode = []
    def emit_stream(n0, W, pend, gates, fast):
      for n, (t, i) in enumerate(seq):
        if n < n0: continue
        if bp is not None and n == bp and not fast and not sonly:
            a(f"s_memrealtime s[90:91]\ns_waitcnt lgkmcnt(0)\ns_sub_u32 s90, s90, s93\ns_cmp_gt_u32 s90, {bt}\ns_cbranch_scc1 L_fast")
            fastcode.append((list(pend), st['landed']))
        want = n - W[n] + 1
        if n in gates:
            flag, cnt, need, code = gates[n]
            for m in [m for m in pend if seq[m][0] in need and m < n]:
                if m >= st['landed'] and not (seq[m][0] in 'kv' and seq[m][1] < 7):
                    a(f"s_waitcnt vmcnt({n - 1 - m})"); st['landed'] = m + 1
                process(*seq[m]); pend.remove(m)
            if flate and flag == F_OG: a("s_mov_b32 s71, s10")
            poll_lds(flag, cnt, 60, code + st.get('cofs', 0), sleep=gsl)
            if flate and flag == F_OG: a("s_sub_u32 s71, s10, s71")
        if want > st['landed']:
            setup()
            a(f"s_waitcnt vmcnt({n - want})"); st['landed'] = want
        if not sonly and ((gs is not None and n >= gs) or (gq is not None and gq[0] <= n < gq[1])):
            fl = F_OG if (gs is not None and n >= gs) else F_QG
            for m in [m for m in pend if seq[m][0] in 'q1kv' and m < n - wl + 1 and (seq[m][0] in 'kv' or fl == F_OG)]:
                pass
            Lk = newlab("SG")
            a(f"ds_read_b32 v60, v2 offset:{fl}\ns_waitcnt lgkmcnt(0)\nv_readfirstlane_b32 s14, v60\ns_cmp_ge_u32 s14, 4\ns_cbranch_scc1 {Lk}\ns_waitcnt vmcnt({wl - 1})\n{Lk}:")
        if WE and WE[n] < W[n] and n - WE[n] + 1 > st['landed']:
            setup()
            Lk = newlab("WK")
            a(f"s_cbranch_vccnz {Lk}\ns_waitcnt vmcnt({WE[n] - 1})\n{Lk}:")
        if t != 'q': setup()
        issue(t, i)
        if pre2 and n == pre2 - 1: a("s_barrier")
        if n == qpos and not sonly: signal(F_PQ)
        if n == opos and not sonly: signal(F_PO)
        cnt_ = 0
        for m in [m for m in pend if m < st['landed'] and ready(m, n)]:
            if seq[m][0] in 'q1':
                if cnt_ >= maxper: continue
                cnt_ += 1
            process(*seq[m]); pend.remove(m)
      for m in [m for m in pend if seq[m][0] not in '2o'] if (bp is not None and not sonly) else []:
        tt, ii = seq[m]
        if m >= st['landed'] and not (tt in 'kv' and ii < 7):
            a(f"s_waitcnt vmcnt({N - 1 - m})"); st['landed'] = m + 1
        process(tt, ii); pend.remove(m)
    emit_stream(0, W, pend, gates, False)
    if bp is not None and not sonly:
        st['landed'] = min(st['landed'], max(N - bw, endpos['1'], endpos['v']))
        a("L_join:")
    setup()
    stamp(6)
    nmm = 0
    tail = [m for m in pend if seq[m][0] not in '2o'] + [m for m in pend if seq[m][0] in '2o']
    for m in tail:
        t, i = seq[m]
        if sonly:
            if m >= st['landed'] and i == 7:
                a(f"s_waitcnt vmcnt({N - 1 - m})"); st['landed'] = m + 1
            if i == 7: stamp({'q': 2, 'k': 3, 'v': 4, '1': 5, '2': 7, 'o': 8}[t])
            continue
        if t in '2o' and i == 0:
            if nmm == 0:
                nonce(); a(f"v_mov_b32 v{vT}, s12")
            poll_lds(F_HD if t == '2' else F_O, 1 if t == '2' else 4, 60, 3 if t == '2' else 4, dupreads(vLdsO, L_H if t == '2' else L_O, 1 if tall else 4))
            stamp(7 if t == '2' else 8)
            if tall: buildT(0)
            else: buildA(0, 0); buildA(0, 1)
        if m >= st['landed'] and not (t in 'kv' and i < 7):
            a(f"s_waitcnt vmcnt({N - 1 - m})"); st['landed'] = m + 1
        if t in '2o':
            if xt: pass
            elif tall: mmT(info[t][4], i, nmm < 2)
            else: mm(info[t][4], i, nmm == 0, i == 7)
            nmm += 1
        else:
            process(t, i)
    stamp(9)
    if sonly: a("s_branch L_exit")
    if xt >= 2:
        a("s_barrier" if xt == 2 else "s_nop 0")
        tag4(X, X, vT)
        a("s_mov_b32 exec_hi, 0")
    elif tall:
        a(f"ds_write_b128 v16, v[{AC0}:{AC0+3}] offset:{L_FIN}\nds_write_b128 v16, v[{AC1}:{AC1+3}] offset:{L_FIN+1024}")
        if tall == 2:
            a("s_waitcnt lgkmcnt(0)\ns_barrier")
            for w in range(4): a(f"ds_read_b128 v[{20+4*w}:{23+4*w}], v{vFin} offset:{L_FIN+2048*w}")
            a("s_waitcnt lgkmcnt(0)")
        else:
            signal(F_B3)
            poll_lds(F_B3, 4, 60, 23, "\n".join(f"ds_read_b128 v[{20+4*w}:{23+4*w}], v{vFin} offset:{L_FIN+2048*w}" for w in range(4)))
        pk("add", 20, 20, 24); pk("add", 22, 22, 26); pk("add", 28, 28, 32); pk("add", 30, 30, 34)
        pk("add", X, 20, 28); pk("add", X + 2, 22, 30)
        tag4(X, X, vT)
        a("s_mov_b32 exec_hi, 0")
    else:
        combine()
        tag4(X, X, vT)
        a("s_mov_b32 exec_lo, 0x00ff00ff\ns_mov_b32 exec_hi, 0x00ff00ff")
    a(f"buffer_store_dwordx4 v[{X}:{X+3}], v{vFP}, s[56:59], s68 offen sc1\ns_mov_b64 exec, -1")
    stamp(10)
    if flate:
        a(f"s_cmp_lt_u32 s71, {flate}\ns_cbranch_scc1 L_noack\ns_waitcnt vmcnt(0)\n" + (f"s_sleep {fearly}\n" if fearly else "") + "L_noack:")
    elif fack: a("s_waitcnt vmcnt(0)")
    signal(F_FP)
    a("s_branch L_exit")

    if align: a(".p2align 12")
    a("L_C:")
    if sonly:
        if stamps: a(f"v_writelane_b32 v{vStamp}, s96, 0")
        a("s_branch L_exit")
    vT, vTb, vHi = 5, 6, 15
    vXf, vB2f, vB1 = 10, 11, 12
    a(f"""s_load_dword s11, s[56:57], 0
v_mov_b32 v{vHi}, 0xffff0000
s_cmp_eq_u32 s3, 4
s_cbranch_scc1 L_H""")
    if stamps: a(f"v_writelane_b32 v{vStamp}, s96, 0")
    F = 32
    def unpack(src, dst, n):
        for k in range(n):
            a(f"v_lshlrev_b32 v{dst+2*k}, 16, v{src+k}\nv_and_b32 v{dst+2*k+1}, v{vHi}, v{src+k}")
    def stats(F):
        pk("add", 48, F, F + 2); pk("add", 50, F + 4, F + 6); pk("add", 52, F + 8, F + 10); pk("add", 54, F + 12, F + 14)
        pk("add", 48, 48, 50); pk("add", 52, 52, 54); pk("add", 48, 48, 52)
        a("v_add_f32 v48, v48, v49")
        red64(48, 14)
        a("v_mov_b32 v60, 0x3a800000\nv_mul_f32 v48, s14, v60")
        for k in range(0, 16, 4):
            pk("add", 52, F + k, 48, mods="op_sel_hi:[1,0] neg_lo:[0,1] neg_hi:[0,1]")
            pk("add", 54, F + k + 2, 48, mods="op_sel_hi:[1,0] neg_lo:[0,1] neg_hi:[0,1]")
            if k == 0: pk("mul", 50, 52, 52); pk("mul", 62, 54, 54)
            else: pk("fma", 50, 52, 52, 50); pk("fma", 62, 54, 54, 62)
        pk("add", 50, 50, 62)
        a("v_add_f32 v49, v50, v51")
        red64(49, 14)
        a(f"""v_mul_f32 v49, s14, v60
v_cvt_pk_bf16_f32 v48, v48, v49
v_and_b32 v49, v{vHi}, v48
v_lshlrev_b32 v48, 16, v48
v_add_f32 v49, 0x3727c5ac, v49
v_cvt_pk_bf16_f32 v49, v49, v49
v_and_b32 v49, v{vHi}, v49
v_sqrt_f32 v49, v49
v_cvt_pk_bf16_f32 v49, v49, v49
v_and_b32 v49, v{vHi}, v49
v_rcp_f32 v50, v49""")
    def normalize(F, n):
        for k in range(0, n, 2):
            pk("add", F + k, F + k, 48, mods="op_sel_hi:[1,0] neg_lo:[0,1] neg_hi:[0,1]")
        for k in range(0, n, 2):
            a(f"v_cvt_pk_bf16_f32 v52, v{F+k}, v{F+k+1}")
            a(f"v_lshlrev_b32 v{F+k}, 16, v52\nv_and_b32 v{F+k+1}, v{vHi}, v52")
            pk("mul", 52, F + k, 50, mods="op_sel_hi:[1,0]")
            pk("fma", F + k, 52, 48, F + k, mods="op_sel:[0,1,0] op_sel_hi:[1,1,1] neg_lo:[1,0,0] neg_hi:[1,0,0]")
            pk("fma", F + k, F + k, 50, 52, mods="op_sel_hi:[1,0,1]")
    def roundbf(F, n):
        for k in range(0, n, 2):
            a(f"v_cvt_pk_bf16_f32 v52, v{F+k}, v{F+k+1}")
            a(f"v_lshlrev_b32 v{F+k}, 16, v52\nv_and_b32 v{F+k+1}, v{vHi}, v52")
    def tagconsts():
        nonce()
        a(f"""v_mov_b32 v{vT}, s12
v_and_b32 v{vTb}, 0xff, v{vT}
v_bfe_u32 v{vTb+1}, v{vT}, 8, 8
v_bfe_u32 v{vTb+2}, v{vT}, 16, 8
v_lshrrev_b32 v{vTb+3}, 24, v{vT}""")
    a("s_waitcnt vmcnt(1)")
    stamp(1)
    unpack(20, F, 8)
    stats(F)
    a("s_waitcnt vmcnt(0)")
    unpack(28, 56, 2)
    normalize(56, 4)
    a(f"s_lshl_b32 s14, s16, 10\nv_add_u32 v16, s14, v{vL16}")
    a("s_cmp_ge_u32 s3, 2\ns_cbranch_scc1 L_ypath")
    for k in range(4): a(f"v_cvt_pk_bf16_f32 v{60+k}, v{56+k}, v{56+k}")
    a(f"ds_write_b128 v16, v[60:63] offset:{L_X}")
    signal(F_X)
    stamp(2)
    if touch and not nt:
        a("s_cmp_eq_u32 s3, 0\ns_cbranch_scc1 L_t0")
        touches([9, 13] + ([22] if g2 is not None else []) + [4] + (['f'] if bp is not None else []))
        a("s_branch L_lndone\nL_t0:")
        touches([19, 8, 11, 2] + ([32] if (bp is not None and bp < 24 + W[28]) else []))
    a("L_lndone:")
    a("s_waitcnt lgkmcnt(0)")
    tagconsts()
    def publish_part(lbase, flag, code, vaddr, extra, B=96):
        poll_lds(flag, 4, B + 16, code, "\n".join(f"ds_read_b128 v[{B+4*w}:{B+3+4*w}], v{vL16} offset:{lbase+512*w}" for w in range(4)))
        pk("add", B, B, B + 4); pk("add", B + 2, B + 2, B + 6); pk("add", B + 8, B + 8, B + 12); pk("add", B + 10, B + 10, B + 14)
        pk("add", B, B, B + 8); pk("add", B + 2, B + 2, B + 10)
        tag4(B, B, vT)
        a("s_mov_b32 exec_hi, 0")
        a(f"buffer_store_dwordx4 v[{B}:{B+3}], v{vaddr}, s[56:59], s30 offen sc1")
        a(extra)
        a("s_mov_b64 exec, -1")
    def poll_hints(nq, code, thr=None, hw=16):
        L = newlab("HL"); D = newlab("HD"); R = newlab("HR")
        a(f"{L}:")
        if nq == 0: a("s_load_dwordx4 s[64:67], s[60:61], 0 glc")
        for q in range(nq * 16 // hw): a(f"s_load_dwordx{hw} s[{64+hw*q}:{63+hw*q+hw}], s[60:61], {64*q} glc")
        if thr is not None and thr < nq * 8:
            a("s_mov_b32 s14, 0\ns_waitcnt lgkmcnt(0)")
            for j in range(nq * 8): a(f"s_cmp_eq_u64 s[{64+2*j}:{65+2*j}], s[12:13]\ns_addc_u32 s14, s14, 0")
            a(f"s_cmp_ge_u32 s14, {thr}\ns_cbranch_scc1 {D}")
        else:
            a("s_waitcnt lgkmcnt(0)")
            for j in range(max(nq * 8, 2)):
                a(f"s_cmp_eq_u64 s[{64+2*j}:{65+2*j}], s[12:13]\ns_cbranch_scc0 {R}")
            a(f"s_branch {D}\n{R}:")
        if hsleep: a(f"s_sleep {hsleep}")
        spin(L, code)
        a(f"{D}:")
    def untag(G, n, vacc):
        for j in range(4 * n): a(f"v_xor_b32 v{G+j}, v{G+j}, v{vTb+(j&3)}")
        a(f"v_or3_b32 v{vacc}, v{G}, v{G+1}, v{G+2}")
        j = 3
        while j < 4 * n:
            if j + 1 < 4 * n: a(f"v_or3_b32 v{vacc}, v{vacc}, v{G+j}, v{G+j+1}"); j += 2
            else: a(f"v_or_b32 v{vacc}, v{vacc}, v{G+j}"); j += 1
        a(f"v_lshlrev_b32 v{vacc}, 24, v{vacc}")
    def retry_if(vacc, L, code):
        D = newlab("RD")
        a(f"v_cmp_ne_u32 vcc, 0, v{vacc}\ns_cbranch_vccz {D}")
        spin(L, code)
        a(f"{D}:")
    G = 16
    QRS = QR.bit_length() - 1; ORS = OR.bit_length() - 1
    QB = 6 + (16 // qhw).bit_length() - 1; OB = 7 + (16 // ohw).bit_length() - 1
    assert 16 * QR << QB <= WS_OH - WS_QH and 32 * OR << OB <= WS_LS - WS_OH
    vKa, vQw, vQr, vVa0, vVa1, vMl, vPw, vMw, vOd, vLs, vOh, vLg, vOw = 52, 53, 54, 55, 56, 57, 58, 59, 60, 61, 62, 63, 14
    a(f"""v_and_b32 v16, 15, v1
v_lshrrev_b32 v17, 4, v1
v_lshrrev_b32 v18, 2, v16
v_and_b32 v19, 3, v1
v_mul_u32_u24 v{vKa}, {KSTR}, v18
v_lshl_add_u32 v{vKa}, v19, 8, v{vKa}
v_xor_b32 v20, v17, v19
v_lshl_add_u32 v{vKa}, v20, 4, v{vKa}
s_mul_i32 s14, s3, {8*KSTR}
v_add_u32 v{vKa}, s14, v{vKa}
v_lshrrev_b32 v20, 5, v1
v_mul_u32_u24 v20, 288, v20
v_and_b32 v21, 31, v1
v_lshl_add_u32 v{vQw}, v21, 3, v20
s_mul_i32 s14, s3, 576
v_add_u32 v{vQw}, s14, v{vQw}
v_and_b32 v20, 7, v1
v_mul_u32_u24 v20, 288, v20
v_lshl_add_u32 v{vQr}, v17, 4, v20
v_mul_u32_u24 v20, {VSTR}, v17
v_lshl_add_u32 v20, v18, 8, v20
v_and_b32 v21, 1, v1
v_lshl_add_u32 v20, v21, 3, v20
v_add_u32 v20, {L_V}, v20
v_bfe_u32 v21, v1, 1, 1
s_lshl_b32 s14, s3, 2
v_add_u32 v21, s14, v21
v_lshlrev_b32 v22, 1, v18
v_xor_b32 v21, v21, v22
v_lshl_add_u32 v{vVa0}, v21, 4, v20
v_xor_b32 v21, 2, v21
v_lshl_add_u32 v{vVa1}, v21, 4, v20
v_lshlrev_b32 v{vMl}, 3, v16
v_and_b32 v20, 0x37, v1
v_lshlrev_b32 v13, 4, v20
v_and_b32 v21, 8, v1
{f"v_add_u32 v{vPw}, v13, v21" if half else f"v_mov_b32 v{vPw}, v{vL16}"}
{"" if half else f"v_mov_b32 v13, v{vL16}"}
s_lshl_b32 s14, s3, 10
v_add_u32 v{vPw}, s14, v{vPw}
s_lshl_b32 s14, s3, 7
v_add_u32 v{vMw}, s14, v{vMl}
v_and_b32 v20, 7, v1
v_bfe_u32 v21, v1, 3, 1
v_lshlrev_b32 v{vOd}, 14, v20
v_lshl_add_u32 v{vOd}, v21, 6, v{vOd}
v_lshl_add_u32 v{vOd}, v17, 4, v{vOd}
v_lshlrev_b32 v{vLs}, 10, v20
v_lshlrev_b32 v{vOh}, {OB}, v1
v_lshrrev_b32 v{vLg}, 3, v1
v_lshlrev_b32 v{vLg}, 3, v{vLg}
{f"v_lshl_add_u32 v{vOw}, v20, 2, v17" if not tpat else f"v_bfe_u32 v{vOw}, v1, 2, 1"}
{"" if not tpat else f"v_lshl_add_u32 v{vOw}, v{vOw}, 2, v17"}
{"" if not tpat else f"v_lshl_add_u32 v{vOw}, v{vOw}, 2, v19"}
v_lshlrev_b32 v{vOw}, 2, v{vOw}
v_add_u32 v{vOw}, s14, v{vOw}
s_lshl_b32 s14, s4, 5
s_add_u32 s14, s14, s3
s_lshl_b32 s28, s14, 12
s_lshl_b32 s17, s5, 7
s_add_u32 s28, s28, s17
s_add_u32 s28, s28, {WS_OP}
s_lshl_b32 s29, s14, 8
s_lshl_b32 s17, s5, 3
s_add_u32 s29, s29, s17
s_add_u32 s29, s29, {WS_LS}
s_lshl_b32 s31, s4, 2
s_add_u32 s31, s31, s3
s_lshl_b32 s31, s31, {OB+ORS}
s_lshr_b32 s17, s5, {ohw.bit_length()-1}
s_lshl_b32 s17, s17, 6
{"s_add_u32 s31, s31, s17" if not ocnt else ""}
s_and_b32 s17, s5, {ohw-1}
s_lshl_b32 s17, s17, 2
{"s_add_u32 s31, s31, s17" if not ocnt else ""}
s_add_u32 s31, s31, {WS_OH}
s_mov_b32 s18, 0xff00ff00
s_mov_b32 s19, 0xff00ff00
v_mov_b32 v48, 0x3db504f3
v_mov_b32 v50, 0x3fb8aa3b""")
    a("s_call_b64 s[94:95], L_oaddr")
    poll_lds(F_PQ if qpos else F_K2 if qwait >= 2 else F_K if qwait else F_Q, 4, 32, 19, sleep=ksl)
    Lq = newlab("GQ")
    if qdir == 2:
        a(f"s_branch {Lq}\nL_qslow:")
    if qdir != 1: poll_hints(1, 6, hw=qhw)
    stamp(4)
    a(f"{Lq}:")
    for i in range(4): a(f"buffer_load_dwordx4 v[{G+4*i}:{G+4*i+3}], v{vL16}, s[56:59], s62 offen offset:{1024*i} sc1")
    if g1 is not None or gq is not None: signal(F_QG)
    KF, VF, QF = 64, 96, 128
    poll_lds(F_K, 4, 32, 7, "\n".join(f"ds_read_b128 v[{KF+16*t+4*s}:{KF+16*t+4*s+3}], v{vKa} offset:{L_K+4*KSTR*t+64*s}" for t in range(2) for s in range(4)))
    vreads = []
    for w in range(4):
        for t, va in ((0, vVa0), (1, vVa1)):
            for T in range(2):
                r = VF + 8 * w + 4 * t + 2 * T
                vreads.append(f"ds_read_b64_tr_b16 v[{r}:{r+1}], v{va} offset:{(8*w+4*T)*VSTR}")
    a("s_waitcnt vmcnt(0)")
    if vpre: a(f"ds_read_b32 v33, v2 offset:{F_V}")
    for j in range(16): a(f"v_xor_b32 v{G+j}, v{G+j}, v{vTb+(j&3)}")
    pk("add", 36, G, G + 4); pk("add", 38, G + 2, G + 6); pk("add", 40, G + 8, G + 12); pk("add", 42, G + 10, G + 14)
    pk("add", 36, 36, 40); pk("add", 38, 38, 42)
    a(f"v_cvt_pk_bf16_f32 v36, v36, v37\nv_cvt_pk_bf16_f32 v37, v38, v39")
    a(f"ds_write_b64 v{vQw}, v[36:37] offset:{L_QBUF}")
    a(f"v_or3_b32 v32, v{G}, v{G+1}, v{G+2}\nv_or3_b32 v34, v{G+3}, v{G+4}, v{G+5}")
    for j in range(6, 14, 4): a(f"v_or3_b32 v32, v32, v{G+j}, v{G+j+1}\nv_or3_b32 v34, v34, v{G+j+2}, v{G+j+3}")
    a(f"v_or3_b32 v32, v32, v{G+14}, v{G+15}\nv_or_b32 v32, v32, v34\nv_lshlrev_b32 v32, 24, v32")
    retry_if(32, 'L_qslow' if qdir == 2 else Lq, 8)
    signal(F_B1)
    stamp(5)
    poll_lds(F_B1, 4, 32, 9, "\n".join(f"ds_read_b128 v[{QF+4*s}:{QF+4*s+3}], v{vQr} offset:{L_QBUF+64*s}" for s in range(4)))
    S = 40
    for s in range(4):
        for t in range(2):
            c = "0" if s == 0 else f"v[{S+4*t}:{S+4*t+3}]"
            a(f"v_mfma_f32_16x16x32_bf16 v[{S+4*t}:{S+4*t+3}], v[{KF+16*t+4*s}:{KF+16*t+4*s+3}], v[{QF+4*s}:{QF+4*s+3}], {c}")
    if vpre:
        a("v_readfirstlane_b32 s35, v33\ns_cmp_lt_u32 s35, 4\ns_cbranch_scc1 L_vlater")
        a("\n".join(vreads))
        a("L_vlater:\ns_nop 7")
    def xlane(v, tmp, op, fill=((), ())):
        for n_, sw in enumerate(("v_permlane16_swap_b32", "v_permlane32_swap_b32")):
            a(f"v_mov_b32 v{tmp}, v{v}")
            for f in fill[n_]: f()
            a(f"{sw} v{v}, v{tmp}\n{op} v{v}, v{v}, v{tmp}")
    if half:
        for k in range(4): a(f"v_cndmask_b32 v{S+k}, v{S+k}, v{S+4+k}, s[18:19]")
        nv_ = 4
    else: nv_ = 8
    for k in range(0, nv_, 2): a(f"v_cvt_pk_bf16_f32 v{32+k//2}, v{S+k}, v{S+k+1}")
    for k in range(0, nv_, 2): a(f"v_lshlrev_b32 v{S+k}, 16, v{32+k//2}\nv_and_b32 v{S+k+1}, v{vHi}, v{32+k//2}")
    for k in range(0, nv_, 2): pk("mul", S + k, S + k, 48, mods="op_sel_hi:[1,0]")
    for k in range(0, nv_, 2): a(f"v_cvt_pk_bf16_f32 v{32+k//2}, v{S+k}, v{S+k+1}")
    for k in range(0, nv_, 2): a(f"v_lshlrev_b32 v{S+k}, 16, v{32+k//2}\nv_and_b32 v{S+k+1}, v{vHi}, v{32+k//2}")
    l2 = lambda k: (lambda: pk("mul", S + k, S + k, 50, mods="op_sel_hi:[1,0]"))
    if half:
        a(f"v_max3_f32 v32, v{S}, v{S+1}, v{S+2}\nv_max_f32 v32, v32, v{S+3}")
        l2(0)(); l2(2)()
        a("v_max_f32_dpp v32, v32, v32 row_ror:8 row_mask:0xf bank_mask:0xf")
        xlane(32, 33, "v_max_f32")
    else:
        a(f"v_max3_f32 v32, v{S}, v{S+1}, v{S+2}\nv_max3_f32 v33, v{S+3}, v{S+4}, v{S+5}\nv_max3_f32 v32, v32, v{S+6}, v{S+7}\nv_max_f32 v32, v32, v33")
        xlane(32, 33, "v_max_f32", ((l2(0), l2(2)), (l2(4), l2(6))))
    a("v_mul_f32 v32, v50, v32")
    for k in range(0, nv_, 2): pk("add", S + k, S + k, 32, mods="op_sel_hi:[1,0] neg_lo:[0,1] neg_hi:[0,1]")
    for k in range(nv_): a(f"v_exp_f32 v{S+k}, v{S+k}")
    pk("add", 34, S, S + 2)
    if half:
        a(f"v_cvt_pk_bf16_f32 v36, v{S}, v{S+1}\nv_add_f32 v33, v34, v35\nv_cvt_pk_bf16_f32 v37, v{S+2}, v{S+3}")
        a(f"ds_write_b64 v{vPw}, v[36:37] offset:{L_P}")
        a("v_add_f32_dpp v33, v33, v33 row_ror:8 row_mask:0xf bank_mask:0xf")
    else:
        for k in range(0, 4, 2): a(f"v_cvt_pk_bf16_f32 v{36+k//2}, v{S+k}, v{S+k+1}")
        pk("add", 34, 34, S + 4)
        for k in range(4, 8, 2): a(f"v_cvt_pk_bf16_f32 v{36+k//2}, v{S+k}, v{S+k+1}")
        pk("add", 34, 34, S + 6)
        a(f"ds_write_b128 v{vPw}, v[36:39] offset:{L_P}")
        a(f"v_add_f32 v33, v34, v35")
    xlane(33, 35, "v_add_f32")
    a(f"ds_write_b64 v{vMw}, v[32:33] offset:{L_ML}")
    signal(F_B2)
    stamp(6)
    if vpre: a("s_cmp_ge_u32 s35, 4\ns_cbranch_scc1 L_vdone")
    poll_lds(F_V, 4, 32, 10)
    a("\n".join(vreads))
    if vpre: a("L_vdone:")
    PW = 16; ML = 32; AC = 128
    poll_lds(F_B2, 4, 40, 11, "\n".join([f"ds_read_b128 v[{PW+4*w}:{PW+4*w+3}], v13 offset:{L_P+1024*w}" for w in range(4)] +
                                       [f"ds_read_b64 v[{ML+2*w}:{ML+2*w+1}], v{vMl} offset:{L_ML+128*w}" for w in range(4)]))
    stamp(7)
    fill = [f"v_max3_f32 v41, v{ML}, v{ML+2}, v{ML+4}\nv_max_f32 v41, v41, v{ML+6}",
            f"v_sub_f32 v40, v{ML}, v41\nv_sub_f32 v42, v{ML+2}, v41",
            f"v_sub_f32 v44, v{ML+4}, v41\nv_sub_f32 v46, v{ML+6}, v41",
            "v_exp_f32 v40, v40", "v_exp_f32 v42, v42", "v_exp_f32 v44, v44", "v_exp_f32 v46, v46",
            f"v_mul_f32 v43, v40, v{ML+1}\nv_fmac_f32 v43, v42, v{ML+3}"]
    for w in range(4):
        for t in range(2):
            r = AC + 8 * w + 4 * t
            a(f"v_mfma_f32_16x16x32_bf16 v[{r}:{r+3}], v[{VF+8*w+4*t}:{VF+8*w+4*t+3}], v[{PW+4*w}:{PW+4*w+3}], 0")
            a(fill[2 * w + t])
    a(f"v_fmac_f32 v43, v44, v{ML+5}\nv_fmac_f32 v43, v46, v{ML+7}")
    for k in range(4): a(f"v_cndmask_b32 v{AC+k}, v{AC+k}, v{AC+4+k}, s[18:19]")
    a("v_rcp_f32 v48, v43\nv_log_f32 v43, v43")
    for w in range(1, 4):
        for k in range(4): a(f"v_cndmask_b32 v{AC+8*w+k}, v{AC+8*w+k}, v{AC+8*w+4+k}, s[18:19]")
    for k in (0, 2): pk("mul", 16 + k, AC + k, 40, mods="op_sel_hi:[1,0]")
    for w in range(1, 4):
        for k in (0, 2): pk("fma", 16 + k, AC + 8 * w + k, 40 + 2 * w, 16 + k, mods="op_sel_hi:[1,0,1]")
    for k in (0, 2): pk("mul", 16 + k, 16 + k, 48, mods="op_sel_hi:[1,0]")
    tag4(16, 16, vT)
    a(f"""buffer_store_dwordx4 v[16:19], v{vOd}, s[56:59], s28 offen sc1
v_add_f32 v46, v41, v43
v_mov_b32 v47, v{vT}
s_mov_b64 exec, 0xff
{HST2} v[46:47], v{vLs}, s[56:59], s29 offen sc1
s_mov_b32 exec_lo, {hex((1<<OR)-1)}
{f"buffer_atomic_add v3, v{vOh}, s[56:59], s31 offen sc1" if ocnt else f"{HST} v{vT}, v{vOh}, s[56:59], s31 offen sc1"}
s_mov_b64 exec, -1
s_mov_b32 s60, s36
s_mov_b32 s61, s37""")
    if g3 is not None: signal(F_OP)
    stamp(8)
    if oack: a("s_waitcnt vmcnt(0)")
    if opos: poll_lds(F_PO, 4, 32, 25, sleep=2)
    if ocnt:
        Lc = newlab("OC"); Dc = newlab("OD")
        a(f"{Lc}:\ns_load_dword s64, s[60:61], 0 glc\ns_waitcnt lgkmcnt(0)\ns_cmp_eq_u32 s64, 32\ns_cbranch_scc1 {Dc}")
        spin(Lc, 13)
        a(f"{Dc}:")
    elif othr: poll_hints(2, 13, othr, hw=ohw)
    elif touch: a("s_branch L_no13\nT_13:\ns_setpc_b64 s[94:95]\nL_no13:")
    stamp(9)
    Lo = newlab("GO")
    a("s_mov_b64 vcc, -1")
    a(f"{Lo}:")
    for i in range(4): a(f"buffer_load_dwordx2 v[{32+2*i}:{33+2*i}], v{vLg}, s[56:59], s39 offen offset:{64*i} sc1")
    a("s_mov_b64 exec, vcc")
    for i in range(4): a(f"buffer_load_dwordx4 v[{G+4*i}:{G+4*i+3}], v{vL16}, s[56:59], s38 offen offset:{1024*i} sc1")
    if (g2 is not None or gs is not None) and not ogs: signal(F_OG)
    else: a("s_mov_b64 exec, -1")
    a("s_waitcnt vmcnt(4)")
    a("v_max3_f32 v40, v32, v34, v36\nv_max_f32 v40, v40, v38")
    a(f"v_xor_b32 v41, v33, v{vT}\nv_bitop3_b32 v41, v41, v35, v{vT} bitop3:0xf6")
    a("v_max_f32_dpp v40, v40, v40 row_ror:8 row_mask:0xf bank_mask:0xf")
    xlane(40, 42, "v_max_f32", ((lambda: a(f"v_bitop3_b32 v41, v41, v37, v{vT} bitop3:0xf6\nv_bitop3_b32 v41, v41, v39, v{vT} bitop3:0xf6"),), ()))
    for i in range(4): a(f"v_sub_f32 v{32+2*i}, v{32+2*i}, v40")
    for i in range(4): a(f"v_exp_f32 v{32+2*i}, v{32+2*i}")
    a("s_waitcnt vmcnt(0)")
    xs = [f"v_xor_b32 v{G+j}, v{G+j}, v{vTb+(j&3)}" for j in range(16)]
    a("v_add_f32 v43, v32, v34\nv_add_f32 v42, v36, v38\nv_add_f32 v43, v43, v42")
    a("\n".join(xs[0:2])); a("v_add_f32_dpp v43, v43, v43 row_ror:8 row_mask:0xf bank_mask:0xf")
    xlane(43, 42, "v_add_f32", ((lambda: a("\n".join(xs[2:6])),), (lambda: a("\n".join(xs[6:10])),)))
    a("v_rcp_f32 v43, v43"); a("\n".join(xs[10:16]))
    for k in (0, 2): pk("mul", 44 + k, G + k, 32, mods="op_sel_hi:[1,0]")
    for i in range(1, 4):
        for k in (0, 2): pk("fma", 44 + k, G + 4 * i + k, 32 + 2 * i, 44 + k, mods="op_sel_hi:[1,0,1]")
    ors = [f"v_or3_b32 v42, v{G}, v{G+1}, v{G+2}"] + [f"v_or3_b32 v42, v42, v{G+j}, v{G+j+1}" for j in range(3, 15, 2)] + [f"v_or_b32 v42, v42, v{G+15}", "v_lshl_or_b32 v42, v42, 24, v41"]
    def rscatter(v, fill=((), (), ())):
        for f in fill[0]: a(f)
        a(f"v_permlane32_swap_b32 v{v}, v{v+2}\nv_permlane32_swap_b32 v{v+1}, v{v+3}")
        a(f"v_add_f32 v{v}, v{v}, v{v+2}\nv_add_f32 v{v+1}, v{v+1}, v{v+3}")
        for f in fill[1]: a(f)
        a(f"v_permlane16_swap_b32 v{v}, v{v+1}\nv_add_f32 v{v}, v{v}, v{v+1}")
        for f in fill[2]: a(f)
    rscatter(44, (ors[0:2], ors[2:4], ors[4:6]))
    a("v_add_f32_dpp v44, v44, v44 row_ror:8 row_mask:0xf bank_mask:0xf")
    a("\n".join(ors[6:]))
    a("v_mul_f32 v44, v44, v43\nv_cvt_pk_bf16_f32 v44, v44, v44")
    a("v_cmp_ne_u32 vcc, 0, v42\ns_cbranch_vccnz L_oretry")
    a(f"ds_write_b32 v{vOw}, v44 offset:{L_O}")
    signal(F_O)
    if g2 is not None and ogs: signal(F_OG)
    stamp(11)
    a("s_branch L_exit")
    if align >= 2: a(".p2align 12")
    if touch: a("T_y:\ns_setpc_b64 s[94:95]")
    a("L_ypath:")
    roundbf(56, 4)
    normalize(F, 16)
    roundbf(F, 16)
    stats(F)
    normalize(56, 4)
    for k in range(4): a(f"v_cvt_pk_bf16_f32 v{60+k}, v{56+k}, v{56+k}")
    a(f"ds_write_b128 v16, v[60:63] offset:{L_Y}")
    signal(F_Y)
    stamp(3)
    a("s_branch L_lndone")

    a("L_oretry:")
    a("\n".join(xs))
    spin(Lo, 14)
    a("L_oaddr:")
    a(f"""s_and_b32 s14, s4, 3
s_lshl_b32 s14, s14, 2
s_add_u32 s14, s14, s3
s_lshl_b32 s14, s14, {QB+QRS}
s_lshr_b32 s15, s4, 2
s_lshl_b32 s15, s15, 5
s_add_u32 s15, s15, s5
s_lshr_b32 s15, s15, {6-QRS}
s_lshl_b32 s15, s15, {QB}
s_add_u32 s14, s14, s15
s_add_u32 s14, s14, {WS_QH}
s_add_u32 s60, s56, s14
s_addc_u32 s61, s57, 0
s_and_b32 s14, s4, 3
s_lshl_b32 s14, s14, 1
s_lshr_b32 s15, s4, 2
s_add_u32 s14, s14, s15
s_lshl_b32 s14, s14, 14
s_lshl_b32 s15, s3, 12
s_add_u32 s14, s14, s15
s_add_u32 s62, s14, {WS_QP}""")
    a(f"""s_lshr_b32 s14, s3, 1
s_and_b32 s15, s6, 1
s_lshl_b32 s15, s15, 1
s_and_b32 s16, s3, 1
s_add_u32 s15, s15, s16
s_lshl_b32 s16, s14, 2
s_lshr_b32 s17, s6, 4
s_add_u32 s16, s16, s17
s_lshl_b32 s16, s16, 2
s_add_u32 s16, s16, s15
s_lshl_b32 s16, s16, {ORS}
s_bfe_u32 s17, s6, 0x30001
s_lshl_b32 s17, s17, 2
s_add_u32 s17, s17, s7
s_lshr_b32 s17, s17, {5-ORS}
s_add_u32 s16, s16, s17
s_lshl_b32 s16, s16, {OB}
s_add_u32 s16, s16, {WS_OH}
s_add_u32 s36, s56, s16
s_addc_u32 s37, s57, 0
s_lshl_b32 s16, s14, 5
s_lshr_b32 s17, s6, 1
s_add_u32 s16, s16, s17
s_lshl_b32 s16, s16, 2
s_add_u32 s16, s16, s15
s_lshl_b32 s38, s16, 12
s_add_u32 s38, s38, {WS_OP}
s_lshl_b32 s39, s16, 8
s_add_u32 s39, s39, {WS_LS}""")
    a("s_setpc_b64 s[94:95]")
    a("L_H:")
    if touch and not nt: touches(['y'])
    a("""s_mov_b64 s[36:37], s[86:87]
s_load_dwordx2 s[40:41], s[0:1], 72
s_load_dwordx2 s[44:45], s[0:1], 80""")
    if stamps: a(f"v_writelane_b32 v{vStamp}, s96, 0")
    a(f"""s_mov_b32 s38, 7168
s_mov_b32 s39, 0x20000
s_mov_b32 s42, 2048
s_mov_b32 s43, 0x20000
s_mov_b32 s46, 4096
s_mov_b32 s47, 0x20000
v_and_b32 v16, 1, v1
v_lshrrev_b32 v17, 4, v1
v_lshl_add_u32 v16, v16, 2, v17
v_lshlrev_b32 v14, 1, v16
s_lshl_b32 s34, s4, 5
s_add_u32 s34, s34, s5
s_lshl_b32 s33, s34, 4
s_and_b32 s15, s33, 2047
v_and_b32 v16, 15, v1
v_lshlrev_b32 v16, 3, v16
s_lshl_b32 s17, s8, 7
s_waitcnt lgkmcnt(0)
buffer_load_ushort v{vXf}, v14, s[24:27], s33 offen
buffer_load_ushort v{vB2f}, v14, s[40:43], s15 offen
buffer_load_dwordx2 v[{vB1}:{vB1+1}], v16, s[36:39], s17 offen""")
    tagconsts()
    if ocnt:
        a(f"""s_and_b32 s14, s6, 15
s_lshl_b32 s14, s14, 2
s_add_u32 s14, s14, s7
s_cmp_ge_u32 s14, {8*OR}
s_cbranch_scc1 L_noclr
s_lshr_b32 s15, s14, {2+ORS}
s_lshl_b32 s15, s15, 2
s_lshr_b32 s17, s6, 4
s_add_u32 s15, s15, s17
s_lshl_b32 s15, s15, {2+ORS}
s_and_b32 s14, s14, {4*OR-1}
s_add_u32 s14, s14, s15
s_lshl_b32 s14, s14, 7
s_add_u32 s14, s14, {WS_OH}
s_mov_b64 exec, 1
buffer_atomic_swap v2, v2, s[56:59], s14 offen sc1
s_mov_b64 exec, -1
s_waitcnt vmcnt(0)
L_noclr:""")
    a(f"""v_lshrrev_b32 v80, 4, v1
v_and_b32 v81, 15, v1
v_lshlrev_b32 v81, 4, v81
v_lshl_add_u32 v80, v80, 14, v81
v_lshlrev_b32 v81, {QB}, v1
s_lshr_b32 s14, s6, 4
s_lshl_b32 s14, s14, 15
s_bfe_u32 s15, s6, 0x20002
s_lshl_b32 s15, s15, 12
s_add_u32 s14, s14, s15
s_lshl_b32 s15, s7, 10
s_add_u32 s14, s14, s15
s_and_b32 s15, s6, 3
s_lshl_b32 s15, s15, 8
s_add_u32 s14, s14, s15
s_add_u32 s30, s14, {WS_QP}
s_lshr_b32 s15, s6, 2
s_lshl_b32 s15, s15, {QB+QRS}
s_and_b32 s17, s6, 3
s_lshl_b32 s17, s17, 2
s_add_u32 s17, s17, s7
s_lshr_b32 s16, s17, {qhw.bit_length()-1}
s_lshl_b32 s16, s16, 6
s_add_u32 s15, s15, s16
s_and_b32 s17, s17, {qhw-1}
s_lshl_b32 s17, s17, 2
s_add_u32 s15, s15, s17
s_add_u32 s31, s15, {WS_QH}""")
    if qdir == 1: publish_part(L_QPART, F_Q, 5, 80, "s_nop 0")
    else: publish_part(L_QPART, F_Q, 5, 80, ("s_mov_b64 exec, -1" if QR == 64 else f"s_mov_b32 exec_lo, {hex((1<<QR)-1)}") + f"\n{HST} v{vT}, v81, s[56:59], s31 offen sc1")
    stamp(3)
    if touch and not nt: touches([12, 16, 18])
    if tpat: a("v_bfe_u32 v48, v1, 2, 3\nv_lshlrev_b32 v48, 6, v48\nv_and_b32 v49, 3, v1\nv_lshl_add_u32 v48, v49, 2, v48")
    else: a("v_and_b32 v48, 31, v1\nv_lshlrev_b32 v48, 4, v48")
    a(f"""s_nop 0
s_lshl_b32 s52, s34, 5
s_add_u32 s52, s52, {WS_FP}
s_add_u32 s53, s52, {32*fps}
v_lshrrev_b32 v50, 1, v1
v_mul_u32_u24 v50, {fps}, v50
v_and_b32 v51, 1, v1
v_lshl_add_u32 v50, v51, 4, v50
s_waitcnt vmcnt(2)
v_lshlrev_b32 v{vXf}, 16, v{vXf}
v_lshlrev_b32 v{vB2f}, 16, v{vB2f}
v_add_f32 v{vXf}, v{vXf}, v{vB2f}
v_mov_b32 v44, 0
v_mov_b32 v45, 0
v_mov_b32 v46, 0
v_mov_b32 v47, 0
s_cmp_eq_u32 s9, 0
s_cbranch_scc1 L_hwrite
s_lshl_b32 s62, s8, 11
s_add_u32 s62, s62, {WS_HP}
s_lshl_b32 s15, s7, 9
s_add_u32 s30, s62, s15""")
    unpack(vB1, 76, 2)
    if hloc:
        a(f"s_add_u32 s31, s30, {WS_HL - WS_HP}\ns_add_u32 s63, s62, {WS_HL - WS_HP}\ns_add_u32 s60, s56, s63\ns_addc_u32 s61, s57, 0\ns_and_b32 s28, s12, 0xff\ns_mov_b32 s17, 0")
        publish_part(L_HPART, F_H, 12, vL16, f"buffer_store_dwordx4 v[96:99], v{vL16}, s[56:59], s31 offen")
        stamp(4)
        L1 = newlab("HA"); L2 = newlab("HB")
        a(f"{L1}:")
        for k in range(4): a(f"s_load_dword s{64+k}, s[60:61], {512*k} glc")
        a(f"s_add_u32 s17, s17, 1\ns_cmp_ge_u32 s17, {hloc}\ns_cbranch_scc1 {L2}\ns_waitcnt lgkmcnt(0)")
        a("s_xor_b32 s64, s64, s28\ns_xor_b32 s65, s65, s28\ns_xor_b32 s66, s66, s28\ns_xor_b32 s67, s67, s28\ns_or_b32 s64, s64, s65\ns_or_b32 s66, s66, s67\ns_or_b32 s64, s64, s66\ns_and_b32 s64, s64, 0xff")
        a(f"s_cbranch_scc1 {L1}")
        for i in range(2): a(f"buffer_load_dwordx4 v[{G+4*i}:{G+4*i+3}], v{vL16}, s[56:59], s63 offen offset:{1024*i} sc1")
        stamp(5)
        a("s_waitcnt vmcnt(0)")
        untag(G, 2, 42)
        a(f"v_cmp_ne_u32 vcc, 0, v42\ns_cbranch_vccz L_hok\ns_branch {L1}\n{L2}:\ns_waitcnt lgkmcnt(0)")
    else:
        a(f"s_lshl_b32 s14, s8, 7\ns_add_u32 s14, s14, {WS_HH}\ns_add_u32 s60, s56, s14\ns_addc_u32 s61, s57, 0\ns_lshl_b32 s17, s7, 2\ns_add_u32 s31, s14, s17")
        publish_part(L_HPART, F_H, 12, vL16, f"s_mov_b32 exec_lo, 1\n{HST} v{vT}, v2, s[56:59], s31 offen sc1")
        stamp(4)
        poll_hints(0, 15)
        stamp(5)
    Lh = newlab("GH")
    a(f"{Lh}:")
    for i in range(2): a(f"buffer_load_dwordx4 v[{G+4*i}:{G+4*i+3}], v{vL16}, s[56:59], s62 offen offset:{1024*i} sc1")
    a("s_waitcnt vmcnt(0)")
    untag(G, 2, 42)
    retry_if(42, Lh, 16)
    a("L_hok:")
    stamp(6)
    pk("add", G, G, G + 4); pk("add", G + 2, G + 2, G + 6)
    for k in range(4): a(f"v_mov_b32 v{G+4+k}, v{G+k}")
    for k in range(4): a(f"v_permlane32_swap_b32 v{G+k}, v{G+4+k}")
    pk("add", G, G, G + 4); pk("add", G + 2, G + 2, G + 6)
    roundbf(G, 4)
    pk("add", G, G, 76); pk("add", G + 2, G + 2, 78)
    roundbf(G, 4)
    a("s_mov_b32 s14, 0x3d372713\ns_mov_b32 s15, 0xc0135761")
    for k in (0, 2): pk("mul", 24 + k, G + k, G + k)
    for k in (0, 2): pk("mul", 24 + k, 24 + k, G + k)
    for k in range(4): a(f"v_fma_f32 v{24+k}, s14, v{24+k}, v{G+k}")
    for k in range(4): a(f"v_mul_f32 v{24+k}, s15, v{24+k}")
    for k in range(4): a(f"v_exp_f32 v{24+k}, v{24+k}")
    for k in range(4): a(f"v_add_f32 v{24+k}, 1.0, v{24+k}")
    for k in range(4): a(f"v_rcp_f32 v{24+k}, v{24+k}")
    for k in (0, 2): pk("mul", 24 + k, 24 + k, G + k)
    for k in range(4): a(f"v_cvt_pk_bf16_f32 v{44+k}, v{24+k}, v{24+k}")
    a("L_hwrite:")
    if tpat:
        for k in range(4): a(f"ds_write_b32 v48, v{44+k} offset:{L_H+16*k}")
    else: a(f"ds_write_b128 v48, v[44:47] offset:{L_H}")
    signal(F_HD)
    stamp(12)
    if tall == 2 and xt != 3: a("s_waitcnt lgkmcnt(0)\ns_barrier")
    poll_lds(F_FP, 4, 32, 18, sleep=0 if tall == 2 else 1)
    stamp(7)
    if fdelay: a(f"s_sleep {fdelay}")
    Lf = newlab("GF"); Ld = newlab("GD")
    sets = [64 + 8 * k for k in range(fsets)]
    def fissue(R):
        for i in range(2): a(f"buffer_load_dwordx4 v[{R+4*i}:{R+4*i+3}], v50, s[56:59], s{52+i} offen sc1")
    for R in sets[:-1]: fissue(R)
    a(f"{Lf}:")
    if fastfin:
        for k, R in enumerate(sets):
            fissue(sets[k - 1])
            a(f"s_waitcnt vmcnt({2*(fsets-1)})")
            for j in range(8): a(f"v_xor_b32 v{R+j}, v{R+j}, v{vTb+(j&3)}")
            pk("add", 44, R, R + 4); pk("add", 46, R + 2, R + 6)
            rscatter(44, ((f"v_or3_b32 v42, v{R}, v{R+1}, v{R+2}", f"v_or3_b32 v42, v42, v{R+3}, v{R+4}"),
                          (f"v_or3_b32 v42, v42, v{R+5}, v{R+6}", f"v_or_b32 v42, v42, v{R+7}"),
                          ("v_lshlrev_b32 v42, 24, v42", "v_cmp_ne_u32 vcc, 0, v42")))
            a("v_add_f32_dpp v44, v44, v44 quad_perm:[2,3,0,1] row_mask:0xf bank_mask:0xf")
            a(f"s_cbranch_vccz {Ld}")
        spin(Lf, 17)
        a(f"{Ld}:")
        stamp(13)
        R = 44
        a("s_nop 0")
        a(f"v_add_f32_dpp v{R}, v{R}, v{R} row_ror:4 row_mask:0xf bank_mask:0xf")
        a(f"v_add_f32_dpp v{R}, v{R}, v{R} row_ror:8 row_mask:0xf bank_mask:0xf")
    else:
        for k, R in enumerate(sets):
            fissue(sets[k - 1])
            a(f"s_waitcnt vmcnt({2*(fsets-1)})")
            untag(R, 2, 42)
            pk("add", 44, R, R + 4); pk("add", 46, R + 2, R + 6)
            a(f"v_cmp_ne_u32 vcc, 0, v42\ns_cbranch_vccz {Ld}")
        spin(Lf, 17)
        a(f"{Ld}:")
        stamp(13)
        R = 44
        rscatter(R)
        for m in ("quad_perm:[2,3,0,1]", "row_ror:4", "row_ror:8"):
            a(f"v_add_f32_dpp v{R}, v{R}, v{R} {m} row_mask:0xf bank_mask:0xf")
    a(f"s_mov_b32 exec_lo, 0x00030003\ns_mov_b32 exec_hi, 0x00030003")
    a(f"v_add_f32 v{R}, v{R}, v{vXf}\nv_cvt_pk_bf16_f32 v{R}, v{R}, v{R}\nbuffer_store_short v{R}, v14, s[44:47], s33 offen {oflags}")
    a(f"s_cmp_lg_u32 s2, 0\ns_cbranch_scc1 L_noep\ns_add_u32 s11, s11, 1\nv_mov_b32 v{R+1}, s11\ns_mov_b64 exec, 1\nbuffer_store_dword v{R+1}, v2, s[56:59], 0 offen {oflags}\nL_noep:\ns_mov_b64 exec, -1")
    stamp(14, True)
    if fixdur:
        a(f"s_add_u32 s96, s96, {fixdur}\nL_fix:\ns_memrealtime s[98:99]\ns_waitcnt lgkmcnt(0)\ns_sub_u32 s98, s98, s96\ns_cmp_lt_i32 s98, 0\ns_cbranch_scc1 L_fix")
    a("L_exit:")
    if stamps:
        a(f"""s_waitcnt vmcnt(0)
v_lshrrev_b32 v20, 6, v0
v_lshlrev_b32 v20, 6, v20
v_lshl_add_u32 v20, v1, 2, v20
s_lshl_b32 s14, s2, 10
s_add_u32 s14, s14, {WS_ST}
s_mov_b64 exec, 0xffff
buffer_store_dword v{vStamp}, v20, s[56:59], s14 offen""")
    a("L_end:\ns_endpgm")
    a("L_fail:")
    a("""s_load_dwordx2 s[48:49], s[0:1], 88
s_mov_b32 s50, 256
s_mov_b32 s51, 0x20000
s_lshl_b32 s14, s15, 2
v_mov_b32 v20, s2
v_add_u32 v20, 1, v20
s_waitcnt lgkmcnt(0)
s_mov_b64 exec, 1
buffer_store_dword v20, v2, s[48:51], s14 offen
s_endpgm""")
    if fastcode:
        a(".p2align 12\nT_f:\ns_setpc_b64 s[94:95]\nL_fast:")
        pend2, st['landed'] = fastcode[0]
        st['cofs'] = 30
        Wf = [max(w, bw) for w in W]
        emit_stream(bp, Wf, pend2, gates if bgate else {}, True)
        a("s_branch L_join")
    if post: a(f".fill {post}, 4, 0xbf800000")
    nv = 168
    a(f""".section .rodata,"a"
.p2align 6
.amdhsa_kernel {KNAME}
  .amdhsa_next_free_vgpr {nv}
  .amdhsa_next_free_sgpr 102
  .amdhsa_accum_offset {nv}
  .amdhsa_group_segment_fixed_size 0
  .amdhsa_kernarg_size 104
  .amdhsa_user_sgpr_count 2
  .amdhsa_user_sgpr_kernarg_segment_ptr 1
  .amdhsa_system_sgpr_workgroup_id_x 1
  .amdhsa_float_denorm_mode_32 3
.end_amdhsa_kernel""")
    return a.finish()

if __name__ == "__main__":
    out = sys.argv[1] if len(sys.argv) > 1 else "x.s"
    open(out, "w").write(gen())
```

```python
import sys
from asmlib import Asm

KNAME = "parallel_sum__sliding_block_cached__mixer_channel_mlp__decode_kernel"

WS_HH = 0x1000; WS_QH = 0x4000; WS_OH = 0x8000; WS_LS = 0x18000; WS_QP = 0x28000
WS_HP = 0x48000; WS_HL = 0x64000; WS_FP = 0x64000; WS_OP = 0x100000; WS_ST = 0x200000
WS_BYTES = 0x10000000
KSTR = 1088; VSTR = 1152
L_X = 0
L_Y = L_X + 2048; L_QPART = L_Y + 2048; L_HPART = L_QPART + 2048
L_QBUF = L_HPART + 2048; L_P = L_QBUF + 2304; L_ML = L_P + 4096
L_O = L_ML + 512; L_H = L_O + 512; L_F = L_H + 512
L_K = L_F + 128; L_V = L_K + 32 * KSTR; L_END = L_V + 32 * VSTR
L_FIN = L_K
F_X, F_Y, F_Q, F_K, F_V, F_H, F_B1, F_B2, F_O, F_HD, F_QG, F_OG, F_FP, F_B3, F_OP, F_K2, F_PQ, F_PO = [L_F + 4 * i for i in range(18)]
TO_LIMIT = 1 << 20
NW = 9

def gen(W=(5, 5, 5, 6, 5, 5), stamps=0, ldflags="nt", order="qkv1o2", qstart=5, p1start=0, cprio=3, QR=4, OR=4, g1=None, g2=44,
        sonly=0, fsets=1, fack=1, hloc=0, vpre=1, hat=1, tall=2, fdelay=0, align=2, touch=1, nt=0, tlb=0, oflags='', WE=None, late=4, pre=832, post=0, g3=None, hsleep=0, oack=1, qwait=1, rq=3, r1=2, othr=16, qthr=8, ogs=0, fakebal=0, half=1, tpat=1, pre2=1, fastfin=0, fixdur=0, qpos=None, opos=None, maxper=8, gs=None, wl=2, gq=None, wrot=0, w1t=0, ksw=1, vsw=2, kvr=0, kvc=8, qdir=0, fps=8192, ops=0, g2n=4, gsl=1, ocnt=0, qhw=16, ohw=16, flate=0, bp=None, bw=8, bt=480, bgate=1, fearly=0, ksl=2, xt=0, sprio=0, tf=None, wsb=0, xfl='', stfl='sc1', gfl='sc1'):
    a = Asm()
    if isinstance(W, int): W = [W] * 48
    if len(W) == 6: W = [w for w in W for _ in range(8)]
    if isinstance(WE, int): WE = [WE] * 48
    if WE and len(WE) == 6: WE = [w for w in WE for _ in range(8)]
    lab = [0]
    HST = "buffer_atomic_swap" if hat else "buffer_store_dword"
    HST2 = "buffer_atomic_swap_x2" if hat else "buffer_store_dwordx2"
    def newlab(p="L"):
        lab[0] += 1
        return f"{p}_{lab[0]}"
    vStamp = 160
    stubs = (2, 22, 4, 19, 8, 9, 11, 13, 12, 16, 18, 32) if touch else ()
    def touches(codes):
        for c in codes: a(f"s_call_b64 s[94:95], T_{c}")
    def stamp(k, light=False):
        if stamps == 1 or (stamps == 2 and light):
            a(f"s_memrealtime s[98:99]\ns_waitcnt lgkmcnt(0)\nv_writelane_b32 v{vStamp}, s98, {k}")
    def signal(flag):
        a(f"s_mov_b64 exec, 1\nds_add_u32 v2, v3 offset:{flag}\ns_mov_b64 exec, -1")
    def spin(L, code):
        a(f"s_add_u32 s10, s10, 1\ns_cmp_lt_u32 s10, {TO_LIMIT}\ns_cbranch_scc1 {L}\ns_mov_b32 s15, {code}\ns_branch L_fail")
        if code in stubs: a(f"T_{code}:\ns_setpc_b64 s[94:95]")
    def poll_lds(flag, n, vt, code, spec=None, sleep=0):
        L = newlab("PL"); D = newlab("PD")
        a(f"{L}:\nds_read_b32 v{vt}, v2 offset:{flag}")
        if spec: a(spec)
        a(f"s_waitcnt lgkmcnt(0)\nv_readfirstlane_b32 s14, v{vt}\ns_cmp_ge_u32 s14, {n}\ns_cbranch_scc1 {D}")
        if sleep: a(f"s_sleep {sleep}")
        spin(L, code)
        a(f"{D}:")
    def red64(v, s):
        for m in ("quad_perm:[1,0,3,2] row_mask:0xf", "quad_perm:[2,3,0,1] row_mask:0xf", "row_half_mirror row_mask:0xf",
                  "row_mirror row_mask:0xf", "row_bcast:15 row_mask:0xa", "row_bcast:31 row_mask:0xc"):
            a(f"v_add_f32_dpp v{v}, v{v}, v{v} {m} bank_mask:0xf")
        a(f"v_readlane_b32 s{s}, v{v}, 63")
    def nonce():
        a("s_mul_i32 s12, s11, 0x9E3779B1\ns_add_u32 s12, s12, 0x85EBCA77\ns_mov_b32 s13, s12")
        a("s_mov_b32 s20, 0x07060500\ns_mov_b32 s21, 0x07060501\ns_mov_b32 s22, 0x07060502\ns_mov_b32 s23, 0x07060503")
    def tag4(src, dst, vT):
        for k in range(4): a(f"v_perm_b32 v{dst+k}, v{src+k}, v{vT}, s{20+k}")
    def pk(op, d, x, y, z=None, mods=""):
        zz = f", v[{z}:{z+1}]" if z is not None else ""
        a(f"v_pk_{op}_f32 v[{d}:{d+1}], v[{x}:{x+1}], v[{y}:{y+1}]{zz} {mods}")

    a(f"; @launch grid=(256,1,1) block=({64*(NW+nt)},1,1) lds={L_END}")
    a('.amdgcn_target "amdgcn-amd-amdhsa--gfx950"')
    a(f".text\n.globl {KNAME}")
    if align: a(".p2align 12\n.fill {pre}, 4, 0xbf800000".replace("{pre}", str(pre)))
    a(f".p2align 8\n.type {KNAME},@function\n{KNAME}:")
    a("""s_cmp_ge_u32 s2, 256
s_cbranch_scc1 L_end
s_load_dwordx16 s[72:87], s[0:1], 0
s_load_dwordx2 s[56:57], s[0:1], 96""")
    if stamps:
        a(f"s_memrealtime s[96:97]\nv_mov_b32 v{vStamp}, 0")
    if fixdur: a("s_memrealtime s[96:97]")
    if bp is not None: a("s_memrealtime s[88:89]")
    a(f"""v_lshrrev_b32 v4, 6, v0
v_and_b32 v1, 63, v0
v_readfirstlane_b32 s3, v4
v_mov_b32 v2, 0
v_mov_b32 v3, 1
s_and_b32 s4, s2, 7
s_lshr_b32 s5, s2, 3
s_lshr_b32 s14, s5, 2
s_lshl_b32 s15, s14, 3
s_add_u32 s6, s4, {rq}
s_and_b32 s6, s6, 7
s_add_u32 s6, s6, s15
s_add_u32 s8, s4, {r1}
s_and_b32 s8, s8, 7
s_add_u32 s8, s8, s15
s_and_b32 s7, s5, 3
s_cmp_lt_u32 s14, 7
s_cselect_b32 s9, 1, 0
s_mov_b32 s10, 0
s_mov_b32 s58, {WS_BYTES - wsb}
s_mov_b32 s59, 0x20000
s_cmp_lt_u32 s3, 4
s_cbranch_scc1 L_S""")
    if nt:
        a("s_cmp_lt_u32 s3, 9\ns_cbranch_scc1 L_notw")
        if tlb: a("s_load_dwordx2 s[52:53], s[0:1], 64")
        a("s_waitcnt lgkmcnt(0)\ns_barrier")
        groups = {1: [['y', 19, 8, 11, 13, 12, 2, 4]], 2: [['y', 8, 13, 2], [19, 11, 12, 4]], 3: [['y', 11, 2], [19, 13, 4], [8, 12, 22 if g2 is not None else 4]]}[nt]
        for k, grp in enumerate(groups):
            if k + 1 < len(groups): a(f"s_cmp_lg_u32 s3, {9+k}\ns_cbranch_scc1 L_tw{k+1}")
            if tlb and k == 0:
                a(f"""s_lshl_b32 s14, s4, 22
s_add_u32 s14, s14, {12288*256}
s_load_dword s64, s[36:37], s14
s_load_dword s65, s[40:41], s14
s_mul_i32 s14, s7, {256*7168}
s_load_dword s66, s[44:45], s14
s_add_u32 s14, s14, {255*7168}
s_load_dword s67, s[44:45], s14
s_lshl_b32 s14, s6, 17
s_load_dword s68, s[48:49], s14
s_lshl_b32 s14, s8, 17
s_min_u32 s14, s14, {3583*2048}
s_load_dword s69, s[52:53], s14""")
            touches(grp)
            a("s_endpgm")
            if k + 1 < len(groups): a(f"L_tw{k+1}:")
        a("L_notw:")
    vL16 = 4
    if cprio: a(f"s_setprio {cprio}")
    a(f"""s_sub_u32 s3, s3, 4
s_mov_b32 s26, 4096
s_mov_b32 s27, 0x20000
v_lshlrev_b32 v{vL16}, 4, v1
v_lshlrev_b32 v16, 3, v1
s_and_b32 s16, s3, 1
s_lshl_b32 s14, s16, 11
s_lshl_b32 s15, s7, 9
s_add_u32 s15, s15, s14
v_lshlrev_b32 v17, 2, v1
s_mov_b32 exec_hi, 0
ds_write_b32 v17, v2 offset:{L_F}
s_mov_b64 exec, -1
s_cmp_eq_u32 s3, 4
s_waitcnt lgkmcnt(0)
s_mov_b64 s[24:25], s[72:73]
s_barrier
s_cbranch_scc1 L_C
buffer_load_dwordx4 v[20:23], v{vL16}, s[24:27], s14 offen {xfl}
buffer_load_dwordx4 v[24:27], v{vL16}, s[24:27], s14 offen offset:1024 {xfl}
buffer_load_dwordx2 v[28:29], v16, s[24:27], s15 offen {xfl}
s_branch L_C""")

    a("L_S:")
    a("s_load_dwordx2 s[52:53], s[0:1], 64")
    a(f"""s_mov_b32 s34, {1024*8192}
s_mov_b32 s35, 0x20000
s_mov_b32 s38, {2*4*16384*256}
s_mov_b32 s39, 0x20000
s_mov_b32 s42, {2*4*16384*256}
s_mov_b32 s43, 0x20000
s_cmp_lg_u32 s9, 0
s_cselect_b32 s46, {1024*7168}, 0
s_cselect_b32 s54, {3584*2048}, 0
s_mov_b32 s47, 0x20000
s_mov_b32 s50, {4096*2048}
s_mov_b32 s51, 0x20000
s_mov_b32 s55, 0x20000
s_lshl_b32 s14, s7, 8
s_lshl_b32 s15, s3, 6
s_add_u32 s14, s14, s15
s_lshl_b32 s60, s14, 13
s_lshl_b32 s15, s6, 7
s_add_u32 s60, s60, s15
s_mul_i32 s63, s14, 7168
s_lshl_b32 s15, s8, 7
s_add_u32 s63, s63, s15""")
    if w1t:
        if w1t == 1: a("s_lshr_b32 s15, s8, 2\ns_and_b32 s16, s8, 3")
        else: a("s_mul_i32 s16, s8, 4682\ns_lshr_b32 s16, s16, 16\ns_mul_i32 s15, s16, 14\ns_sub_u32 s15, s8, s15")
        a("s_lshl_b32 s16, s16, 2\ns_add_u32 s16, s16, s7\ns_lshl_b32 s16, s16, 2\ns_add_u32 s16, s16, s3\ns_mul_i32 s63, s16, 114688\ns_lshl_b32 s15, s15, 9\ns_add_u32 s63, s63, s15")
    if tall: a("s_lshl_b32 s14, s7, 9\ns_lshl_b32 s15, s3, 15\ns_add_u32 s14, s14, s15")
    else: a("s_lshl_b32 s14, s14, 1")
    a(f"""s_lshl_b32 s64, s6, 17
s_add_u32 s64, s64, s14
s_lshl_b32 s65, s8, 17
s_add_u32 s65, s65, s14
s_lshl_b32 s61, s4, 22
{"s_lshl_b32 s15, s5, 10" if kvc != 8 else ""}
{"s_add_u32 s61, s61, s15" if not kvc else f"s_mul_i32 s69, s3, {kvc*8*1024}" if kvc != 8 else ""}
{"" if kvc in (0, 8) else "s_add_u32 s69, s69, s15"}
{"s_lshl_b32 s15, s3, 18" if not kvr else "s_lshl_b32 s69, s3, 3"}
{"s_add_u32 s61, s61, s15" if not kvr else {1: "s_add_u32 s69, s69, s4", 2: "s_lshl_b32 s15, s4, 2", 3: "s_mul_i32 s15, s4, 5", 0: "s_nop 0"}[kvr & 3]}
{"s_add_u32 s69, s69, s15" if (kvr & 3) >= 2 else ""}
s_add_u32 s61, s61, {12288*256}
s_mov_b32 s62, s61
s_mul_i32 s66, s3, {8*KSTR}
s_add_u32 s66, s66, {L_K}
s_mul_i32 s67, s3, {8*VSTR}
s_add_u32 s67, s67, {L_V}""")
    vOffQ, vOff1, vOffO, vOffK, vOffV = 18, 19, 4, 5, 6
    vLdsX, vLdsO, vPart, vFP, vFin, vT = 7, 12, 13, 14, 15, 17
    vM = 8
    a(f"""v_lshrrev_b32 v20, 4, v1
v_bfe_u32 v21, v1, 3, 1
v_and_b32 v22, 7, v1
v_lshl_add_u32 v23, v20, 2, v21
v_lshlrev_b32 v24, 4, v22
v_lshl_add_u32 v{vOffQ}, v23, 13, v24
v_mul_u32_u24 v25, 7168, v23
v_add_u32 v{vOff1}, v25, v24
v_and_b32 v25, 15, v1""")
    if w1t: a(f"v_mul_u32_u24 v{vOff1}, 28672, v20\nv_lshl_add_u32 v{vOff1}, v25, 4, v{vOff1}")
    if tall:
        a(f"v_lshlrev_b32 v{vOffO}, 4, v25\nv_lshl_add_u32 v{vOffO}, v20, {11 if tpat else 13}, v{vOffO}")
        if tpat == 2:
            a(f"s_bfe_u32 s69, s5, 0x10002\ns_lshl_b32 s14, s69, 8\nv_add_u32 v{vOffO}, s14, v{vOffO}\nv_xor_b32 v63, 0x100, v{vOffO}")
    else: a(f"v_lshl_add_u32 v{vOffO}, v23, 11, v24")
    for sw, vo in ((ksw, vOffK), (vsw, vOffV)):
        if sw == 0: a(f"v_lshlrev_b32 v{vo}, 4, v1")
        else:
            if sw == 1: a("v_xor_b32 v26, v25, v20")
            else: a(f"v_lshlrev_b32 v26, {sw-1}, v20\nv_xor_b32 v26, v25, v26")
            a(f"v_lshlrev_b32 v26, 4, v26\nv_lshl_add_u32 v{vo}, v20, 8, v26")
    DQ, D1, D2, DO = 64, 96, 128, 64
    if ' ' in order:
        seq = []; cntr = {}
        for tok in order.split():
            t, k = tok[0], int(tok[1:])
            for _ in range(k):
                seq.append((t, cntr.get(t, 0))); cntr[t] = cntr.get(t, 0) + 1
        assert all(v == 8 for v in cntr.values()) and len(seq) == 48
    else:
        seq = [(t, i) for t in order for i in range(8)]
    endpos = {t: n + 1 for n, (t, i) in enumerate(seq) if i == 7}
    info = {'q': (32, 60, vOffQ, 8192, DQ), '1': (44, 63, vOff1, 7168, D1), '2': (52, 65, vOffO, 2048, D2), 'o': (48, 64, vOffO, 2048, DO),
            'k': (36, 61, vOffK, None, None), 'v': (40, 62, vOffV, None, None)}
    ldflags0 = ldflags
    def issue(t, i):
        ldflags = (tf or {}).get(t, ldflags0)
        srd, so, vo, stride, D = info[t]
        if t in 'kv' and kvr:
            base, st = (66, KSTR) if t == 'k' else (67, VSTR)
            ii = (i + 4) & 7 if (kvr >= 4 and t == 'v') else i
            a(f"s_add_u32 s16, s69, {ii}\ns_and_b32 s16, s16, 31\ns_lshl_b32 s16, s16, 15\ns_add_u32 s16, s16, s{so}\ns_add_u32 m0, s{base}, {ii*st}")
            a(f"buffer_load_dwordx4 v{vo}, s[{srd}:{srd+3}], s16 offen {ldflags} lds")
        elif t in 'kv' and kvc == 8:
            base, st = (66, KSTR) if t == 'k' else (67, VSTR)
            if i > 0: a(f"s_add_u32 s{so}, s{so}, s92")
            a(f"s_add_u32 s16, s{88 + (i & 3)}, s{so}\ns_add_u32 m0, s{base}, {i*st}")
            a(f"buffer_load_dwordx4 v{vo}, s[{srd}:{srd+3}], s16 offen {ldflags} lds")
        elif t in 'kv' and kvc:
            base, st = (66, KSTR) if t == 'k' else (67, VSTR)
            if i > 0: a(f"s_add_u32 s{so}, s{so}, 32768")
            a(f"s_add_u32 s16, s69, {(kvc*i*1024) & 0x7fff}\ns_and_b32 s16, s16, 0x7c00\ns_add_u32 s16, s16, s{so}\ns_add_u32 m0, s{base}, {i*st}")
            a(f"buffer_load_dwordx4 v{vo}, s[{srd}:{srd+3}], s16 offen {ldflags} lds")
        elif t in 'kv':
            if i > 0: a(f"s_add_u32 s{so}, s{so}, 32768")
            base, st = (66, KSTR) if t == 'k' else (67, VSTR)
            a(f"s_add_u32 m0, s{base}, {i*st}")
            a(f"buffer_load_dwordx4 v{vo}, s[{srd}:{srd+3}], s{so} offen {ldflags} lds")
        elif tall and t in '2o':
            if i > 0 and i % 2 == 0: a(f"s_add_u32 s{so}, s{so}, {8192 if tpat else 2048}")
            if tpat == 2: a(f"buffer_load_dwordx4 v[{D+4*i}:{D+4*i+3}], v{63 if i & 1 else vo}, s[{srd}:{srd+3}], s{so} offen {ldflags}")
            else: a(f"buffer_load_dwordx4 v[{D+4*i}:{D+4*i+3}], v{vo}, s[{srd}:{srd+3}], s{so} offen offset:{256*(i&1)} {ldflags}")
        elif w1t and t == '1':
            if i > 0 and i % 2 == 0: a(f"s_add_u32 s{so}, s{so}, 7168")
            a(f"buffer_load_dwordx4 v[{D+4*i}:{D+4*i+3}], v{vo}, s[{srd}:{srd+3}], s{so} offen offset:{256*(i&1)} {ldflags}")
        elif wrot and t in 'q1':
            rs = {1: "s_lshr_b32 s16, s5, 2", 2: "s_mov_b32 s16, s4", 3: "s_lshr_b32 s16, s5, 2\ns_add_u32 s16, s16, s4"}[wrot]
            a(f"{rs}\ns_add_u32 s16, s16, {i>>1}\ns_and_b32 s16, s16, 3\ns_mul_i32 s16, s16, {16*stride}\ns_add_u32 s16, s16, {2*(i&1)*stride}\ns_add_u32 s16, s16, s{so}")
            a(f"buffer_load_dwordx4 v[{D+4*i}:{D+4*i+3}], v{vo}, s[{srd}:{srd+3}], s16 offen {ldflags}")
        elif fakebal and t == '1' and i >= 6:
            a(f"buffer_load_dwordx4 v[{D+4*i}:{D+4*i+3}], v{vo}, s[{srd}:{srd+3}], s{so} offen offset:0")
        else:
            if i > 0:
                rowof = lambda j: 16 * (j >> 1) + 2 * (j & 1)
                a(f"s_add_u32 s{so}, s{so}, {(rowof(i) - rowof(i-1)) * stride}")
            a(f"buffer_load_dwordx4 v[{D+4*i}:{D+4*i+3}], v{vo}, s[{srd}:{srd+3}], s{so} offen {'' if (fakebal and t == '1' and i == 5) else ldflags}")
    DUP, A0, A1, AC0, AC1, X = 20, 36, 40, 52, 56, 60
    def buildA(i, h):
        Ar = (A0, A1)[h]
        src = DUP + 4 * (i >> 1) + 2 * (i & 1) + h
        for r in range(4): a(f"v_and_b32 v{Ar+r}, v{src}, v{vM+r}")
    def mm(D, i, first, last):
        for h, (Ar, AC) in enumerate(((A0, AC0), (A1, AC1))):
            c = "0" if first else f"v[{AC}:{AC+3}]"
            a(f"v_mfma_f32_16x16x32_bf16 v[{AC}:{AC+3}], v[{Ar}:{Ar+3}], v[{D+4*i}:{D+4*i+3}], {c}")
            if not last: buildA(i + 1, h)
    AT = [36, 40, 44, 48]
    def buildT(j, rs=range(4)):
        for r in rs: a(f"v_and_b32 v{AT[j]+r}, v{DUP+j}, v{vM+r}")
    def mmT(D, i, first):
        AC = (AC0, AC1)[i & 1]
        c = "0" if first else f"v[{AC}:{AC+3}]"
        a(f"v_mfma_f32_16x16x32_bf16 v[{AC}:{AC+3}], v[{AT[i>>1]}:{AT[i>>1]+3}], v[{D+4*i}:{D+4*i+3}], {c}")
        j = (i >> 1) + 1
        if j < 4: buildT(j, (0, 1) if i % 2 == 0 else (2, 3))
    def dupreads(vaddr, base, n=4):
        return "\n".join(f"ds_read_b128 v[{DUP+4*t}:{DUP+4*t+3}], v{vaddr} offset:{base+64*t}" for t in range(n))
    def combine():
        for r in range(4): a(f"v_cndmask_b32 v{X+r}, v{AC0+r}, v{AC1+r}, s[18:19]")
        for r in range(4): a(f"v_add_f32_dpp v{X+r}, v{X+r}, v{X+r} row_ror:8 row_mask:0xf bank_mask:0xf")
    a("s_waitcnt lgkmcnt(0)\ns_mov_b64 s[32:33], s[78:79]")
    if bp is not None: a("s_mov_b32 s93, s88")
    if not pre2: a("s_barrier")
    if fakebal:
        a("s_cmp_lg_u32 s9, 0\ns_cselect_b32 s44, s44, s36\ns_cselect_b32 s45, s45, s37\ns_cselect_b32 s52, s52, s40\ns_cselect_b32 s53, s53, s41\ns_cselect_b32 s46, s46, 0x2000000\ns_cselect_b32 s54, s54, 0x2000000")
    if stamps: a(f"v_writelane_b32 v{vStamp}, s96, 0")
    stamp(1)
    st = dict(landed=0, setup=False)
    def setup():
        if st['setup']: return
        st['setup'] = True
        if wsb: a(f"s_add_u32 s56, s56, {wsb}\ns_addc_u32 s57, s57, 0")
        a("s_load_dword s11, s[56:57], 0")
        if sprio: a(f"s_setprio {sprio}")
        if kvc == 8:
            a("s_lshl_b32 s88, s5, 10\ns_mov_b32 s92, 0x8000")
            for k in range(1, 4): a(f"s_add_u32 s{88+k}, s{87+k}, 0x2000\ns_and_b32 s{88+k}, s{88+k}, 0x7c00")
        a("s_mov_b64 s[36:37], s[74:75]\ns_mov_b64 s[40:41], s[76:77]\ns_mov_b64 s[44:45], s[84:85]\ns_mov_b64 s[48:49], s[80:81]")
        a(f"""v_and_b32 v25, 1, v1
v_bfe_u32 v26, v1, 1, 2
v_mov_b32 v27, 0xffff
v_lshlrev_b32 v25, 4, v25
v_lshlrev_b32 v27, v25, v27""")
        for r in range(4):
            a(f"v_cmp_eq_u32 vcc, {r}, v26\nv_cndmask_b32 v{vM+r}, 0, v27, vcc")
        a(f"""v_lshlrev_b32 v25, 4, v20
v_lshl_add_u32 v{vLdsO}, v21, 8, v25
v_lshl_add_u32 v{vLdsX}, v21, 10, v25
s_lshl_b32 s14, s3, 8
v_add_u32 v{vLdsX}, s14, v{vLdsX}
v_lshrrev_b32 v25, 1, v20
v_and_b32 v26, 1, v20
v_lshlrev_b32 v27, 5, v22
v_lshl_add_u32 v27, v26, 4, v27
v_lshl_add_u32 v{vPart}, v25, 8, v27
s_lshl_b32 s14, s3, 9
v_add_u32 v{vPart}, s14, v{vPart}
s_mov_b32 s18, 0xff00ff00
s_mov_b32 s19, 0xff00ff00""")
        if WE:
            a(f"s_getreg_b32 s14, hwreg(HW_REG_XCC_ID, 0, 4)\ns_cmp_ge_u32 s14, {late}\ns_cselect_b64 vcc, -1, 0")
        if tall:
            a(f"""s_lshl_b32 s14, s3, 6
v_add_u32 v{vLdsO}, s14, v{vLdsO}
v_lshlrev_b32 v{vFin}, 4, v1
s_lshl_b32 s14, s3, 11
v_add_u32 v16, s14, v{vFin}
s_and_b32 s14, s3, 1
s_lshl_b32 s14, s14, 10
s_lshr_b32 s15, s3, 1
s_lshl_b32 s15, s15, 9
s_add_u32 s14, s14, s15
v_add_u32 v{vFin}, s14, v{vFin}
v_and_b32 v27, 15, v1
v_lshlrev_b32 v27, 5, v27
v_lshl_add_u32 v{vFP}, v26, 4, v27
s_lshl_b32 s14, s7, 10
s_and_b32 s15, s3, 1
s_lshl_b32 s15, s15, 9
s_add_u32 s14, s14, s15
s_lshr_b32 s15, s3, 1
s_lshl_b32 s15, s15, 12
s_add_u32 s14, s14, s15""")
        else:
            a(f"""v_lshl_add_u32 v{vFP}, v25, 12, v27
s_lshl_b32 s14, s7, 10
s_lshl_b32 s15, s3, 8
s_add_u32 s14, s14, s15""")
        a(f"s_mul_i32 s15, s6, {fps}\ns_add_u32 s14, s14, s15\ns_add_u32 s68, s14, {WS_FP}")
    def process(t, i):
        if sonly:
            if i == 7: stamp({'q': 2, 'k': 3, 'v': 4, '1': 5}[t])
            return
        if t in 'q1':
            if i == 0:
                poll_lds(F_X if t == 'q' else F_Y, 2, 60, (1 if t == 'q' else 2) + st.get('cofs', 0), dupreads(vLdsX, L_X if t == 'q' else L_Y))
                buildA(0, 0); buildA(0, 1)
            mm(info[t][4], i, i == 0, i == 7)
            if i == 7:
                combine()
                a("s_mov_b32 exec_lo, 0x00ff00ff\ns_mov_b32 exec_hi, 0x00ff00ff")
                a(f"ds_write_b128 v{vPart}, v[{X}:{X+3}] offset:{L_QPART if t == 'q' else L_HPART}")
                signal(F_Q if t == 'q' else F_H)
                stamp(2 if t == 'q' else 5)
        elif t == 'k' and qwait >= 2 and i == qwait - 2:
            signal(F_K2)
        elif t in 'kv' and i == 7:
            signal(F_K if t == 'k' else F_V)
            stamp(3 if t == 'k' else 4)
    gates = {}
    if g1 is not None and not sonly: gates[g1] = (F_QG, 4, '', 21)
    if g2 is not None and not sonly: gates[g2] = (F_OG, g2n, 'q1kv', 22)
    if g3 is not None and not sonly: gates[g3] = (F_OP, 4, 'q1kv', 24)
    N = len(seq)
    pend = list(range(N))
    def ready(m, n):
        t, i = seq[m]
        if t in '2o': return False
        if t == 'q' and st['landed'] < qstart: return False
        if t == '1' and n < p1start: return False
        return True
    assert all(endpos['q'] <= n - 8 for n, (t, i) in enumerate(seq) if t == 'o')
    fastcode = []
    def emit_stream(n0, W, pend, gates, fast):
      for n, (t, i) in enumerate(seq):
        if n < n0: continue
        if bp is not None and n == bp and not fast and not sonly:
            a(f"s_memrealtime s[90:91]\ns_waitcnt lgkmcnt(0)\ns_sub_u32 s90, s90, s93\ns_cmp_gt_u32 s90, {bt}\ns_cbranch_scc1 L_fast")
            fastcode.append((list(pend), st['landed']))
        want = n - W[n] + 1
        if n in gates:
            flag, cnt, need, code = gates[n]
            for m in [m for m in pend if seq[m][0] in need and m < n]:
                if m >= st['landed'] and not (seq[m][0] in 'kv' and seq[m][1] < 7):
                    a(f"s_waitcnt vmcnt({n - 1 - m})"); st['landed'] = m + 1
                process(*seq[m]); pend.remove(m)
            if flate and flag == F_OG: a("s_mov_b32 s71, s10")
            poll_lds(flag, cnt, 60, code + st.get('cofs', 0), sleep=gsl)
            if flate and flag == F_OG: a("s_sub_u32 s71, s10, s71")
        if want > st['landed']:
            setup()
            a(f"s_waitcnt vmcnt({n - want})"); st['landed'] = want
        if not sonly and ((gs is not None and n >= gs) or (gq is not None and gq[0] <= n < gq[1])):
            fl = F_OG if (gs is not None and n >= gs) else F_QG
            for m in [m for m in pend if seq[m][0] in 'q1kv' and m < n - wl + 1 and (seq[m][0] in 'kv' or fl == F_OG)]:
                pass
            Lk = newlab("SG")
            a(f"ds_read_b32 v60, v2 offset:{fl}\ns_waitcnt lgkmcnt(0)\nv_readfirstlane_b32 s14, v60\ns_cmp_ge_u32 s14, 4\ns_cbranch_scc1 {Lk}\ns_waitcnt vmcnt({wl - 1})\n{Lk}:")
        if WE and WE[n] < W[n] and n - WE[n] + 1 > st['landed']:
            setup()
            Lk = newlab("WK")
            a(f"s_cbranch_vccnz {Lk}\ns_waitcnt vmcnt({WE[n] - 1})\n{Lk}:")
        if t != 'q': setup()
        issue(t, i)
        if pre2 and n == pre2 - 1: a("s_barrier")
        if n == qpos and not sonly: signal(F_PQ)
        if n == opos and not sonly: signal(F_PO)
        cnt_ = 0
        for m in [m for m in pend if m < st['landed'] and ready(m, n)]:
            if seq[m][0] in 'q1':
                if cnt_ >= maxper: continue
                cnt_ += 1
            process(*seq[m]); pend.remove(m)
      for m in [m for m in pend if seq[m][0] not in '2o'] if (bp is not None and not sonly) else []:
        tt, ii = seq[m]
        if m >= st['landed'] and not (tt in 'kv' and ii < 7):
            a(f"s_waitcnt vmcnt({N - 1 - m})"); st['landed'] = m + 1
        process(tt, ii); pend.remove(m)
    emit_stream(0, W, pend, gates, False)
    if bp is not None and not sonly:
        st['landed'] = min(st['landed'], max(N - bw, endpos['1'], endpos['v']))
        a("L_join:")
    setup()
    stamp(6)
    nmm = 0
    tail = [m for m in pend if seq[m][0] not in '2o'] + [m for m in pend if seq[m][0] in '2o']
    for m in tail:
        t, i = seq[m]
        if sonly:
            if m >= st['landed'] and i == 7:
                a(f"s_waitcnt vmcnt({N - 1 - m})"); st['landed'] = m + 1
            if i == 7: stamp({'q': 2, 'k': 3, 'v': 4, '1': 5, '2': 7, 'o': 8}[t])
            continue
        if t in '2o' and i == 0:
            if nmm == 0:
                nonce(); a(f"v_mov_b32 v{vT}, s12")
            poll_lds(F_HD if t == '2' else F_O, 1 if t == '2' else 4, 60, 3 if t == '2' else 4, dupreads(vLdsO, L_H if t == '2' else L_O, 1 if tall else 4))
            stamp(7 if t == '2' else 8)
            if tall: buildT(0)
            else: buildA(0, 0); buildA(0, 1)
        if m >= st['landed'] and not (t in 'kv' and i < 7):
            a(f"s_waitcnt vmcnt({N - 1 - m})"); st['landed'] = m + 1
        if t in '2o':
            if xt: pass
            elif tall: mmT(info[t][4], i, nmm < 2)
            else: mm(info[t][4], i, nmm == 0, i == 7)
            nmm += 1
        else:
            process(t, i)
    stamp(9)
    if sonly: a("s_branch L_exit")
    if xt >= 2:
        a("s_barrier" if xt == 2 else "s_nop 0")
        tag4(X, X, vT)
        a("s_mov_b32 exec_hi, 0")
    elif tall:
        a(f"ds_write_b128 v16, v[{AC0}:{AC0+3}] offset:{L_FIN}\nds_write_b128 v16, v[{AC1}:{AC1+3}] offset:{L_FIN+1024}")
        if tall == 2:
            a("s_waitcnt lgkmcnt(0)\ns_barrier")
            for w in range(4): a(f"ds_read_b128 v[{20+4*w}:{23+4*w}], v{vFin} offset:{L_FIN+2048*w}")
            a("s_waitcnt lgkmcnt(0)")
        else:
            signal(F_B3)
            poll_lds(F_B3, 4, 60, 23, "\n".join(f"ds_read_b128 v[{20+4*w}:{23+4*w}], v{vFin} offset:{L_FIN+2048*w}" for w in range(4)))
        pk("add", 20, 20, 24); pk("add", 22, 22, 26); pk("add", 28, 28, 32); pk("add", 30, 30, 34)
        pk("add", X, 20, 28); pk("add", X + 2, 22, 30)
        tag4(X, X, vT)
        a("s_mov_b32 exec_hi, 0")
    else:
        combine()
        tag4(X, X, vT)
        a("s_mov_b32 exec_lo, 0x00ff00ff\ns_mov_b32 exec_hi, 0x00ff00ff")
    a(f"buffer_store_dwordx4 v[{X}:{X+3}], v{vFP}, s[56:59], s68 offen sc1\ns_mov_b64 exec, -1")
    stamp(10)
    if flate:
        a(f"s_cmp_lt_u32 s71, {flate}\ns_cbranch_scc1 L_noack\ns_waitcnt vmcnt(0)\n" + (f"s_sleep {fearly}\n" if fearly else "") + "L_noack:")
    elif fack: a("s_waitcnt vmcnt(0)")
    signal(F_FP)
    a("s_branch L_exit")

    if align: a(".p2align 12")
    a("L_C:")
    if sonly:
        if stamps: a(f"v_writelane_b32 v{vStamp}, s96, 0")
        a("s_branch L_exit")
    vT, vTb, vHi = 5, 6, 15
    vXf, vB2f, vB1 = 10, 11, 12
    if wsb: a(f"s_add_u32 s56, s56, {wsb}\ns_addc_u32 s57, s57, 0")
    a(f"""s_load_dword s11, s[56:57], 0
v_mov_b32 v{vHi}, 0xffff0000
s_cmp_eq_u32 s3, 4
s_cbranch_scc1 L_H""")
    if stamps: a(f"v_writelane_b32 v{vStamp}, s96, 0")
    F = 32
    def unpack(src, dst, n):
        for k in range(n):
            a(f"v_lshlrev_b32 v{dst+2*k}, 16, v{src+k}\nv_and_b32 v{dst+2*k+1}, v{vHi}, v{src+k}")
    def stats(F):
        pk("add", 48, F, F + 2); pk("add", 50, F + 4, F + 6); pk("add", 52, F + 8, F + 10); pk("add", 54, F + 12, F + 14)
        pk("add", 48, 48, 50); pk("add", 52, 52, 54); pk("add", 48, 48, 52)
        a("v_add_f32 v48, v48, v49")
        red64(48, 14)
        a("v_mov_b32 v60, 0x3a800000\nv_mul_f32 v48, s14, v60")
        for k in range(0, 16, 4):
            pk("add", 52, F + k, 48, mods="op_sel_hi:[1,0] neg_lo:[0,1] neg_hi:[0,1]")
            pk("add", 54, F + k + 2, 48, mods="op_sel_hi:[1,0] neg_lo:[0,1] neg_hi:[0,1]")
            if k == 0: pk("mul", 50, 52, 52); pk("mul", 62, 54, 54)
            else: pk("fma", 50, 52, 52, 50); pk("fma", 62, 54, 54, 62)
        pk("add", 50, 50, 62)
        a("v_add_f32 v49, v50, v51")
        red64(49, 14)
        a(f"""v_mul_f32 v49, s14, v60
v_cvt_pk_bf16_f32 v48, v48, v49
v_and_b32 v49, v{vHi}, v48
v_lshlrev_b32 v48, 16, v48
v_add_f32 v49, 0x3727c5ac, v49
v_cvt_pk_bf16_f32 v49, v49, v49
v_and_b32 v49, v{vHi}, v49
v_sqrt_f32 v49, v49
v_cvt_pk_bf16_f32 v49, v49, v49
v_and_b32 v49, v{vHi}, v49
v_rcp_f32 v50, v49""")
    def normalize(F, n):
        for k in range(0, n, 2):
            pk("add", F + k, F + k, 48, mods="op_sel_hi:[1,0] neg_lo:[0,1] neg_hi:[0,1]")
        for k in range(0, n, 2):
            a(f"v_cvt_pk_bf16_f32 v52, v{F+k}, v{F+k+1}")
            a(f"v_lshlrev_b32 v{F+k}, 16, v52\nv_and_b32 v{F+k+1}, v{vHi}, v52")
            pk("mul", 52, F + k, 50, mods="op_sel_hi:[1,0]")
            pk("fma", F + k, 52, 48, F + k, mods="op_sel:[0,1,0] op_sel_hi:[1,1,1] neg_lo:[1,0,0] neg_hi:[1,0,0]")
            pk("fma", F + k, F + k, 50, 52, mods="op_sel_hi:[1,0,1]")
    def roundbf(F, n):
        for k in range(0, n, 2):
            a(f"v_cvt_pk_bf16_f32 v52, v{F+k}, v{F+k+1}")
            a(f"v_lshlrev_b32 v{F+k}, 16, v52\nv_and_b32 v{F+k+1}, v{vHi}, v52")
    def tagconsts():
        nonce()
        a(f"""v_mov_b32 v{vT}, s12
v_and_b32 v{vTb}, 0xff, v{vT}
v_bfe_u32 v{vTb+1}, v{vT}, 8, 8
v_bfe_u32 v{vTb+2}, v{vT}, 16, 8
v_lshrrev_b32 v{vTb+3}, 24, v{vT}""")
    a("s_waitcnt vmcnt(1)")
    stamp(1)
    unpack(20, F, 8)
    stats(F)
    a("s_waitcnt vmcnt(0)")
    unpack(28, 56, 2)
    normalize(56, 4)
    a(f"s_lshl_b32 s14, s16, 10\nv_add_u32 v16, s14, v{vL16}")
    a("s_cmp_ge_u32 s3, 2\ns_cbranch_scc1 L_ypath")
    for k in range(4): a(f"v_cvt_pk_bf16_f32 v{60+k}, v{56+k}, v{56+k}")
    a(f"ds_write_b128 v16, v[60:63] offset:{L_X}")
    signal(F_X)
    stamp(2)
    if touch and not nt:
        a("s_cmp_eq_u32 s3, 0\ns_cbranch_scc1 L_t0")
        touches([9, 13] + ([22] if g2 is not None else []) + [4] + (['f'] if bp is not None else []))
        a("s_branch L_lndone\nL_t0:")
        touches([19, 8, 11, 2] + ([32] if (bp is not None and bp < 24 + W[28]) else []))
    a("L_lndone:")
    a("s_waitcnt lgkmcnt(0)")
    tagconsts()
    def publish_part(lbase, flag, code, vaddr, extra, B=96):
        poll_lds(flag, 4, B + 16, code, "\n".join(f"ds_read_b128 v[{B+4*w}:{B+3+4*w}], v{vL16} offset:{lbase+512*w}" for w in range(4)))
        pk("add", B, B, B + 4); pk("add", B + 2, B + 2, B + 6); pk("add", B + 8, B + 8, B + 12); pk("add", B + 10, B + 10, B + 14)
        pk("add", B, B, B + 8); pk("add", B + 2, B + 2, B + 10)
        tag4(B, B, vT)
        a("s_mov_b32 exec_hi, 0")
        a(f"buffer_store_dwordx4 v[{B}:{B+3}], v{vaddr}, s[56:59], s30 offen sc1")
        a(extra)
        a("s_mov_b64 exec, -1")
    def poll_hints(nq, code, thr=None, hw=16):
        L = newlab("HL"); D = newlab("HD"); R = newlab("HR")
        a(f"{L}:")
        if nq == 0: a("s_load_dwordx4 s[64:67], s[60:61], 0 glc")
        for q in range(nq * 16 // hw): a(f"s_load_dwordx{hw} s[{64+hw*q}:{63+hw*q+hw}], s[60:61], {64*q} glc")
        if thr is not None and thr < nq * 8:
            a("s_mov_b32 s14, 0\ns_waitcnt lgkmcnt(0)")
            for j in range(nq * 8): a(f"s_cmp_eq_u64 s[{64+2*j}:{65+2*j}], s[12:13]\ns_addc_u32 s14, s14, 0")
            a(f"s_cmp_ge_u32 s14, {thr}\ns_cbranch_scc1 {D}")
        else:
            a("s_waitcnt lgkmcnt(0)")
            for j in range(max(nq * 8, 2)):
                a(f"s_cmp_eq_u64 s[{64+2*j}:{65+2*j}], s[12:13]\ns_cbranch_scc0 {R}")
            a(f"s_branch {D}\n{R}:")
        if hsleep: a(f"s_sleep {hsleep}")
        spin(L, code)
        a(f"{D}:")
    def untag(G, n, vacc):
        for j in range(4 * n): a(f"v_xor_b32 v{G+j}, v{G+j}, v{vTb+(j&3)}")
        a(f"v_or3_b32 v{vacc}, v{G}, v{G+1}, v{G+2}")
        j = 3
        while j < 4 * n:
            if j + 1 < 4 * n: a(f"v_or3_b32 v{vacc}, v{vacc}, v{G+j}, v{G+j+1}"); j += 2
            else: a(f"v_or_b32 v{vacc}, v{vacc}, v{G+j}"); j += 1
        a(f"v_lshlrev_b32 v{vacc}, 24, v{vacc}")
    def retry_if(vacc, L, code):
        D = newlab("RD")
        a(f"v_cmp_ne_u32 vcc, 0, v{vacc}\ns_cbranch_vccz {D}")
        spin(L, code)
        a(f"{D}:")
    G = 16
    QRS = QR.bit_length() - 1; ORS = OR.bit_length() - 1
    QB = 6 + (16 // qhw).bit_length() - 1; OB = 7 + (16 // ohw).bit_length() - 1
    assert 16 * QR << QB <= WS_OH - WS_QH and 32 * OR << OB <= WS_LS - WS_OH
    vKa, vQw, vQr, vVa0, vVa1, vMl, vPw, vMw, vOd, vLs, vOh, vLg, vOw = 52, 53, 54, 55, 56, 57, 58, 59, 60, 61, 62, 63, 14
    a(f"""v_and_b32 v16, 15, v1
v_lshrrev_b32 v17, 4, v1
v_lshrrev_b32 v18, 2, v16
v_and_b32 v19, 3, v1
v_mul_u32_u24 v{vKa}, {KSTR}, v18
v_lshl_add_u32 v{vKa}, v19, 8, v{vKa}
v_xor_b32 v20, v17, v19
v_lshl_add_u32 v{vKa}, v20, 4, v{vKa}
s_mul_i32 s14, s3, {8*KSTR}
v_add_u32 v{vKa}, s14, v{vKa}
v_lshrrev_b32 v20, 5, v1
v_mul_u32_u24 v20, 288, v20
v_and_b32 v21, 31, v1
v_lshl_add_u32 v{vQw}, v21, 3, v20
s_mul_i32 s14, s3, 576
v_add_u32 v{vQw}, s14, v{vQw}
v_and_b32 v20, 7, v1
v_mul_u32_u24 v20, 288, v20
v_lshl_add_u32 v{vQr}, v17, 4, v20
v_mul_u32_u24 v20, {VSTR}, v17
v_lshl_add_u32 v20, v18, 8, v20
v_and_b32 v21, 1, v1
v_lshl_add_u32 v20, v21, 3, v20
v_add_u32 v20, {L_V}, v20
v_bfe_u32 v21, v1, 1, 1
s_lshl_b32 s14, s3, 2
v_add_u32 v21, s14, v21
v_lshlrev_b32 v22, 1, v18
v_xor_b32 v21, v21, v22
v_lshl_add_u32 v{vVa0}, v21, 4, v20
v_xor_b32 v21, 2, v21
v_lshl_add_u32 v{vVa1}, v21, 4, v20
v_lshlrev_b32 v{vMl}, 3, v16
v_and_b32 v20, 0x37, v1
v_lshlrev_b32 v13, 4, v20
v_and_b32 v21, 8, v1
{f"v_add_u32 v{vPw}, v13, v21" if half else f"v_mov_b32 v{vPw}, v{vL16}"}
{"" if half else f"v_mov_b32 v13, v{vL16}"}
s_lshl_b32 s14, s3, 10
v_add_u32 v{vPw}, s14, v{vPw}
s_lshl_b32 s14, s3, 7
v_add_u32 v{vMw}, s14, v{vMl}
v_and_b32 v20, 7, v1
v_bfe_u32 v21, v1, 3, 1
v_lshlrev_b32 v{vOd}, 14, v20
v_lshl_add_u32 v{vOd}, v21, 6, v{vOd}
v_lshl_add_u32 v{vOd}, v17, 4, v{vOd}
v_lshlrev_b32 v{vLs}, 10, v20
v_lshlrev_b32 v{vOh}, {OB}, v1
v_lshrrev_b32 v{vLg}, 3, v1
v_lshlrev_b32 v{vLg}, 3, v{vLg}
{f"v_lshl_add_u32 v{vOw}, v20, 2, v17" if not tpat else f"v_bfe_u32 v{vOw}, v1, 2, 1"}
{"" if not tpat else f"v_lshl_add_u32 v{vOw}, v{vOw}, 2, v17"}
{"" if not tpat else f"v_lshl_add_u32 v{vOw}, v{vOw}, 2, v19"}
v_lshlrev_b32 v{vOw}, 2, v{vOw}
v_add_u32 v{vOw}, s14, v{vOw}
s_lshl_b32 s14, s4, 5
s_add_u32 s14, s14, s3
s_lshl_b32 s28, s14, 12
s_lshl_b32 s17, s5, 7
s_add_u32 s28, s28, s17
s_add_u32 s28, s28, {WS_OP}
s_lshl_b32 s29, s14, 8
s_lshl_b32 s17, s5, 3
s_add_u32 s29, s29, s17
s_add_u32 s29, s29, {WS_LS}
s_lshl_b32 s31, s4, 2
s_add_u32 s31, s31, s3
s_lshl_b32 s31, s31, {OB+ORS}
s_lshr_b32 s17, s5, {ohw.bit_length()-1}
s_lshl_b32 s17, s17, 6
{"s_add_u32 s31, s31, s17" if not ocnt else ""}
s_and_b32 s17, s5, {ohw-1}
s_lshl_b32 s17, s17, 2
{"s_add_u32 s31, s31, s17" if not ocnt else ""}
s_add_u32 s31, s31, {WS_OH}
s_mov_b32 s18, 0xff00ff00
s_mov_b32 s19, 0xff00ff00
v_mov_b32 v48, 0x3db504f3
v_mov_b32 v50, 0x3fb8aa3b""")
    a("s_call_b64 s[94:95], L_oaddr")
    poll_lds(F_PQ if qpos else F_K2 if qwait >= 2 else F_K if qwait else F_Q, 4, 32, 19, sleep=ksl)
    Lq = newlab("GQ")
    if qdir == 2:
        a(f"s_branch {Lq}\nL_qslow:")
    if qdir != 1: poll_hints(1, 6, hw=qhw)
    stamp(4)
    a(f"{Lq}:")
    for i in range(4): a(f"buffer_load_dwordx4 v[{G+4*i}:{G+4*i+3}], v{vL16}, s[56:59], s62 offen offset:{1024*i} sc1")
    if g1 is not None or gq is not None: signal(F_QG)
    KF, VF, QF = 64, 96, 128
    poll_lds(F_K, 4, 32, 7, "\n".join(f"ds_read_b128 v[{KF+16*t+4*s}:{KF+16*t+4*s+3}], v{vKa} offset:{L_K+4*KSTR*t+64*s}" for t in range(2) for s in range(4)))
    vreads = []
    for w in range(4):
        for t, va in ((0, vVa0), (1, vVa1)):
            for T in range(2):
                r = VF + 8 * w + 4 * t + 2 * T
                vreads.append(f"ds_read_b64_tr_b16 v[{r}:{r+1}], v{va} offset:{(8*w+4*T)*VSTR}")
    a("s_waitcnt vmcnt(0)")
    if vpre: a(f"ds_read_b32 v33, v2 offset:{F_V}")
    for j in range(16): a(f"v_xor_b32 v{G+j}, v{G+j}, v{vTb+(j&3)}")
    pk("add", 36, G, G + 4); pk("add", 38, G + 2, G + 6); pk("add", 40, G + 8, G + 12); pk("add", 42, G + 10, G + 14)
    pk("add", 36, 36, 40); pk("add", 38, 38, 42)
    a(f"v_cvt_pk_bf16_f32 v36, v36, v37\nv_cvt_pk_bf16_f32 v37, v38, v39")
    a(f"ds_write_b64 v{vQw}, v[36:37] offset:{L_QBUF}")
    a(f"v_or3_b32 v32, v{G}, v{G+1}, v{G+2}\nv_or3_b32 v34, v{G+3}, v{G+4}, v{G+5}")
    for j in range(6, 14, 4): a(f"v_or3_b32 v32, v32, v{G+j}, v{G+j+1}\nv_or3_b32 v34, v34, v{G+j+2}, v{G+j+3}")
    a(f"v_or3_b32 v32, v32, v{G+14}, v{G+15}\nv_or_b32 v32, v32, v34\nv_lshlrev_b32 v32, 24, v32")
    retry_if(32, 'L_qslow' if qdir == 2 else Lq, 8)
    signal(F_B1)
    stamp(5)
    poll_lds(F_B1, 4, 32, 9, "\n".join(f"ds_read_b128 v[{QF+4*s}:{QF+4*s+3}], v{vQr} offset:{L_QBUF+64*s}" for s in range(4)))
    S = 40
    for s in range(4):
        for t in range(2):
            c = "0" if s == 0 else f"v[{S+4*t}:{S+4*t+3}]"
            a(f"v_mfma_f32_16x16x32_bf16 v[{S+4*t}:{S+4*t+3}], v[{KF+16*t+4*s}:{KF+16*t+4*s+3}], v[{QF+4*s}:{QF+4*s+3}], {c}")
    if vpre:
        a("v_readfirstlane_b32 s35, v33\ns_cmp_lt_u32 s35, 4\ns_cbranch_scc1 L_vlater")
        a("\n".join(vreads))
        a("L_vlater:\ns_nop 7")
    def xlane(v, tmp, op, fill=((), ())):
        for n_, sw in enumerate(("v_permlane16_swap_b32", "v_permlane32_swap_b32")):
            a(f"v_mov_b32 v{tmp}, v{v}")
            for f in fill[n_]: f()
            a(f"{sw} v{v}, v{tmp}\n{op} v{v}, v{v}, v{tmp}")
    if half:
        for k in range(4): a(f"v_cndmask_b32 v{S+k}, v{S+k}, v{S+4+k}, s[18:19]")
        nv_ = 4
    else: nv_ = 8
    for k in range(0, nv_, 2): a(f"v_cvt_pk_bf16_f32 v{32+k//2}, v{S+k}, v{S+k+1}")
    for k in range(0, nv_, 2): a(f"v_lshlrev_b32 v{S+k}, 16, v{32+k//2}\nv_and_b32 v{S+k+1}, v{vHi}, v{32+k//2}")
    for k in range(0, nv_, 2): pk("mul", S + k, S + k, 48, mods="op_sel_hi:[1,0]")
    for k in range(0, nv_, 2): a(f"v_cvt_pk_bf16_f32 v{32+k//2}, v{S+k}, v{S+k+1}")
    for k in range(0, nv_, 2): a(f"v_lshlrev_b32 v{S+k}, 16, v{32+k//2}\nv_and_b32 v{S+k+1}, v{vHi}, v{32+k//2}")
    l2 = lambda k: (lambda: pk("mul", S + k, S + k, 50, mods="op_sel_hi:[1,0]"))
    if half:
        a(f"v_max3_f32 v32, v{S}, v{S+1}, v{S+2}\nv_max_f32 v32, v32, v{S+3}")
        l2(0)(); l2(2)()
        a("v_max_f32_dpp v32, v32, v32 row_ror:8 row_mask:0xf bank_mask:0xf")
        xlane(32, 33, "v_max_f32")
    else:
        a(f"v_max3_f32 v32, v{S}, v{S+1}, v{S+2}\nv_max3_f32 v33, v{S+3}, v{S+4}, v{S+5}\nv_max3_f32 v32, v32, v{S+6}, v{S+7}\nv_max_f32 v32, v32, v33")
        xlane(32, 33, "v_max_f32", ((l2(0), l2(2)), (l2(4), l2(6))))
    a("v_mul_f32 v32, v50, v32")
    for k in range(0, nv_, 2): pk("add", S + k, S + k, 32, mods="op_sel_hi:[1,0] neg_lo:[0,1] neg_hi:[0,1]")
    for k in range(nv_): a(f"v_exp_f32 v{S+k}, v{S+k}")
    pk("add", 34, S, S + 2)
    if half:
        a(f"v_cvt_pk_bf16_f32 v36, v{S}, v{S+1}\nv_add_f32 v33, v34, v35\nv_cvt_pk_bf16_f32 v37, v{S+2}, v{S+3}")
        a(f"ds_write_b64 v{vPw}, v[36:37] offset:{L_P}")
        a("v_add_f32_dpp v33, v33, v33 row_ror:8 row_mask:0xf bank_mask:0xf")
    else:
        for k in range(0, 4, 2): a(f"v_cvt_pk_bf16_f32 v{36+k//2}, v{S+k}, v{S+k+1}")
        pk("add", 34, 34, S + 4)
        for k in range(4, 8, 2): a(f"v_cvt_pk_bf16_f32 v{36+k//2}, v{S+k}, v{S+k+1}")
        pk("add", 34, 34, S + 6)
        a(f"ds_write_b128 v{vPw}, v[36:39] offset:{L_P}")
        a(f"v_add_f32 v33, v34, v35")
    xlane(33, 35, "v_add_f32")
    a(f"ds_write_b64 v{vMw}, v[32:33] offset:{L_ML}")
    signal(F_B2)
    stamp(6)
    if vpre: a("s_cmp_ge_u32 s35, 4\ns_cbranch_scc1 L_vdone")
    poll_lds(F_V, 4, 32, 10)
    a("\n".join(vreads))
    if vpre: a("L_vdone:")
    PW = 16; ML = 32; AC = 128
    poll_lds(F_B2, 4, 40, 11, "\n".join([f"ds_read_b128 v[{PW+4*w}:{PW+4*w+3}], v13 offset:{L_P+1024*w}" for w in range(4)] +
                                       [f"ds_read_b64 v[{ML+2*w}:{ML+2*w+1}], v{vMl} offset:{L_ML+128*w}" for w in range(4)]))
    stamp(7)
    fill = [f"v_max3_f32 v41, v{ML}, v{ML+2}, v{ML+4}\nv_max_f32 v41, v41, v{ML+6}",
            f"v_sub_f32 v40, v{ML}, v41\nv_sub_f32 v42, v{ML+2}, v41",
            f"v_sub_f32 v44, v{ML+4}, v41\nv_sub_f32 v46, v{ML+6}, v41",
            "v_exp_f32 v40, v40", "v_exp_f32 v42, v42", "v_exp_f32 v44, v44", "v_exp_f32 v46, v46",
            f"v_mul_f32 v43, v40, v{ML+1}\nv_fmac_f32 v43, v42, v{ML+3}"]
    for w in range(4):
        for t in range(2):
            r = AC + 8 * w + 4 * t
            a(f"v_mfma_f32_16x16x32_bf16 v[{r}:{r+3}], v[{VF+8*w+4*t}:{VF+8*w+4*t+3}], v[{PW+4*w}:{PW+4*w+3}], 0")
            a(fill[2 * w + t])
    a(f"v_fmac_f32 v43, v44, v{ML+5}\nv_fmac_f32 v43, v46, v{ML+7}")
    for k in range(4): a(f"v_cndmask_b32 v{AC+k}, v{AC+k}, v{AC+4+k}, s[18:19]")
    a("v_rcp_f32 v48, v43\nv_log_f32 v43, v43")
    for w in range(1, 4):
        for k in range(4): a(f"v_cndmask_b32 v{AC+8*w+k}, v{AC+8*w+k}, v{AC+8*w+4+k}, s[18:19]")
    for k in (0, 2): pk("mul", 16 + k, AC + k, 40, mods="op_sel_hi:[1,0]")
    for w in range(1, 4):
        for k in (0, 2): pk("fma", 16 + k, AC + 8 * w + k, 40 + 2 * w, 16 + k, mods="op_sel_hi:[1,0,1]")
    for k in (0, 2): pk("mul", 16 + k, 16 + k, 48, mods="op_sel_hi:[1,0]")
    tag4(16, 16, vT)
    a(f"""buffer_store_dwordx4 v[16:19], v{vOd}, s[56:59], s28 offen sc1
v_add_f32 v46, v41, v43
v_mov_b32 v47, v{vT}
s_mov_b64 exec, 0xff
{HST2} v[46:47], v{vLs}, s[56:59], s29 offen sc1
s_mov_b32 exec_lo, {hex((1<<OR)-1)}
{f"buffer_atomic_add v3, v{vOh}, s[56:59], s31 offen sc1" if ocnt else f"{HST} v{vT}, v{vOh}, s[56:59], s31 offen sc1"}
s_mov_b64 exec, -1
s_mov_b32 s60, s36
s_mov_b32 s61, s37""")
    if g3 is not None: signal(F_OP)
    stamp(8)
    if oack: a("s_waitcnt vmcnt(0)")
    if opos: poll_lds(F_PO, 4, 32, 25, sleep=2)
    if ocnt:
        Lc = newlab("OC"); Dc = newlab("OD")
        a(f"{Lc}:\ns_load_dword s64, s[60:61], 0 glc\ns_waitcnt lgkmcnt(0)\ns_cmp_eq_u32 s64, 32\ns_cbranch_scc1 {Dc}")
        spin(Lc, 13)
        a(f"{Dc}:")
    elif othr: poll_hints(2, 13, othr, hw=ohw)
    elif touch: a("s_branch L_no13\nT_13:\ns_setpc_b64 s[94:95]\nL_no13:")
    stamp(9)
    Lo = newlab("GO")
    a("s_mov_b64 vcc, -1")
    a(f"{Lo}:")
    for i in range(4): a(f"buffer_load_dwordx2 v[{32+2*i}:{33+2*i}], v{vLg}, s[56:59], s39 offen offset:{64*i} sc1")
    a("s_mov_b64 exec, vcc")
    for i in range(4): a(f"buffer_load_dwordx4 v[{G+4*i}:{G+4*i+3}], v{vL16}, s[56:59], s38 offen offset:{1024*i} sc1")
    if (g2 is not None or gs is not None) and not ogs: signal(F_OG)
    else: a("s_mov_b64 exec, -1")
    a("s_waitcnt vmcnt(4)")
    a("v_max3_f32 v40, v32, v34, v36\nv_max_f32 v40, v40, v38")
    a(f"v_xor_b32 v41, v33, v{vT}\nv_bitop3_b32 v41, v41, v35, v{vT} bitop3:0xf6")
    a("v_max_f32_dpp v40, v40, v40 row_ror:8 row_mask:0xf bank_mask:0xf")
    xlane(40, 42, "v_max_f32", ((lambda: a(f"v_bitop3_b32 v41, v41, v37, v{vT} bitop3:0xf6\nv_bitop3_b32 v41, v41, v39, v{vT} bitop3:0xf6"),), ()))
    for i in range(4): a(f"v_sub_f32 v{32+2*i}, v{32+2*i}, v40")
    for i in range(4): a(f"v_exp_f32 v{32+2*i}, v{32+2*i}")
    a("s_waitcnt vmcnt(0)")
    xs = [f"v_xor_b32 v{G+j}, v{G+j}, v{vTb+(j&3)}" for j in range(16)]
    a("v_add_f32 v43, v32, v34\nv_add_f32 v42, v36, v38\nv_add_f32 v43, v43, v42")
    a("\n".join(xs[0:2])); a("v_add_f32_dpp v43, v43, v43 row_ror:8 row_mask:0xf bank_mask:0xf")
    xlane(43, 42, "v_add_f32", ((lambda: a("\n".join(xs[2:6])),), (lambda: a("\n".join(xs[6:10])),)))
    a("v_rcp_f32 v43, v43"); a("\n".join(xs[10:16]))
    for k in (0, 2): pk("mul", 44 + k, G + k, 32, mods="op_sel_hi:[1,0]")
    for i in range(1, 4):
        for k in (0, 2): pk("fma", 44 + k, G + 4 * i + k, 32 + 2 * i, 44 + k, mods="op_sel_hi:[1,0,1]")
    ors = [f"v_or3_b32 v42, v{G}, v{G+1}, v{G+2}"] + [f"v_or3_b32 v42, v42, v{G+j}, v{G+j+1}" for j in range(3, 15, 2)] + [f"v_or_b32 v42, v42, v{G+15}", "v_lshl_or_b32 v42, v42, 24, v41"]
    def rscatter(v, fill=((), (), ())):
        for f in fill[0]: a(f)
        a(f"v_permlane32_swap_b32 v{v}, v{v+2}\nv_permlane32_swap_b32 v{v+1}, v{v+3}")
        a(f"v_add_f32 v{v}, v{v}, v{v+2}\nv_add_f32 v{v+1}, v{v+1}, v{v+3}")
        for f in fill[1]: a(f)
        a(f"v_permlane16_swap_b32 v{v}, v{v+1}\nv_add_f32 v{v}, v{v}, v{v+1}")
        for f in fill[2]: a(f)
    rscatter(44, (ors[0:2], ors[2:4], ors[4:6]))
    a("v_add_f32_dpp v44, v44, v44 row_ror:8 row_mask:0xf bank_mask:0xf")
    a("\n".join(ors[6:]))
    a("v_mul_f32 v44, v44, v43\nv_cvt_pk_bf16_f32 v44, v44, v44")
    a("v_cmp_ne_u32 vcc, 0, v42\ns_cbranch_vccnz L_oretry")
    a(f"ds_write_b32 v{vOw}, v44 offset:{L_O}")
    signal(F_O)
    if g2 is not None and ogs: signal(F_OG)
    stamp(11)
    a("s_branch L_exit")
    if align >= 2: a(".p2align 12")
    if touch: a("T_y:\ns_setpc_b64 s[94:95]")
    a("L_ypath:")
    roundbf(56, 4)
    normalize(F, 16)
    roundbf(F, 16)
    stats(F)
    normalize(56, 4)
    for k in range(4): a(f"v_cvt_pk_bf16_f32 v{60+k}, v{56+k}, v{56+k}")
    a(f"ds_write_b128 v16, v[60:63] offset:{L_Y}")
    signal(F_Y)
    stamp(3)
    a("s_branch L_lndone")

    a("L_oretry:")
    a("\n".join(xs))
    spin(Lo, 14)
    a("L_oaddr:")
    a(f"""s_and_b32 s14, s4, 3
s_lshl_b32 s14, s14, 2
s_add_u32 s14, s14, s3
s_lshl_b32 s14, s14, {QB+QRS}
s_lshr_b32 s15, s4, 2
s_lshl_b32 s15, s15, 5
s_add_u32 s15, s15, s5
s_lshr_b32 s15, s15, {6-QRS}
s_lshl_b32 s15, s15, {QB}
s_add_u32 s14, s14, s15
s_add_u32 s14, s14, {WS_QH}
s_add_u32 s60, s56, s14
s_addc_u32 s61, s57, 0
s_and_b32 s14, s4, 3
s_lshl_b32 s14, s14, 1
s_lshr_b32 s15, s4, 2
s_add_u32 s14, s14, s15
s_lshl_b32 s14, s14, 14
s_lshl_b32 s15, s3, 12
s_add_u32 s14, s14, s15
s_add_u32 s62, s14, {WS_QP}""")
    a(f"""s_lshr_b32 s14, s3, 1
s_and_b32 s15, s6, 1
s_lshl_b32 s15, s15, 1
s_and_b32 s16, s3, 1
s_add_u32 s15, s15, s16
s_lshl_b32 s16, s14, 2
s_lshr_b32 s17, s6, 4
s_add_u32 s16, s16, s17
s_lshl_b32 s16, s16, 2
s_add_u32 s16, s16, s15
s_lshl_b32 s16, s16, {ORS}
s_bfe_u32 s17, s6, 0x30001
s_lshl_b32 s17, s17, 2
s_add_u32 s17, s17, s7
s_lshr_b32 s17, s17, {5-ORS}
s_add_u32 s16, s16, s17
s_lshl_b32 s16, s16, {OB}
s_add_u32 s16, s16, {WS_OH}
s_add_u32 s36, s56, s16
s_addc_u32 s37, s57, 0
s_lshl_b32 s16, s14, 5
s_lshr_b32 s17, s6, 1
s_add_u32 s16, s16, s17
s_lshl_b32 s16, s16, 2
s_add_u32 s16, s16, s15
s_lshl_b32 s38, s16, 12
s_add_u32 s38, s38, {WS_OP}
s_lshl_b32 s39, s16, 8
s_add_u32 s39, s39, {WS_LS}""")
    a("s_setpc_b64 s[94:95]")
    a("L_H:")
    if touch and not nt: touches(['y'])
    a("""s_mov_b64 s[36:37], s[86:87]
s_load_dwordx2 s[40:41], s[0:1], 72
s_load_dwordx2 s[44:45], s[0:1], 80""")
    if stamps: a(f"v_writelane_b32 v{vStamp}, s96, 0")
    a(f"""s_mov_b32 s38, 7168
s_mov_b32 s39, 0x20000
s_mov_b32 s42, 2048
s_mov_b32 s43, 0x20000
s_mov_b32 s46, 4096
s_mov_b32 s47, 0x20000
v_and_b32 v16, 1, v1
v_lshrrev_b32 v17, 4, v1
v_lshl_add_u32 v16, v16, 2, v17
v_lshlrev_b32 v14, 1, v16
s_lshl_b32 s34, s4, 5
s_add_u32 s34, s34, s5
s_lshl_b32 s33, s34, 4
s_and_b32 s15, s33, 2047
v_and_b32 v16, 15, v1
v_lshlrev_b32 v16, 3, v16
s_lshl_b32 s17, s8, 7
s_waitcnt lgkmcnt(0)
buffer_load_ushort v{vXf}, v14, s[24:27], s33 offen {xfl}
buffer_load_ushort v{vB2f}, v14, s[40:43], s15 offen {xfl}
buffer_load_dwordx2 v[{vB1}:{vB1+1}], v16, s[36:39], s17 offen {xfl}""")
    tagconsts()
    if ocnt:
        a(f"""s_and_b32 s14, s6, 15
s_lshl_b32 s14, s14, 2
s_add_u32 s14, s14, s7
s_cmp_ge_u32 s14, {8*OR}
s_cbranch_scc1 L_noclr
s_lshr_b32 s15, s14, {2+ORS}
s_lshl_b32 s15, s15, 2
s_lshr_b32 s17, s6, 4
s_add_u32 s15, s15, s17
s_lshl_b32 s15, s15, {2+ORS}
s_and_b32 s14, s14, {4*OR-1}
s_add_u32 s14, s14, s15
s_lshl_b32 s14, s14, 7
s_add_u32 s14, s14, {WS_OH}
s_mov_b64 exec, 1
buffer_atomic_swap v2, v2, s[56:59], s14 offen sc1
s_mov_b64 exec, -1
s_waitcnt vmcnt(0)
L_noclr:""")
    a(f"""v_lshrrev_b32 v80, 4, v1
v_and_b32 v81, 15, v1
v_lshlrev_b32 v81, 4, v81
v_lshl_add_u32 v80, v80, 14, v81
v_lshlrev_b32 v81, {QB}, v1
s_lshr_b32 s14, s6, 4
s_lshl_b32 s14, s14, 15
s_bfe_u32 s15, s6, 0x20002
s_lshl_b32 s15, s15, 12
s_add_u32 s14, s14, s15
s_lshl_b32 s15, s7, 10
s_add_u32 s14, s14, s15
s_and_b32 s15, s6, 3
s_lshl_b32 s15, s15, 8
s_add_u32 s14, s14, s15
s_add_u32 s30, s14, {WS_QP}
s_lshr_b32 s15, s6, 2
s_lshl_b32 s15, s15, {QB+QRS}
s_and_b32 s17, s6, 3
s_lshl_b32 s17, s17, 2
s_add_u32 s17, s17, s7
s_lshr_b32 s16, s17, {qhw.bit_length()-1}
s_lshl_b32 s16, s16, 6
s_add_u32 s15, s15, s16
s_and_b32 s17, s17, {qhw-1}
s_lshl_b32 s17, s17, 2
s_add_u32 s15, s15, s17
s_add_u32 s31, s15, {WS_QH}""")
    if qdir == 1: publish_part(L_QPART, F_Q, 5, 80, "s_nop 0")
    else: publish_part(L_QPART, F_Q, 5, 80, ("s_mov_b64 exec, -1" if QR == 64 else f"s_mov_b32 exec_lo, {hex((1<<QR)-1)}") + f"\n{HST} v{vT}, v81, s[56:59], s31 offen sc1")
    stamp(3)
    if touch and not nt: touches([12, 16, 18])
    if tpat: a("v_bfe_u32 v48, v1, 2, 3\nv_lshlrev_b32 v48, 6, v48\nv_and_b32 v49, 3, v1\nv_lshl_add_u32 v48, v49, 2, v48")
    else: a("v_and_b32 v48, 31, v1\nv_lshlrev_b32 v48, 4, v48")
    a(f"""s_nop 0
s_lshl_b32 s52, s34, 5
s_add_u32 s52, s52, {WS_FP}
s_add_u32 s53, s52, {32*fps}
v_lshrrev_b32 v50, 1, v1
v_mul_u32_u24 v50, {fps}, v50
v_and_b32 v51, 1, v1
v_lshl_add_u32 v50, v51, 4, v50
s_waitcnt vmcnt(2)
v_lshlrev_b32 v{vXf}, 16, v{vXf}
v_lshlrev_b32 v{vB2f}, 16, v{vB2f}
v_add_f32 v{vXf}, v{vXf}, v{vB2f}
v_mov_b32 v44, 0
v_mov_b32 v45, 0
v_mov_b32 v46, 0
v_mov_b32 v47, 0
s_cmp_eq_u32 s9, 0
s_cbranch_scc1 L_hwrite
s_lshl_b32 s62, s8, 11
s_add_u32 s62, s62, {WS_HP}
s_lshl_b32 s15, s7, 9
s_add_u32 s30, s62, s15""")
    unpack(vB1, 76, 2)
    if hloc:
        a(f"s_add_u32 s31, s30, {WS_HL - WS_HP}\ns_add_u32 s63, s62, {WS_HL - WS_HP}\ns_add_u32 s60, s56, s63\ns_addc_u32 s61, s57, 0\ns_and_b32 s28, s12, 0xff\ns_mov_b32 s17, 0")
        publish_part(L_HPART, F_H, 12, vL16, f"buffer_store_dwordx4 v[96:99], v{vL16}, s[56:59], s31 offen")
        stamp(4)
        L1 = newlab("HA"); L2 = newlab("HB")
        a(f"{L1}:")
        for k in range(4): a(f"s_load_dword s{64+k}, s[60:61], {512*k} glc")
        a(f"s_add_u32 s17, s17, 1\ns_cmp_ge_u32 s17, {hloc}\ns_cbranch_scc1 {L2}\ns_waitcnt lgkmcnt(0)")
        a("s_xor_b32 s64, s64, s28\ns_xor_b32 s65, s65, s28\ns_xor_b32 s66, s66, s28\ns_xor_b32 s67, s67, s28\ns_or_b32 s64, s64, s65\ns_or_b32 s66, s66, s67\ns_or_b32 s64, s64, s66\ns_and_b32 s64, s64, 0xff")
        a(f"s_cbranch_scc1 {L1}")
        for i in range(2): a(f"buffer_load_dwordx4 v[{G+4*i}:{G+4*i+3}], v{vL16}, s[56:59], s63 offen offset:{1024*i} sc1")
        stamp(5)
        a("s_waitcnt vmcnt(0)")
        untag(G, 2, 42)
        a(f"v_cmp_ne_u32 vcc, 0, v42\ns_cbranch_vccz L_hok\ns_branch {L1}\n{L2}:\ns_waitcnt lgkmcnt(0)")
    else:
        a(f"s_lshl_b32 s14, s8, 7\ns_add_u32 s14, s14, {WS_HH}\ns_add_u32 s60, s56, s14\ns_addc_u32 s61, s57, 0\ns_lshl_b32 s17, s7, 2\ns_add_u32 s31, s14, s17")
        publish_part(L_HPART, F_H, 12, vL16, f"s_mov_b32 exec_lo, 1\n{HST} v{vT}, v2, s[56:59], s31 offen sc1")
        stamp(4)
        poll_hints(0, 15)
        stamp(5)
    Lh = newlab("GH")
    a(f"{Lh}:")
    for i in range(2): a(f"buffer_load_dwordx4 v[{G+4*i}:{G+4*i+3}], v{vL16}, s[56:59], s62 offen offset:{1024*i} sc1")
    a("s_waitcnt vmcnt(0)")
    untag(G, 2, 42)
    retry_if(42, Lh, 16)
    a("L_hok:")
    stamp(6)
    pk("add", G, G, G + 4); pk("add", G + 2, G + 2, G + 6)
    for k in range(4): a(f"v_mov_b32 v{G+4+k}, v{G+k}")
    for k in range(4): a(f"v_permlane32_swap_b32 v{G+k}, v{G+4+k}")
    pk("add", G, G, G + 4); pk("add", G + 2, G + 2, G + 6)
    roundbf(G, 4)
    pk("add", G, G, 76); pk("add", G + 2, G + 2, 78)
    roundbf(G, 4)
    a("s_mov_b32 s14, 0x3d372713\ns_mov_b32 s15, 0xc0135761")
    for k in (0, 2): pk("mul", 24 + k, G + k, G + k)
    for k in (0, 2): pk("mul", 24 + k, 24 + k, G + k)
    for k in range(4): a(f"v_fma_f32 v{24+k}, s14, v{24+k}, v{G+k}")
    for k in range(4): a(f"v_mul_f32 v{24+k}, s15, v{24+k}")
    for k in range(4): a(f"v_exp_f32 v{24+k}, v{24+k}")
    for k in range(4): a(f"v_add_f32 v{24+k}, 1.0, v{24+k}")
    for k in range(4): a(f"v_rcp_f32 v{24+k}, v{24+k}")
    for k in (0, 2): pk("mul", 24 + k, 24 + k, G + k)
    for k in range(4): a(f"v_cvt_pk_bf16_f32 v{44+k}, v{24+k}, v{24+k}")
    a("L_hwrite:")
    if tpat:
        for k in range(4): a(f"ds_write_b32 v48, v{44+k} offset:{L_H+16*k}")
    else: a(f"ds_write_b128 v48, v[44:47] offset:{L_H}")
    signal(F_HD)
    stamp(12)
    if tall == 2 and xt != 3: a("s_waitcnt lgkmcnt(0)\ns_barrier")
    poll_lds(F_FP, 4, 32, 18, sleep=0 if tall == 2 else 1)
    stamp(7)
    if fdelay: a(f"s_sleep {fdelay}")
    Lf = newlab("GF"); Ld = newlab("GD")
    sets = [64 + 8 * k for k in range(fsets)]
    def fissue(R):
        for i in range(2): a(f"buffer_load_dwordx4 v[{R+4*i}:{R+4*i+3}], v50, s[56:59], s{52+i} offen sc1")
    for R in sets[:-1]: fissue(R)
    a(f"{Lf}:")
    if fastfin:
        for k, R in enumerate(sets):
            fissue(sets[k - 1])
            a(f"s_waitcnt vmcnt({2*(fsets-1)})")
            for j in range(8): a(f"v_xor_b32 v{R+j}, v{R+j}, v{vTb+(j&3)}")
            pk("add", 44, R, R + 4); pk("add", 46, R + 2, R + 6)
            rscatter(44, ((f"v_or3_b32 v42, v{R}, v{R+1}, v{R+2}", f"v_or3_b32 v42, v42, v{R+3}, v{R+4}"),
                          (f"v_or3_b32 v42, v42, v{R+5}, v{R+6}", f"v_or_b32 v42, v42, v{R+7}"),
                          ("v_lshlrev_b32 v42, 24, v42", "v_cmp_ne_u32 vcc, 0, v42")))
            a("v_add_f32_dpp v44, v44, v44 quad_perm:[2,3,0,1] row_mask:0xf bank_mask:0xf")
            a(f"s_cbranch_vccz {Ld}")
        spin(Lf, 17)
        a(f"{Ld}:")
        stamp(13)
        R = 44
        a("s_nop 0")
        a(f"v_add_f32_dpp v{R}, v{R}, v{R} row_ror:4 row_mask:0xf bank_mask:0xf")
        a(f"v_add_f32_dpp v{R}, v{R}, v{R} row_ror:8 row_mask:0xf bank_mask:0xf")
    else:
        for k, R in enumerate(sets):
            fissue(sets[k - 1])
            a(f"s_waitcnt vmcnt({2*(fsets-1)})")
            untag(R, 2, 42)
            pk("add", 44, R, R + 4); pk("add", 46, R + 2, R + 6)
            a(f"v_cmp_ne_u32 vcc, 0, v42\ns_cbranch_vccz {Ld}")
        spin(Lf, 17)
        a(f"{Ld}:")
        stamp(13)
        R = 44
        rscatter(R)
        for m in ("quad_perm:[2,3,0,1]", "row_ror:4", "row_ror:8"):
            a(f"v_add_f32_dpp v{R}, v{R}, v{R} {m} row_mask:0xf bank_mask:0xf")
    a(f"s_mov_b32 exec_lo, 0x00030003\ns_mov_b32 exec_hi, 0x00030003")
    a(f"v_add_f32 v{R}, v{R}, v{vXf}\nv_cvt_pk_bf16_f32 v{R}, v{R}, v{R}\nbuffer_store_short v{R}, v14, s[44:47], s33 offen {oflags}")
    a(f"s_cmp_lg_u32 s2, 0\ns_cbranch_scc1 L_noep\ns_add_u32 s11, s11, 1\nv_mov_b32 v{R+1}, s11\ns_mov_b64 exec, 1\nbuffer_store_dword v{R+1}, v2, s[56:59], 0 offen {oflags}\nL_noep:\ns_mov_b64 exec, -1")
    stamp(14, True)
    if fixdur:
        a(f"s_add_u32 s96, s96, {fixdur}\nL_fix:\ns_memrealtime s[98:99]\ns_waitcnt lgkmcnt(0)\ns_sub_u32 s98, s98, s96\ns_cmp_lt_i32 s98, 0\ns_cbranch_scc1 L_fix")
    a("L_exit:")
    if stamps:
        a(f"""s_waitcnt vmcnt(0)
v_lshrrev_b32 v20, 6, v0
v_lshlrev_b32 v20, 6, v20
v_lshl_add_u32 v20, v1, 2, v20
s_lshl_b32 s14, s2, 10
s_add_u32 s14, s14, {WS_ST}
s_mov_b64 exec, 0xffff
buffer_store_dword v{vStamp}, v20, s[56:59], s14 offen""")
    a("L_end:\ns_endpgm")
    a("L_fail:")
    a("""s_load_dwordx2 s[48:49], s[0:1], 88
s_mov_b32 s50, 256
s_mov_b32 s51, 0x20000
s_lshl_b32 s14, s15, 2
v_mov_b32 v20, s2
v_add_u32 v20, 1, v20
s_waitcnt lgkmcnt(0)
s_mov_b64 exec, 1
buffer_store_dword v20, v2, s[48:51], s14 offen
s_endpgm""")
    if fastcode:
        a(".p2align 12\nT_f:\ns_setpc_b64 s[94:95]\nL_fast:")
        pend2, st['landed'] = fastcode[0]
        st['cofs'] = 30
        Wf = [max(w, bw) for w in W]
        emit_stream(bp, Wf, pend2, gates if bgate else {}, True)
        a("s_branch L_join")
    if post: a(f".fill {post}, 4, 0xbf800000")
    nv = 168
    a(f""".section .rodata,"a"
.p2align 6
.amdhsa_kernel {KNAME}
  .amdhsa_next_free_vgpr {nv}
  .amdhsa_next_free_sgpr 102
  .amdhsa_accum_offset {nv}
  .amdhsa_group_segment_fixed_size 0
  .amdhsa_kernarg_size 104
  .amdhsa_user_sgpr_count 2
  .amdhsa_user_sgpr_kernarg_segment_ptr 1
  .amdhsa_system_sgpr_workgroup_id_x 1
  .amdhsa_float_denorm_mode_32 3
.end_amdhsa_kernel""")
    return a.finish()

if __name__ == "__main__":
    out = sys.argv[1] if len(sys.argv) > 1 else "x.s"
    open(out, "w").write(gen())
```

```python
import sys
from asmlib import Asm

KNAME = "parallel_sum__sliding_block_cached__mixer_channel_mlp__decode_kernel"

WS_HH = 0x1000; WS_QH = 0x4000; WS_OH = 0x8000; WS_LS = 0x18000; WS_QP = 0x28000
WS_HP = 0x48000; WS_HL = 0x64000; WS_FP = 0x64000; WS_OP = 0x100000; WS_ST = 0x200000
WS_BYTES = 0x10000000
KSTR = 1088; VSTR = 1152
L_X = 0
L_Y = L_X + 2048; L_QPART = L_Y + 2048; L_HPART = L_QPART + 2048
L_QBUF = L_HPART + 2048; L_P = L_QBUF + 2304; L_ML = L_P + 4096
L_O = L_ML + 512; L_H = L_O + 512; L_F = L_H + 512
L_K = L_F + 128; L_V = L_K + 32 * KSTR; L_END = L_V + 32 * VSTR
L_FIN = L_K
F_X, F_Y, F_Q, F_K, F_V, F_H, F_B1, F_B2, F_O, F_HD, F_QG, F_OG, F_FP, F_B3, F_OP, F_K2, F_PQ, F_PO = [L_F + 4 * i for i in range(18)]
TO_LIMIT = 1 << 20
NW = 9

def gen(W=(5, 5, 5, 6, 5, 5), stamps=0, ldflags="nt", order="qkv1o2", qstart=5, p1start=0, cprio=3, QR=4, OR=4, g1=None, g2=44,
        sonly=0, fsets=1, fack=1, hloc=0, vpre=1, hat=1, tall=2, fdelay=0, align=2, touch=1, nt=0, tlb=0, oflags='', WE=None, late=4, pre=832, post=0, g3=None, hsleep=0, oack=1, qwait=1, rq=3, r1=2, othr=16, qthr=8, ogs=0, fakebal=0, half=1, tpat=1, pre2=1, fastfin=0, fixdur=0, qpos=None, opos=None, maxper=8, gs=None, wl=2, gq=None, wrot=0, w1t=0, ksw=1, vsw=2, kvr=0, kvc=8, qdir=0, fps=8192, ops=0, g2n=4, gsl=1, ocnt=0, qhw=16, ohw=16, flate=0, bp=None, bw=8, bt=480, bgate=1, fearly=0, ksl=2, xt=0, sprio=0, tf=None, wsb=0, xfl='', stfl='sc1', gfl='sc1', ptouch=0, ptf='sc1', probe=None):
    a = Asm()
    if isinstance(W, int): W = [W] * 48
    if len(W) == 6: W = [w for w in W for _ in range(8)]
    if isinstance(WE, int): WE = [WE] * 48
    if WE and len(WE) == 6: WE = [w for w in WE for _ in range(8)]
    lab = [0]
    HST = "buffer_atomic_swap" if hat else "buffer_store_dword"
    HST2 = "buffer_atomic_swap_x2" if hat else "buffer_store_dwordx2"
    def newlab(p="L"):
        lab[0] += 1
        return f"{p}_{lab[0]}"
    vStamp = 160
    stubs = (2, 22, 4, 19, 8, 9, 11, 13, 12, 16, 18, 32) if touch else ()
    def touches(codes):
        for c in codes: a(f"s_call_b64 s[94:95], T_{c}")
    def stamp(k, light=False):
        if stamps == 1 or (stamps == 2 and light):
            a(f"s_memrealtime s[98:99]\ns_waitcnt lgkmcnt(0)\nv_writelane_b32 v{vStamp}, s98, {k}")
    def signal(flag):
        a(f"s_mov_b64 exec, 1\nds_add_u32 v2, v3 offset:{flag}\ns_mov_b64 exec, -1")
    def spin(L, code):
        a(f"s_add_u32 s10, s10, 1\ns_cmp_lt_u32 s10, {TO_LIMIT}\ns_cbranch_scc1 {L}\ns_mov_b32 s15, {code}\ns_branch L_fail")
        if code in stubs: a(f"T_{code}:\ns_setpc_b64 s[94:95]")
    def poll_lds(flag, n, vt, code, spec=None, sleep=0):
        L = newlab("PL"); D = newlab("PD")
        a(f"{L}:\nds_read_b32 v{vt}, v2 offset:{flag}")
        if spec: a(spec)
        a(f"s_waitcnt lgkmcnt(0)\nv_readfirstlane_b32 s14, v{vt}\ns_cmp_ge_u32 s14, {n}\ns_cbranch_scc1 {D}")
        if sleep: a(f"s_sleep {sleep}")
        spin(L, code)
        a(f"{D}:")
    def red64(v, s):
        for m in ("quad_perm:[1,0,3,2] row_mask:0xf", "quad_perm:[2,3,0,1] row_mask:0xf", "row_half_mirror row_mask:0xf",
                  "row_mirror row_mask:0xf", "row_bcast:15 row_mask:0xa", "row_bcast:31 row_mask:0xc"):
            a(f"v_add_f32_dpp v{v}, v{v}, v{v} {m} bank_mask:0xf")
        a(f"v_readlane_b32 s{s}, v{v}, 63")
    def nonce():
        a("s_mul_i32 s12, s11, 0x9E3779B1\ns_add_u32 s12, s12, 0x85EBCA77\ns_mov_b32 s13, s12")
        a("s_mov_b32 s20, 0x07060500\ns_mov_b32 s21, 0x07060501\ns_mov_b32 s22, 0x07060502\ns_mov_b32 s23, 0x07060503")
    def tag4(src, dst, vT):
        for k in range(4): a(f"v_perm_b32 v{dst+k}, v{src+k}, v{vT}, s{20+k}")
    def pk(op, d, x, y, z=None, mods=""):
        zz = f", v[{z}:{z+1}]" if z is not None else ""
        a(f"v_pk_{op}_f32 v[{d}:{d+1}], v[{x}:{x+1}], v[{y}:{y+1}]{zz} {mods}")

    a(f"; @launch grid=(256,1,1) block=({64*(NW+nt)},1,1) lds={L_END}")
    a('.amdgcn_target "amdgcn-amd-amdhsa--gfx950"')
    a(f".text\n.globl {KNAME}")
    if align: a(".p2align 12\n.fill {pre}, 4, 0xbf800000".replace("{pre}", str(pre)))
    a(f".p2align 8\n.type {KNAME},@function\n{KNAME}:")
    a("""s_cmp_ge_u32 s2, 256
s_cbranch_scc1 L_end
s_load_dwordx16 s[72:87], s[0:1], 0
s_load_dwordx2 s[56:57], s[0:1], 96""")
    if stamps:
        a(f"s_memrealtime s[96:97]\nv_mov_b32 v{vStamp}, 0")
    if fixdur: a("s_memrealtime s[96:97]")
    if bp is not None: a("s_memrealtime s[88:89]")
    a(f"""v_lshrrev_b32 v4, 6, v0
v_and_b32 v1, 63, v0
v_readfirstlane_b32 s3, v4
v_mov_b32 v2, 0
v_mov_b32 v3, 1
s_and_b32 s4, s2, 7
s_lshr_b32 s5, s2, 3
s_lshr_b32 s14, s5, 2
s_lshl_b32 s15, s14, 3
s_add_u32 s6, s4, {rq}
s_and_b32 s6, s6, 7
s_add_u32 s6, s6, s15
s_add_u32 s8, s4, {r1}
s_and_b32 s8, s8, 7
s_add_u32 s8, s8, s15
s_and_b32 s7, s5, 3
s_cmp_lt_u32 s14, 7
s_cselect_b32 s9, 1, 0
s_mov_b32 s10, 0
s_mov_b32 s58, {WS_BYTES - wsb}
s_mov_b32 s59, 0x20000
s_cmp_lt_u32 s3, 4
s_cbranch_scc1 L_S""")
    if nt:
        a("s_cmp_lt_u32 s3, 9\ns_cbranch_scc1 L_notw")
        if tlb: a("s_load_dwordx2 s[52:53], s[0:1], 64")
        a("s_waitcnt lgkmcnt(0)\ns_barrier")
        groups = {1: [['y', 19, 8, 11, 13, 12, 2, 4]], 2: [['y', 8, 13, 2], [19, 11, 12, 4]], 3: [['y', 11, 2], [19, 13, 4], [8, 12, 22 if g2 is not None else 4]]}[nt]
        for k, grp in enumerate(groups):
            if k + 1 < len(groups): a(f"s_cmp_lg_u32 s3, {9+k}\ns_cbranch_scc1 L_tw{k+1}")
            if tlb and k == 0:
                a(f"""s_lshl_b32 s14, s4, 22
s_add_u32 s14, s14, {12288*256}
s_load_dword s64, s[36:37], s14
s_load_dword s65, s[40:41], s14
s_mul_i32 s14, s7, {256*7168}
s_load_dword s66, s[44:45], s14
s_add_u32 s14, s14, {255*7168}
s_load_dword s67, s[44:45], s14
s_lshl_b32 s14, s6, 17
s_load_dword s68, s[48:49], s14
s_lshl_b32 s14, s8, 17
s_min_u32 s14, s14, {3583*2048}
s_load_dword s69, s[52:53], s14""")
            touches(grp)
            a("s_endpgm")
            if k + 1 < len(groups): a(f"L_tw{k+1}:")
        a("L_notw:")
    vL16 = 4
    if cprio: a(f"s_setprio {cprio}")
    a(f"""s_sub_u32 s3, s3, 4
s_mov_b32 s26, 4096
s_mov_b32 s27, 0x20000
v_lshlrev_b32 v{vL16}, 4, v1
v_lshlrev_b32 v16, 3, v1
s_and_b32 s16, s3, 1
s_lshl_b32 s14, s16, 11
s_lshl_b32 s15, s7, 9
s_add_u32 s15, s15, s14
v_lshlrev_b32 v17, 2, v1
s_mov_b32 exec_hi, 0
ds_write_b32 v17, v2 offset:{L_F}
s_mov_b64 exec, -1
s_cmp_eq_u32 s3, 4
s_waitcnt lgkmcnt(0)
s_mov_b64 s[24:25], s[72:73]
s_barrier
s_cbranch_scc1 L_C
buffer_load_dwordx4 v[20:23], v{vL16}, s[24:27], s14 offen {xfl}
buffer_load_dwordx4 v[24:27], v{vL16}, s[24:27], s14 offen offset:1024 {xfl}
buffer_load_dwordx2 v[28:29], v16, s[24:27], s15 offen {xfl}
s_branch L_C""")

    a("L_S:")
    a("s_load_dwordx2 s[52:53], s[0:1], 64")
    a(f"""s_mov_b32 s34, {1024*8192}
s_mov_b32 s35, 0x20000
s_mov_b32 s38, {2*4*16384*256}
s_mov_b32 s39, 0x20000
s_mov_b32 s42, {2*4*16384*256}
s_mov_b32 s43, 0x20000
s_cmp_lg_u32 s9, 0
s_cselect_b32 s46, {1024*7168}, 0
s_cselect_b32 s54, {3584*2048}, 0
s_mov_b32 s47, 0x20000
s_mov_b32 s50, {4096*2048}
s_mov_b32 s51, 0x20000
s_mov_b32 s55, 0x20000
s_lshl_b32 s14, s7, 8
s_lshl_b32 s15, s3, 6
s_add_u32 s14, s14, s15
s_lshl_b32 s60, s14, 13
s_lshl_b32 s15, s6, 7
s_add_u32 s60, s60, s15
s_mul_i32 s63, s14, 7168
s_lshl_b32 s15, s8, 7
s_add_u32 s63, s63, s15""")
    if w1t:
        if w1t == 1: a("s_lshr_b32 s15, s8, 2\ns_and_b32 s16, s8, 3")
        else: a("s_mul_i32 s16, s8, 4682\ns_lshr_b32 s16, s16, 16\ns_mul_i32 s15, s16, 14\ns_sub_u32 s15, s8, s15")
        a("s_lshl_b32 s16, s16, 2\ns_add_u32 s16, s16, s7\ns_lshl_b32 s16, s16, 2\ns_add_u32 s16, s16, s3\ns_mul_i32 s63, s16, 114688\ns_lshl_b32 s15, s15, 9\ns_add_u32 s63, s63, s15")
    if tall: a("s_lshl_b32 s14, s7, 9\ns_lshl_b32 s15, s3, 15\ns_add_u32 s14, s14, s15")
    else: a("s_lshl_b32 s14, s14, 1")
    a(f"""s_lshl_b32 s64, s6, 17
s_add_u32 s64, s64, s14
s_lshl_b32 s65, s8, 17
s_add_u32 s65, s65, s14
s_lshl_b32 s61, s4, 22
{"s_lshl_b32 s15, s5, 10" if kvc != 8 else ""}
{"s_add_u32 s61, s61, s15" if not kvc else f"s_mul_i32 s69, s3, {kvc*8*1024}" if kvc != 8 else ""}
{"" if kvc in (0, 8) else "s_add_u32 s69, s69, s15"}
{"s_lshl_b32 s15, s3, 18" if not kvr else "s_lshl_b32 s69, s3, 3"}
{"s_add_u32 s61, s61, s15" if not kvr else {1: "s_add_u32 s69, s69, s4", 2: "s_lshl_b32 s15, s4, 2", 3: "s_mul_i32 s15, s4, 5", 0: "s_nop 0"}[kvr & 3]}
{"s_add_u32 s69, s69, s15" if (kvr & 3) >= 2 else ""}
s_add_u32 s61, s61, {12288*256}
s_mov_b32 s62, s61
s_mul_i32 s66, s3, {8*KSTR}
s_add_u32 s66, s66, {L_K}
s_mul_i32 s67, s3, {8*VSTR}
s_add_u32 s67, s67, {L_V}""")
    vOffQ, vOff1, vOffO, vOffK, vOffV = 18, 19, 4, 5, 6
    vLdsX, vLdsO, vPart, vFP, vFin, vT = 7, 12, 13, 14, 15, 17
    vM = 8
    a(f"""v_lshrrev_b32 v20, 4, v1
v_bfe_u32 v21, v1, 3, 1
v_and_b32 v22, 7, v1
v_lshl_add_u32 v23, v20, 2, v21
v_lshlrev_b32 v24, 4, v22
v_lshl_add_u32 v{vOffQ}, v23, 13, v24
v_mul_u32_u24 v25, 7168, v23
v_add_u32 v{vOff1}, v25, v24
v_and_b32 v25, 15, v1""")
    if w1t: a(f"v_mul_u32_u24 v{vOff1}, 28672, v20\nv_lshl_add_u32 v{vOff1}, v25, 4, v{vOff1}")
    if tall:
        a(f"v_lshlrev_b32 v{vOffO}, 4, v25\nv_lshl_add_u32 v{vOffO}, v20, {11 if tpat else 13}, v{vOffO}")
        if tpat == 2:
            a(f"s_bfe_u32 s69, s5, 0x10002\ns_lshl_b32 s14, s69, 8\nv_add_u32 v{vOffO}, s14, v{vOffO}\nv_xor_b32 v63, 0x100, v{vOffO}")
    else: a(f"v_lshl_add_u32 v{vOffO}, v23, 11, v24")
    for sw, vo in ((ksw, vOffK), (vsw, vOffV)):
        if sw == 0: a(f"v_lshlrev_b32 v{vo}, 4, v1")
        else:
            if sw == 1: a("v_xor_b32 v26, v25, v20")
            else: a(f"v_lshlrev_b32 v26, {sw-1}, v20\nv_xor_b32 v26, v25, v26")
            a(f"v_lshlrev_b32 v26, 4, v26\nv_lshl_add_u32 v{vo}, v20, 8, v26")
    DQ, D1, D2, DO = 64, 96, 128, 64
    if ' ' in order:
        seq = []; cntr = {}
        for tok in order.split():
            t, k = tok[0], int(tok[1:])
            for _ in range(k):
                seq.append((t, cntr.get(t, 0))); cntr[t] = cntr.get(t, 0) + 1
        assert all(v == 8 for v in cntr.values()) and len(seq) == 48
    else:
        seq = [(t, i) for t in order for i in range(8)]
    endpos = {t: n + 1 for n, (t, i) in enumerate(seq) if i == 7}
    info = {'q': (32, 60, vOffQ, 8192, DQ), '1': (44, 63, vOff1, 7168, D1), '2': (52, 65, vOffO, 2048, D2), 'o': (48, 64, vOffO, 2048, DO),
            'k': (36, 61, vOffK, None, None), 'v': (40, 62, vOffV, None, None)}
    ldflags0 = ldflags
    def issue(t, i):
        ldflags = (tf or {}).get(t, ldflags0)
        srd, so, vo, stride, D = info[t]
        if t in 'kv' and kvr:
            base, st = (66, KSTR) if t == 'k' else (67, VSTR)
            ii = (i + 4) & 7 if (kvr >= 4 and t == 'v') else i
            a(f"s_add_u32 s16, s69, {ii}\ns_and_b32 s16, s16, 31\ns_lshl_b32 s16, s16, 15\ns_add_u32 s16, s16, s{so}\ns_add_u32 m0, s{base}, {ii*st}")
            a(f"buffer_load_dwordx4 v{vo}, s[{srd}:{srd+3}], s16 offen {ldflags} lds")
        elif t in 'kv' and kvc == 8:
            base, st = (66, KSTR) if t == 'k' else (67, VSTR)
            if i > 0: a(f"s_add_u32 s{so}, s{so}, s92")
            a(f"s_add_u32 s16, s{88 + (i & 3)}, s{so}\ns_add_u32 m0, s{base}, {i*st}")
            a(f"buffer_load_dwordx4 v{vo}, s[{srd}:{srd+3}], s16 offen {ldflags} lds")
        elif t in 'kv' and kvc:
            base, st = (66, KSTR) if t == 'k' else (67, VSTR)
            if i > 0: a(f"s_add_u32 s{so}, s{so}, 32768")
            a(f"s_add_u32 s16, s69, {(kvc*i*1024) & 0x7fff}\ns_and_b32 s16, s16, 0x7c00\ns_add_u32 s16, s16, s{so}\ns_add_u32 m0, s{base}, {i*st}")
            a(f"buffer_load_dwordx4 v{vo}, s[{srd}:{srd+3}], s16 offen {ldflags} lds")
        elif t in 'kv':
            if i > 0: a(f"s_add_u32 s{so}, s{so}, 32768")
            base, st = (66, KSTR) if t == 'k' else (67, VSTR)
            a(f"s_add_u32 m0, s{base}, {i*st}")
            a(f"buffer_load_dwordx4 v{vo}, s[{srd}:{srd+3}], s{so} offen {ldflags} lds")
        elif tall and t in '2o':
            if i > 0 and i % 2 == 0: a(f"s_add_u32 s{so}, s{so}, {8192 if tpat else 2048}")
            if tpat == 2: a(f"buffer_load_dwordx4 v[{D+4*i}:{D+4*i+3}], v{63 if i & 1 else vo}, s[{srd}:{srd+3}], s{so} offen {ldflags}")
            else: a(f"buffer_load_dwordx4 v[{D+4*i}:{D+4*i+3}], v{vo}, s[{srd}:{srd+3}], s{so} offen offset:{256*(i&1)} {ldflags}")
        elif w1t and t == '1':
            if i > 0 and i % 2 == 0: a(f"s_add_u32 s{so}, s{so}, 7168")
            a(f"buffer_load_dwordx4 v[{D+4*i}:{D+4*i+3}], v{vo}, s[{srd}:{srd+3}], s{so} offen offset:{256*(i&1)} {ldflags}")
        elif wrot and t in 'q1':
            rs = {1: "s_lshr_b32 s16, s5, 2", 2: "s_mov_b32 s16, s4", 3: "s_lshr_b32 s16, s5, 2\ns_add_u32 s16, s16, s4"}[wrot]
            a(f"{rs}\ns_add_u32 s16, s16, {i>>1}\ns_and_b32 s16, s16, 3\ns_mul_i32 s16, s16, {16*stride}\ns_add_u32 s16, s16, {2*(i&1)*stride}\ns_add_u32 s16, s16, s{so}")
            a(f"buffer_load_dwordx4 v[{D+4*i}:{D+4*i+3}], v{vo}, s[{srd}:{srd+3}], s16 offen {ldflags}")
        elif fakebal and t == '1' and i >= 6:
            a(f"buffer_load_dwordx4 v[{D+4*i}:{D+4*i+3}], v{vo}, s[{srd}:{srd+3}], s{so} offen offset:0")
        else:
            if i > 0:
                rowof = lambda j: 16 * (j >> 1) + 2 * (j & 1)
                a(f"s_add_u32 s{so}, s{so}, {(rowof(i) - rowof(i-1)) * stride}")
            a(f"buffer_load_dwordx4 v[{D+4*i}:{D+4*i+3}], v{vo}, s[{srd}:{srd+3}], s{so} offen {'' if (fakebal and t == '1' and i == 5) else ldflags}")
    DUP, A0, A1, AC0, AC1, X = 20, 36, 40, 52, 56, 60
    def buildA(i, h):
        Ar = (A0, A1)[h]
        src = DUP + 4 * (i >> 1) + 2 * (i & 1) + h
        for r in range(4): a(f"v_and_b32 v{Ar+r}, v{src}, v{vM+r}")
    def mm(D, i, first, last):
        for h, (Ar, AC) in enumerate(((A0, AC0), (A1, AC1))):
            c = "0" if first else f"v[{AC}:{AC+3}]"
            a(f"v_mfma_f32_16x16x32_bf16 v[{AC}:{AC+3}], v[{Ar}:{Ar+3}], v[{D+4*i}:{D+4*i+3}], {c}")
            if not last: buildA(i + 1, h)
    AT = [36, 40, 44, 48]
    def buildT(j, rs=range(4)):
        for r in rs: a(f"v_and_b32 v{AT[j]+r}, v{DUP+j}, v{vM+r}")
    def mmT(D, i, first):
        AC = (AC0, AC1)[i & 1]
        c = "0" if first else f"v[{AC}:{AC+3}]"
        a(f"v_mfma_f32_16x16x32_bf16 v[{AC}:{AC+3}], v[{AT[i>>1]}:{AT[i>>1]+3}], v[{D+4*i}:{D+4*i+3}], {c}")
        j = (i >> 1) + 1
        if j < 4: buildT(j, (0, 1) if i % 2 == 0 else (2, 3))
    def dupreads(vaddr, base, n=4):
        return "\n".join(f"ds_read_b128 v[{DUP+4*t}:{DUP+4*t+3}], v{vaddr} offset:{base+64*t}" for t in range(n))
    def combine():
        for r in range(4): a(f"v_cndmask_b32 v{X+r}, v{AC0+r}, v{AC1+r}, s[18:19]")
        for r in range(4): a(f"v_add_f32_dpp v{X+r}, v{X+r}, v{X+r} row_ror:8 row_mask:0xf bank_mask:0xf")
    a("s_waitcnt lgkmcnt(0)\ns_mov_b64 s[32:33], s[78:79]")
    if bp is not None: a("s_mov_b32 s93, s88")
    if not pre2: a("s_barrier")
    if fakebal:
        a("s_cmp_lg_u32 s9, 0\ns_cselect_b32 s44, s44, s36\ns_cselect_b32 s45, s45, s37\ns_cselect_b32 s52, s52, s40\ns_cselect_b32 s53, s53, s41\ns_cselect_b32 s46, s46, 0x2000000\ns_cselect_b32 s54, s54, 0x2000000")
    if stamps: a(f"v_writelane_b32 v{vStamp}, s96, 0")
    stamp(1)
    st = dict(landed=0, setup=False)
    def setup():
        if st['setup']: return
        st['setup'] = True
        if wsb: a(f"s_add_u32 s56, s56, {wsb}\ns_addc_u32 s57, s57, 0")
        a("s_load_dword s11, s[56:57], 0")
        if sprio: a(f"s_setprio {sprio}")
        if kvc == 8:
            a("s_lshl_b32 s88, s5, 10\ns_mov_b32 s92, 0x8000")
            for k in range(1, 4): a(f"s_add_u32 s{88+k}, s{87+k}, 0x2000\ns_and_b32 s{88+k}, s{88+k}, 0x7c00")
        a("s_mov_b64 s[36:37], s[74:75]\ns_mov_b64 s[40:41], s[76:77]\ns_mov_b64 s[44:45], s[84:85]\ns_mov_b64 s[48:49], s[80:81]")
        a(f"""v_and_b32 v25, 1, v1
v_bfe_u32 v26, v1, 1, 2
v_mov_b32 v27, 0xffff
v_lshlrev_b32 v25, 4, v25
v_lshlrev_b32 v27, v25, v27""")
        for r in range(4):
            a(f"v_cmp_eq_u32 vcc, {r}, v26\nv_cndmask_b32 v{vM+r}, 0, v27, vcc")
        a(f"""v_lshlrev_b32 v25, 4, v20
v_lshl_add_u32 v{vLdsO}, v21, 8, v25
v_lshl_add_u32 v{vLdsX}, v21, 10, v25
s_lshl_b32 s14, s3, 8
v_add_u32 v{vLdsX}, s14, v{vLdsX}
v_lshrrev_b32 v25, 1, v20
v_and_b32 v26, 1, v20
v_lshlrev_b32 v27, 5, v22
v_lshl_add_u32 v27, v26, 4, v27
v_lshl_add_u32 v{vPart}, v25, 8, v27
s_lshl_b32 s14, s3, 9
v_add_u32 v{vPart}, s14, v{vPart}
s_mov_b32 s18, 0xff00ff00
s_mov_b32 s19, 0xff00ff00""")
        if WE:
            a(f"s_getreg_b32 s14, hwreg(HW_REG_XCC_ID, 0, 4)\ns_cmp_ge_u32 s14, {late}\ns_cselect_b64 vcc, -1, 0")
        if tall:
            a(f"""s_lshl_b32 s14, s3, 6
v_add_u32 v{vLdsO}, s14, v{vLdsO}
v_lshlrev_b32 v{vFin}, 4, v1
s_lshl_b32 s14, s3, 11
v_add_u32 v16, s14, v{vFin}
s_and_b32 s14, s3, 1
s_lshl_b32 s14, s14, 10
s_lshr_b32 s15, s3, 1
s_lshl_b32 s15, s15, 9
s_add_u32 s14, s14, s15
v_add_u32 v{vFin}, s14, v{vFin}
v_and_b32 v27, 15, v1
v_lshlrev_b32 v27, 5, v27
v_lshl_add_u32 v{vFP}, v26, 4, v27
s_lshl_b32 s14, s7, 10
s_and_b32 s15, s3, 1
s_lshl_b32 s15, s15, 9
s_add_u32 s14, s14, s15
s_lshr_b32 s15, s3, 1
s_lshl_b32 s15, s15, 12
s_add_u32 s14, s14, s15""")
        else:
            a(f"""v_lshl_add_u32 v{vFP}, v25, 12, v27
s_lshl_b32 s14, s7, 10
s_lshl_b32 s15, s3, 8
s_add_u32 s14, s14, s15""")
        a(f"s_mul_i32 s15, s6, {fps}\ns_add_u32 s14, s14, s15\ns_add_u32 s68, s14, {WS_FP}")
    def process(t, i):
        if sonly:
            if i == 7: stamp({'q': 2, 'k': 3, 'v': 4, '1': 5}[t])
            return
        if t in 'q1':
            if i == 0:
                poll_lds(F_X if t == 'q' else F_Y, 2, 60, (1 if t == 'q' else 2) + st.get('cofs', 0), dupreads(vLdsX, L_X if t == 'q' else L_Y))
                buildA(0, 0); buildA(0, 1)
            mm(info[t][4], i, i == 0, i == 7)
            if i == 7:
                combine()
                a("s_mov_b32 exec_lo, 0x00ff00ff\ns_mov_b32 exec_hi, 0x00ff00ff")
                a(f"ds_write_b128 v{vPart}, v[{X}:{X+3}] offset:{L_QPART if t == 'q' else L_HPART}")
                signal(F_Q if t == 'q' else F_H)
                stamp(2 if t == 'q' else 5)
        elif t == 'k' and qwait >= 2 and i == qwait - 2:
            signal(F_K2)
        elif t in 'kv' and i == 7:
            signal(F_K if t == 'k' else F_V)
            stamp(3 if t == 'k' else 4)
    gates = {}
    if g1 is not None and not sonly: gates[g1] = (F_QG, 4, '', 21)
    if g2 is not None and not sonly: gates[g2] = (F_OG, g2n, 'q1kv', 22)
    if g3 is not None and not sonly: gates[g3] = (F_OP, 4, 'q1kv', 24)
    N = len(seq)
    pend = list(range(N))
    def ready(m, n):
        t, i = seq[m]
        if t in '2o': return False
        if t == 'q' and st['landed'] < qstart: return False
        if t == '1' and n < p1start: return False
        return True
    assert all(endpos['q'] <= n - 8 for n, (t, i) in enumerate(seq) if t == 'o')
    fastcode = []
    def emit_stream(n0, W, pend, gates, fast):
      for n, (t, i) in enumerate(seq):
        if n < n0: continue
        if bp is not None and n == bp and not fast and not sonly:
            a(f"s_memrealtime s[90:91]\ns_waitcnt lgkmcnt(0)\ns_sub_u32 s90, s90, s93\ns_cmp_gt_u32 s90, {bt}\ns_cbranch_scc1 L_fast")
            fastcode.append((list(pend), st['landed']))
        want = n - W[n] + 1
        if n in gates:
            flag, cnt, need, code = gates[n]
            for m in [m for m in pend if seq[m][0] in need and m < n]:
                if m >= st['landed'] and not (seq[m][0] in 'kv' and seq[m][1] < 7):
                    a(f"s_waitcnt vmcnt({n - 1 - m})"); st['landed'] = m + 1
                process(*seq[m]); pend.remove(m)
            if flate and flag == F_OG: a("s_mov_b32 s71, s10")
            poll_lds(flag, cnt, 60, code + st.get('cofs', 0), sleep=gsl)
            if flate and flag == F_OG: a("s_sub_u32 s71, s10, s71")
        if want > st['landed']:
            setup()
            a(f"s_waitcnt vmcnt({n - want})"); st['landed'] = want
        if not sonly and ((gs is not None and n >= gs) or (gq is not None and gq[0] <= n < gq[1])):
            fl = F_OG if (gs is not None and n >= gs) else F_QG
            for m in [m for m in pend if seq[m][0] in 'q1kv' and m < n - wl + 1 and (seq[m][0] in 'kv' or fl == F_OG)]:
                pass
            Lk = newlab("SG")
            a(f"ds_read_b32 v60, v2 offset:{fl}\ns_waitcnt lgkmcnt(0)\nv_readfirstlane_b32 s14, v60\ns_cmp_ge_u32 s14, 4\ns_cbranch_scc1 {Lk}\ns_waitcnt vmcnt({wl - 1})\n{Lk}:")
        if WE and WE[n] < W[n] and n - WE[n] + 1 > st['landed']:
            setup()
            Lk = newlab("WK")
            a(f"s_cbranch_vccnz {Lk}\ns_waitcnt vmcnt({WE[n] - 1})\n{Lk}:")
        if t != 'q': setup()
        issue(t, i)
        if pre2 and n == pre2 - 1: a("s_barrier")
        if n == qpos and not sonly: signal(F_PQ)
        if n == opos and not sonly: signal(F_PO)
        cnt_ = 0
        for m in [m for m in pend if m < st['landed'] and ready(m, n)]:
            if seq[m][0] in 'q1':
                if cnt_ >= maxper: continue
                cnt_ += 1
            process(*seq[m]); pend.remove(m)
      for m in [m for m in pend if seq[m][0] not in '2o'] if (bp is not None and not sonly) else []:
        tt, ii = seq[m]
        if m >= st['landed'] and not (tt in 'kv' and ii < 7):
            a(f"s_waitcnt vmcnt({N - 1 - m})"); st['landed'] = m + 1
        process(tt, ii); pend.remove(m)
    emit_stream(0, W, pend, gates, False)
    if bp is not None and not sonly:
        st['landed'] = min(st['landed'], max(N - bw, endpos['1'], endpos['v']))
        a("L_join:")
    setup()
    stamp(6)
    nmm = 0
    tail = [m for m in pend if seq[m][0] not in '2o'] + [m for m in pend if seq[m][0] in '2o']
    for m in tail:
        t, i = seq[m]
        if sonly:
            if m >= st['landed'] and i == 7:
                a(f"s_waitcnt vmcnt({N - 1 - m})"); st['landed'] = m + 1
            if i == 7: stamp({'q': 2, 'k': 3, 'v': 4, '1': 5, '2': 7, 'o': 8}[t])
            continue
        if t in '2o' and i == 0:
            if nmm == 0:
                nonce(); a(f"v_mov_b32 v{vT}, s12")
            poll_lds(F_HD if t == '2' else F_O, 1 if t == '2' else 4, 60, 3 if t == '2' else 4, dupreads(vLdsO, L_H if t == '2' else L_O, 1 if tall else 4))
            stamp(7 if t == '2' else 8)
            if tall: buildT(0)
            else: buildA(0, 0); buildA(0, 1)
        if m >= st['landed'] and not (t in 'kv' and i < 7):
            a(f"s_waitcnt vmcnt({N - 1 - m})"); st['landed'] = m + 1
        if t in '2o':
            if xt: pass
            elif tall: mmT(info[t][4], i, nmm < 2)
            else: mm(info[t][4], i, nmm == 0, i == 7)
            nmm += 1
        else:
            process(t, i)
    stamp(9)
    if sonly: a("s_branch L_exit")
    if xt >= 2:
        a("s_barrier" if xt == 2 else "s_nop 0")
        tag4(X, X, vT)
        a("s_mov_b32 exec_hi, 0")
    elif tall:
        a(f"ds_write_b128 v16, v[{AC0}:{AC0+3}] offset:{L_FIN}\nds_write_b128 v16, v[{AC1}:{AC1+3}] offset:{L_FIN+1024}")
        if tall == 2:
            a("s_waitcnt lgkmcnt(0)\ns_barrier")
            for w in range(4): a(f"ds_read_b128 v[{20+4*w}:{23+4*w}], v{vFin} offset:{L_FIN+2048*w}")
            a("s_waitcnt lgkmcnt(0)")
        else:
            signal(F_B3)
            poll_lds(F_B3, 4, 60, 23, "\n".join(f"ds_read_b128 v[{20+4*w}:{23+4*w}], v{vFin} offset:{L_FIN+2048*w}" for w in range(4)))
        pk("add", 20, 20, 24); pk("add", 22, 22, 26); pk("add", 28, 28, 32); pk("add", 30, 30, 34)
        pk("add", X, 20, 28); pk("add", X + 2, 22, 30)
        tag4(X, X, vT)
        a("s_mov_b32 exec_hi, 0")
    else:
        combine()
        tag4(X, X, vT)
        a("s_mov_b32 exec_lo, 0x00ff00ff\ns_mov_b32 exec_hi, 0x00ff00ff")
    a(f"buffer_store_dwordx4 v[{X}:{X+3}], v{vFP}, s[56:59], s68 offen sc1\ns_mov_b64 exec, -1")
    stamp(10)
    if flate:
        a(f"s_cmp_lt_u32 s71, {flate}\ns_cbranch_scc1 L_noack\ns_waitcnt vmcnt(0)\n" + (f"s_sleep {fearly}\n" if fearly else "") + "L_noack:")
    elif fack: a("s_waitcnt vmcnt(0)")
    signal(F_FP)
    a("s_branch L_exit")

    if align: a(".p2align 12")
    a("L_C:")
    if sonly:
        if stamps: a(f"v_writelane_b32 v{vStamp}, s96, 0")
        a("s_branch L_exit")
    vT, vTb, vHi = 5, 6, 15
    vXf, vB2f, vB1 = 10, 11, 12
    if wsb: a(f"s_add_u32 s56, s56, {wsb}\ns_addc_u32 s57, s57, 0")
    a(f"""s_load_dword s11, s[56:57], 0
v_mov_b32 v{vHi}, 0xffff0000
s_cmp_eq_u32 s3, 4
s_cbranch_scc1 L_H""")
    if stamps: a(f"v_writelane_b32 v{vStamp}, s96, 0")
    F = 32
    def unpack(src, dst, n):
        for k in range(n):
            a(f"v_lshlrev_b32 v{dst+2*k}, 16, v{src+k}\nv_and_b32 v{dst+2*k+1}, v{vHi}, v{src+k}")
    def stats(F):
        pk("add", 48, F, F + 2); pk("add", 50, F + 4, F + 6); pk("add", 52, F + 8, F + 10); pk("add", 54, F + 12, F + 14)
        pk("add", 48, 48, 50); pk("add", 52, 52, 54); pk("add", 48, 48, 52)
        a("v_add_f32 v48, v48, v49")
        red64(48, 14)
        a("v_mov_b32 v60, 0x3a800000\nv_mul_f32 v48, s14, v60")
        for k in range(0, 16, 4):
            pk("add", 52, F + k, 48, mods="op_sel_hi:[1,0] neg_lo:[0,1] neg_hi:[0,1]")
            pk("add", 54, F + k + 2, 48, mods="op_sel_hi:[1,0] neg_lo:[0,1] neg_hi:[0,1]")
            if k == 0: pk("mul", 50, 52, 52); pk("mul", 62, 54, 54)
            else: pk("fma", 50, 52, 52, 50); pk("fma", 62, 54, 54, 62)
        pk("add", 50, 50, 62)
        a("v_add_f32 v49, v50, v51")
        red64(49, 14)
        a(f"""v_mul_f32 v49, s14, v60
v_cvt_pk_bf16_f32 v48, v48, v49
v_and_b32 v49, v{vHi}, v48
v_lshlrev_b32 v48, 16, v48
v_add_f32 v49, 0x3727c5ac, v49
v_cvt_pk_bf16_f32 v49, v49, v49
v_and_b32 v49, v{vHi}, v49
v_sqrt_f32 v49, v49
v_cvt_pk_bf16_f32 v49, v49, v49
v_and_b32 v49, v{vHi}, v49
v_rcp_f32 v50, v49""")
    def normalize(F, n):
        for k in range(0, n, 2):
            pk("add", F + k, F + k, 48, mods="op_sel_hi:[1,0] neg_lo:[0,1] neg_hi:[0,1]")
        for k in range(0, n, 2):
            a(f"v_cvt_pk_bf16_f32 v52, v{F+k}, v{F+k+1}")
            a(f"v_lshlrev_b32 v{F+k}, 16, v52\nv_and_b32 v{F+k+1}, v{vHi}, v52")
            pk("mul", 52, F + k, 50, mods="op_sel_hi:[1,0]")
            pk("fma", F + k, 52, 48, F + k, mods="op_sel:[0,1,0] op_sel_hi:[1,1,1] neg_lo:[1,0,0] neg_hi:[1,0,0]")
            pk("fma", F + k, F + k, 50, 52, mods="op_sel_hi:[1,0,1]")
    def roundbf(F, n):
        for k in range(0, n, 2):
            a(f"v_cvt_pk_bf16_f32 v52, v{F+k}, v{F+k+1}")
            a(f"v_lshlrev_b32 v{F+k}, 16, v52\nv_and_b32 v{F+k+1}, v{vHi}, v52")
    def tagconsts():
        nonce()
        a(f"""v_mov_b32 v{vT}, s12
v_and_b32 v{vTb}, 0xff, v{vT}
v_bfe_u32 v{vTb+1}, v{vT}, 8, 8
v_bfe_u32 v{vTb+2}, v{vT}, 16, 8
v_lshrrev_b32 v{vTb+3}, 24, v{vT}""")
    a("s_waitcnt vmcnt(1)")
    stamp(1)
    unpack(20, F, 8)
    stats(F)
    a("s_waitcnt vmcnt(0)")
    unpack(28, 56, 2)
    normalize(56, 4)
    a(f"s_lshl_b32 s14, s16, 10\nv_add_u32 v16, s14, v{vL16}")
    a("s_cmp_ge_u32 s3, 2\ns_cbranch_scc1 L_ypath")
    for k in range(4): a(f"v_cvt_pk_bf16_f32 v{60+k}, v{56+k}, v{56+k}")
    a(f"ds_write_b128 v16, v[60:63] offset:{L_X}")
    signal(F_X)
    stamp(2)
    if touch and not nt:
        a("s_cmp_eq_u32 s3, 0\ns_cbranch_scc1 L_t0")
        touches([9, 13] + ([22] if g2 is not None else []) + [4] + (['f'] if bp is not None else []))
        a("s_branch L_lndone\nL_t0:")
        touches([19, 8, 11, 2] + ([32] if (bp is not None and bp < 24 + W[28]) else []))
    a("L_lndone:")
    a("s_waitcnt lgkmcnt(0)")
    tagconsts()
    def publish_part(lbase, flag, code, vaddr, extra, B=96):
        poll_lds(flag, 4, B + 16, code, "\n".join(f"ds_read_b128 v[{B+4*w}:{B+3+4*w}], v{vL16} offset:{lbase+512*w}" for w in range(4)))
        pk("add", B, B, B + 4); pk("add", B + 2, B + 2, B + 6); pk("add", B + 8, B + 8, B + 12); pk("add", B + 10, B + 10, B + 14)
        pk("add", B, B, B + 8); pk("add", B + 2, B + 2, B + 10)
        tag4(B, B, vT)
        a("s_mov_b32 exec_hi, 0")
        a(f"buffer_store_dwordx4 v[{B}:{B+3}], v{vaddr}, s[56:59], s30 offen sc1")
        a(extra)
        a("s_mov_b64 exec, -1")
    def poll_hints(nq, code, thr=None, hw=16):
        L = newlab("HL"); D = newlab("HD"); R = newlab("HR")
        a(f"{L}:")
        if nq == 0: a("s_load_dwordx4 s[64:67], s[60:61], 0 glc")
        for q in range(nq * 16 // hw): a(f"s_load_dwordx{hw} s[{64+hw*q}:{63+hw*q+hw}], s[60:61], {64*q} glc")
        if thr is not None and thr < nq * 8:
            a("s_mov_b32 s14, 0\ns_waitcnt lgkmcnt(0)")
            for j in range(nq * 8): a(f"s_cmp_eq_u64 s[{64+2*j}:{65+2*j}], s[12:13]\ns_addc_u32 s14, s14, 0")
            a(f"s_cmp_ge_u32 s14, {thr}\ns_cbranch_scc1 {D}")
        else:
            a("s_waitcnt lgkmcnt(0)")
            for j in range(max(nq * 8, 2)):
                a(f"s_cmp_eq_u64 s[{64+2*j}:{65+2*j}], s[12:13]\ns_cbranch_scc0 {R}")
            a(f"s_branch {D}\n{R}:")
        if hsleep: a(f"s_sleep {hsleep}")
        spin(L, code)
        a(f"{D}:")
    def untag(G, n, vacc):
        for j in range(4 * n): a(f"v_xor_b32 v{G+j}, v{G+j}, v{vTb+(j&3)}")
        a(f"v_or3_b32 v{vacc}, v{G}, v{G+1}, v{G+2}")
        j = 3
        while j < 4 * n:
            if j + 1 < 4 * n: a(f"v_or3_b32 v{vacc}, v{vacc}, v{G+j}, v{G+j+1}"); j += 2
            else: a(f"v_or_b32 v{vacc}, v{vacc}, v{G+j}"); j += 1
        a(f"v_lshlrev_b32 v{vacc}, 24, v{vacc}")
    def retry_if(vacc, L, code):
        D = newlab("RD")
        a(f"v_cmp_ne_u32 vcc, 0, v{vacc}\ns_cbranch_vccz {D}")
        spin(L, code)
        a(f"{D}:")
    G = 16
    QRS = QR.bit_length() - 1; ORS = OR.bit_length() - 1
    QB = 6 + (16 // qhw).bit_length() - 1; OB = 7 + (16 // ohw).bit_length() - 1
    assert 16 * QR << QB <= WS_OH - WS_QH and 32 * OR << OB <= WS_LS - WS_OH
    vKa, vQw, vQr, vVa0, vVa1, vMl, vPw, vMw, vOd, vLs, vOh, vLg, vOw = 52, 53, 54, 55, 56, 57, 58, 59, 60, 61, 62, 63, 14
    a(f"""v_and_b32 v16, 15, v1
v_lshrrev_b32 v17, 4, v1
v_lshrrev_b32 v18, 2, v16
v_and_b32 v19, 3, v1
v_mul_u32_u24 v{vKa}, {KSTR}, v18
v_lshl_add_u32 v{vKa}, v19, 8, v{vKa}
v_xor_b32 v20, v17, v19
v_lshl_add_u32 v{vKa}, v20, 4, v{vKa}
s_mul_i32 s14, s3, {8*KSTR}
v_add_u32 v{vKa}, s14, v{vKa}
v_lshrrev_b32 v20, 5, v1
v_mul_u32_u24 v20, 288, v20
v_and_b32 v21, 31, v1
v_lshl_add_u32 v{vQw}, v21, 3, v20
s_mul_i32 s14, s3, 576
v_add_u32 v{vQw}, s14, v{vQw}
v_and_b32 v20, 7, v1
v_mul_u32_u24 v20, 288, v20
v_lshl_add_u32 v{vQr}, v17, 4, v20
v_mul_u32_u24 v20, {VSTR}, v17
v_lshl_add_u32 v20, v18, 8, v20
v_and_b32 v21, 1, v1
v_lshl_add_u32 v20, v21, 3, v20
v_add_u32 v20, {L_V}, v20
v_bfe_u32 v21, v1, 1, 1
s_lshl_b32 s14, s3, 2
v_add_u32 v21, s14, v21
v_lshlrev_b32 v22, 1, v18
v_xor_b32 v21, v21, v22
v_lshl_add_u32 v{vVa0}, v21, 4, v20
v_xor_b32 v21, 2, v21
v_lshl_add_u32 v{vVa1}, v21, 4, v20
v_lshlrev_b32 v{vMl}, 3, v16
v_and_b32 v20, 0x37, v1
v_lshlrev_b32 v13, 4, v20
v_and_b32 v21, 8, v1
{f"v_add_u32 v{vPw}, v13, v21" if half else f"v_mov_b32 v{vPw}, v{vL16}"}
{"" if half else f"v_mov_b32 v13, v{vL16}"}
s_lshl_b32 s14, s3, 10
v_add_u32 v{vPw}, s14, v{vPw}
s_lshl_b32 s14, s3, 7
v_add_u32 v{vMw}, s14, v{vMl}
v_and_b32 v20, 7, v1
v_bfe_u32 v21, v1, 3, 1
v_lshlrev_b32 v{vOd}, 14, v20
v_lshl_add_u32 v{vOd}, v21, 6, v{vOd}
v_lshl_add_u32 v{vOd}, v17, 4, v{vOd}
v_lshlrev_b32 v{vLs}, 10, v20
v_lshlrev_b32 v{vOh}, {OB}, v1
v_lshrrev_b32 v{vLg}, 3, v1
v_lshlrev_b32 v{vLg}, 3, v{vLg}
{f"v_lshl_add_u32 v{vOw}, v20, 2, v17" if not tpat else f"v_bfe_u32 v{vOw}, v1, 2, 1"}
{"" if not tpat else f"v_lshl_add_u32 v{vOw}, v{vOw}, 2, v17"}
{"" if not tpat else f"v_lshl_add_u32 v{vOw}, v{vOw}, 2, v19"}
v_lshlrev_b32 v{vOw}, 2, v{vOw}
v_add_u32 v{vOw}, s14, v{vOw}
s_lshl_b32 s14, s4, 5
s_add_u32 s14, s14, s3
s_lshl_b32 s28, s14, 12
s_lshl_b32 s17, s5, 7
s_add_u32 s28, s28, s17
s_add_u32 s28, s28, {WS_OP}
s_lshl_b32 s29, s14, 8
s_lshl_b32 s17, s5, 3
s_add_u32 s29, s29, s17
s_add_u32 s29, s29, {WS_LS}
s_lshl_b32 s31, s4, 2
s_add_u32 s31, s31, s3
s_lshl_b32 s31, s31, {OB+ORS}
s_lshr_b32 s17, s5, {ohw.bit_length()-1}
s_lshl_b32 s17, s17, 6
{"s_add_u32 s31, s31, s17" if not ocnt else ""}
s_and_b32 s17, s5, {ohw-1}
s_lshl_b32 s17, s17, 2
{"s_add_u32 s31, s31, s17" if not ocnt else ""}
s_add_u32 s31, s31, {WS_OH}
s_mov_b32 s18, 0xff00ff00
s_mov_b32 s19, 0xff00ff00
v_mov_b32 v48, 0x3db504f3
v_mov_b32 v50, 0x3fb8aa3b""")
    a("s_call_b64 s[94:95], L_oaddr")
    poll_lds(F_PQ if qpos else F_K2 if qwait >= 2 else F_K if qwait else F_Q, 4, 32, 19, sleep=ksl)
    Lq = newlab("GQ")
    if qdir == 2:
        a(f"s_branch {Lq}\nL_qslow:")
    if qdir != 1: poll_hints(1, 6, hw=qhw)
    stamp(4)
    a(f"{Lq}:")
    for i in range(4): a(f"buffer_load_dwordx4 v[{G+4*i}:{G+4*i+3}], v{vL16}, s[56:59], s62 offen offset:{1024*i} sc1")
    if g1 is not None or gq is not None: signal(F_QG)
    KF, VF, QF = 64, 96, 128
    poll_lds(F_K, 4, 32, 7, "\n".join(f"ds_read_b128 v[{KF+16*t+4*s}:{KF+16*t+4*s+3}], v{vKa} offset:{L_K+4*KSTR*t+64*s}" for t in range(2) for s in range(4)))
    vreads = []
    for w in range(4):
        for t, va in ((0, vVa0), (1, vVa1)):
            for T in range(2):
                r = VF + 8 * w + 4 * t + 2 * T
                vreads.append(f"ds_read_b64_tr_b16 v[{r}:{r+1}], v{va} offset:{(8*w+4*T)*VSTR}")
    a("s_waitcnt vmcnt(0)")
    if vpre: a(f"ds_read_b32 v33, v2 offset:{F_V}")
    for j in range(16): a(f"v_xor_b32 v{G+j}, v{G+j}, v{vTb+(j&3)}")
    pk("add", 36, G, G + 4); pk("add", 38, G + 2, G + 6); pk("add", 40, G + 8, G + 12); pk("add", 42, G + 10, G + 14)
    pk("add", 36, 36, 40); pk("add", 38, 38, 42)
    a(f"v_cvt_pk_bf16_f32 v36, v36, v37\nv_cvt_pk_bf16_f32 v37, v38, v39")
    a(f"ds_write_b64 v{vQw}, v[36:37] offset:{L_QBUF}")
    a(f"v_or3_b32 v32, v{G}, v{G+1}, v{G+2}\nv_or3_b32 v34, v{G+3}, v{G+4}, v{G+5}")
    for j in range(6, 14, 4): a(f"v_or3_b32 v32, v32, v{G+j}, v{G+j+1}\nv_or3_b32 v34, v34, v{G+j+2}, v{G+j+3}")
    a(f"v_or3_b32 v32, v32, v{G+14}, v{G+15}\nv_or_b32 v32, v32, v34\nv_lshlrev_b32 v32, 24, v32")
    retry_if(32, 'L_qslow' if qdir == 2 else Lq, 8)
    signal(F_B1)
    stamp(5)
    poll_lds(F_B1, 4, 32, 9, "\n".join(f"ds_read_b128 v[{QF+4*s}:{QF+4*s+3}], v{vQr} offset:{L_QBUF+64*s}" for s in range(4)))
    S = 40
    for s in range(4):
        for t in range(2):
            c = "0" if s == 0 else f"v[{S+4*t}:{S+4*t+3}]"
            a(f"v_mfma_f32_16x16x32_bf16 v[{S+4*t}:{S+4*t+3}], v[{KF+16*t+4*s}:{KF+16*t+4*s+3}], v[{QF+4*s}:{QF+4*s+3}], {c}")
    if vpre:
        a("v_readfirstlane_b32 s35, v33\ns_cmp_lt_u32 s35, 4\ns_cbranch_scc1 L_vlater")
        a("\n".join(vreads))
        a("L_vlater:\ns_nop 7")
    def xlane(v, tmp, op, fill=((), ())):
        for n_, sw in enumerate(("v_permlane16_swap_b32", "v_permlane32_swap_b32")):
            a(f"v_mov_b32 v{tmp}, v{v}")
            for f in fill[n_]: f()
            a(f"{sw} v{v}, v{tmp}\n{op} v{v}, v{v}, v{tmp}")
    if half:
        for k in range(4): a(f"v_cndmask_b32 v{S+k}, v{S+k}, v{S+4+k}, s[18:19]")
        nv_ = 4
    else: nv_ = 8
    for k in range(0, nv_, 2): a(f"v_cvt_pk_bf16_f32 v{32+k//2}, v{S+k}, v{S+k+1}")
    for k in range(0, nv_, 2): a(f"v_lshlrev_b32 v{S+k}, 16, v{32+k//2}\nv_and_b32 v{S+k+1}, v{vHi}, v{32+k//2}")
    for k in range(0, nv_, 2): pk("mul", S + k, S + k, 48, mods="op_sel_hi:[1,0]")
    for k in range(0, nv_, 2): a(f"v_cvt_pk_bf16_f32 v{32+k//2}, v{S+k}, v{S+k+1}")
    for k in range(0, nv_, 2): a(f"v_lshlrev_b32 v{S+k}, 16, v{32+k//2}\nv_and_b32 v{S+k+1}, v{vHi}, v{32+k//2}")
    l2 = lambda k: (lambda: pk("mul", S + k, S + k, 50, mods="op_sel_hi:[1,0]"))
    if half:
        a(f"v_max3_f32 v32, v{S}, v{S+1}, v{S+2}\nv_max_f32 v32, v32, v{S+3}")
        l2(0)(); l2(2)()
        a("v_max_f32_dpp v32, v32, v32 row_ror:8 row_mask:0xf bank_mask:0xf")
        xlane(32, 33, "v_max_f32")
    else:
        a(f"v_max3_f32 v32, v{S}, v{S+1}, v{S+2}\nv_max3_f32 v33, v{S+3}, v{S+4}, v{S+5}\nv_max3_f32 v32, v32, v{S+6}, v{S+7}\nv_max_f32 v32, v32, v33")
        xlane(32, 33, "v_max_f32", ((l2(0), l2(2)), (l2(4), l2(6))))
    a("v_mul_f32 v32, v50, v32")
    for k in range(0, nv_, 2): pk("add", S + k, S + k, 32, mods="op_sel_hi:[1,0] neg_lo:[0,1] neg_hi:[0,1]")
    for k in range(nv_): a(f"v_exp_f32 v{S+k}, v{S+k}")
    pk("add", 34, S, S + 2)
    if half:
        a(f"v_cvt_pk_bf16_f32 v36, v{S}, v{S+1}\nv_add_f32 v33, v34, v35\nv_cvt_pk_bf16_f32 v37, v{S+2}, v{S+3}")
        a(f"ds_write_b64 v{vPw}, v[36:37] offset:{L_P}")
        a("v_add_f32_dpp v33, v33, v33 row_ror:8 row_mask:0xf bank_mask:0xf")
    else:
        for k in range(0, 4, 2): a(f"v_cvt_pk_bf16_f32 v{36+k//2}, v{S+k}, v{S+k+1}")
        pk("add", 34, 34, S + 4)
        for k in range(4, 8, 2): a(f"v_cvt_pk_bf16_f32 v{36+k//2}, v{S+k}, v{S+k+1}")
        pk("add", 34, 34, S + 6)
        a(f"ds_write_b128 v{vPw}, v[36:39] offset:{L_P}")
        a(f"v_add_f32 v33, v34, v35")
    xlane(33, 35, "v_add_f32")
    a(f"ds_write_b64 v{vMw}, v[32:33] offset:{L_ML}")
    signal(F_B2)
    stamp(6)
    if vpre: a("s_cmp_ge_u32 s35, 4\ns_cbranch_scc1 L_vdone")
    poll_lds(F_V, 4, 32, 10)
    a("\n".join(vreads))
    if vpre: a("L_vdone:")
    PW = 16; ML = 32; AC = 128
    poll_lds(F_B2, 4, 40, 11, "\n".join([f"ds_read_b128 v[{PW+4*w}:{PW+4*w+3}], v13 offset:{L_P+1024*w}" for w in range(4)] +
                                       [f"ds_read_b64 v[{ML+2*w}:{ML+2*w+1}], v{vMl} offset:{L_ML+128*w}" for w in range(4)]))
    stamp(7)
    fill = [f"v_max3_f32 v41, v{ML}, v{ML+2}, v{ML+4}\nv_max_f32 v41, v41, v{ML+6}",
            f"v_sub_f32 v40, v{ML}, v41\nv_sub_f32 v42, v{ML+2}, v41",
            f"v_sub_f32 v44, v{ML+4}, v41\nv_sub_f32 v46, v{ML+6}, v41",
            "v_exp_f32 v40, v40", "v_exp_f32 v42, v42", "v_exp_f32 v44, v44", "v_exp_f32 v46, v46",
            f"v_mul_f32 v43, v40, v{ML+1}\nv_fmac_f32 v43, v42, v{ML+3}"]
    for w in range(4):
        for t in range(2):
            r = AC + 8 * w + 4 * t
            a(f"v_mfma_f32_16x16x32_bf16 v[{r}:{r+3}], v[{VF+8*w+4*t}:{VF+8*w+4*t+3}], v[{PW+4*w}:{PW+4*w+3}], 0")
            a(fill[2 * w + t])
    a(f"v_fmac_f32 v43, v44, v{ML+5}\nv_fmac_f32 v43, v46, v{ML+7}")
    for k in range(4): a(f"v_cndmask_b32 v{AC+k}, v{AC+k}, v{AC+4+k}, s[18:19]")
    a("v_rcp_f32 v48, v43\nv_log_f32 v43, v43")
    for w in range(1, 4):
        for k in range(4): a(f"v_cndmask_b32 v{AC+8*w+k}, v{AC+8*w+k}, v{AC+8*w+4+k}, s[18:19]")
    for k in (0, 2): pk("mul", 16 + k, AC + k, 40, mods="op_sel_hi:[1,0]")
    for w in range(1, 4):
        for k in (0, 2): pk("fma", 16 + k, AC + 8 * w + k, 40 + 2 * w, 16 + k, mods="op_sel_hi:[1,0,1]")
    for k in (0, 2): pk("mul", 16 + k, 16 + k, 48, mods="op_sel_hi:[1,0]")
    tag4(16, 16, vT)
    a(f"""buffer_store_dwordx4 v[16:19], v{vOd}, s[56:59], s28 offen sc1
v_add_f32 v46, v41, v43
v_mov_b32 v47, v{vT}
s_mov_b64 exec, 0xff
{HST2} v[46:47], v{vLs}, s[56:59], s29 offen sc1
s_mov_b32 exec_lo, {hex((1<<OR)-1)}
{f"buffer_atomic_add v3, v{vOh}, s[56:59], s31 offen sc1" if ocnt else f"{HST} v{vT}, v{vOh}, s[56:59], s31 offen sc1"}
s_mov_b64 exec, -1
s_mov_b32 s60, s36
s_mov_b32 s61, s37""")
    if g3 is not None: signal(F_OP)
    stamp(8)
    if oack: a("s_waitcnt vmcnt(0)")
    if opos: poll_lds(F_PO, 4, 32, 25, sleep=2)
    if ocnt:
        Lc = newlab("OC"); Dc = newlab("OD")
        a(f"{Lc}:\ns_load_dword s64, s[60:61], 0 glc\ns_waitcnt lgkmcnt(0)\ns_cmp_eq_u32 s64, 32\ns_cbranch_scc1 {Dc}")
        spin(Lc, 13)
        a(f"{Dc}:")
    elif othr: poll_hints(2, 13, othr, hw=ohw)
    elif touch: a("s_branch L_no13\nT_13:\ns_setpc_b64 s[94:95]\nL_no13:")
    stamp(9)
    Lo = newlab("GO")
    a("s_mov_b64 vcc, -1")
    a(f"{Lo}:")
    for i in range(4): a(f"buffer_load_dwordx2 v[{32+2*i}:{33+2*i}], v{vLg}, s[56:59], s39 offen offset:{64*i} sc1")
    a("s_mov_b64 exec, vcc")
    for i in range(4): a(f"buffer_load_dwordx4 v[{G+4*i}:{G+4*i+3}], v{vL16}, s[56:59], s38 offen offset:{1024*i} sc1")
    if (g2 is not None or gs is not None) and not ogs: signal(F_OG)
    else: a("s_mov_b64 exec, -1")
    a("s_waitcnt vmcnt(4)")
    a("v_max3_f32 v40, v32, v34, v36\nv_max_f32 v40, v40, v38")
    a(f"v_xor_b32 v41, v33, v{vT}\nv_bitop3_b32 v41, v41, v35, v{vT} bitop3:0xf6")
    a("v_max_f32_dpp v40, v40, v40 row_ror:8 row_mask:0xf bank_mask:0xf")
    xlane(40, 42, "v_max_f32", ((lambda: a(f"v_bitop3_b32 v41, v41, v37, v{vT} bitop3:0xf6\nv_bitop3_b32 v41, v41, v39, v{vT} bitop3:0xf6"),), ()))
    for i in range(4): a(f"v_sub_f32 v{32+2*i}, v{32+2*i}, v40")
    for i in range(4): a(f"v_exp_f32 v{32+2*i}, v{32+2*i}")
    a("s_waitcnt vmcnt(0)")
    xs = [f"v_xor_b32 v{G+j}, v{G+j}, v{vTb+(j&3)}" for j in range(16)]
    a("v_add_f32 v43, v32, v34\nv_add_f32 v42, v36, v38\nv_add_f32 v43, v43, v42")
    a("\n".join(xs[0:2])); a("v_add_f32_dpp v43, v43, v43 row_ror:8 row_mask:0xf bank_mask:0xf")
    xlane(43, 42, "v_add_f32", ((lambda: a("\n".join(xs[2:6])),), (lambda: a("\n".join(xs[6:10])),)))
    a("v_rcp_f32 v43, v43"); a("\n".join(xs[10:16]))
    for k in (0, 2): pk("mul", 44 + k, G + k, 32, mods="op_sel_hi:[1,0]")
    for i in range(1, 4):
        for k in (0, 2): pk("fma", 44 + k, G + 4 * i + k, 32 + 2 * i, 44 + k, mods="op_sel_hi:[1,0,1]")
    ors = [f"v_or3_b32 v42, v{G}, v{G+1}, v{G+2}"] + [f"v_or3_b32 v42, v42, v{G+j}, v{G+j+1}" for j in range(3, 15, 2)] + [f"v_or_b32 v42, v42, v{G+15}", "v_lshl_or_b32 v42, v42, 24, v41"]
    def rscatter(v, fill=((), (), ())):
        for f in fill[0]: a(f)
        a(f"v_permlane32_swap_b32 v{v}, v{v+2}\nv_permlane32_swap_b32 v{v+1}, v{v+3}")
        a(f"v_add_f32 v{v}, v{v}, v{v+2}\nv_add_f32 v{v+1}, v{v+1}, v{v+3}")
        for f in fill[1]: a(f)
        a(f"v_permlane16_swap_b32 v{v}, v{v+1}\nv_add_f32 v{v}, v{v}, v{v+1}")
        for f in fill[2]: a(f)
    rscatter(44, (ors[0:2], ors[2:4], ors[4:6]))
    a("v_add_f32_dpp v44, v44, v44 row_ror:8 row_mask:0xf bank_mask:0xf")
    a("\n".join(ors[6:]))
    a("v_mul_f32 v44, v44, v43\nv_cvt_pk_bf16_f32 v44, v44, v44")
    a("v_cmp_ne_u32 vcc, 0, v42\ns_cbranch_vccnz L_oretry")
    a(f"ds_write_b32 v{vOw}, v44 offset:{L_O}")
    signal(F_O)
    if g2 is not None and ogs: signal(F_OG)
    stamp(11)
    a("s_branch L_exit")
    if align >= 2: a(".p2align 12")
    if touch: a("T_y:\ns_setpc_b64 s[94:95]")
    a("L_ypath:")
    roundbf(56, 4)
    normalize(F, 16)
    roundbf(F, 16)
    stats(F)
    normalize(56, 4)
    for k in range(4): a(f"v_cvt_pk_bf16_f32 v{60+k}, v{56+k}, v{56+k}")
    a(f"ds_write_b128 v16, v[60:63] offset:{L_Y}")
    signal(F_Y)
    stamp(3)
    a("s_branch L_lndone")

    a("L_oretry:")
    a("\n".join(xs))
    spin(Lo, 14)
    a("L_oaddr:")
    a(f"""s_and_b32 s14, s4, 3
s_lshl_b32 s14, s14, 2
s_add_u32 s14, s14, s3
s_lshl_b32 s14, s14, {QB+QRS}
s_lshr_b32 s15, s4, 2
s_lshl_b32 s15, s15, 5
s_add_u32 s15, s15, s5
s_lshr_b32 s15, s15, {6-QRS}
s_lshl_b32 s15, s15, {QB}
s_add_u32 s14, s14, s15
s_add_u32 s14, s14, {WS_QH}
s_add_u32 s60, s56, s14
s_addc_u32 s61, s57, 0
s_and_b32 s14, s4, 3
s_lshl_b32 s14, s14, 1
s_lshr_b32 s15, s4, 2
s_add_u32 s14, s14, s15
s_lshl_b32 s14, s14, 14
s_lshl_b32 s15, s3, 12
s_add_u32 s14, s14, s15
s_add_u32 s62, s14, {WS_QP}""")
    a(f"""s_lshr_b32 s14, s3, 1
s_and_b32 s15, s6, 1
s_lshl_b32 s15, s15, 1
s_and_b32 s16, s3, 1
s_add_u32 s15, s15, s16
s_lshl_b32 s16, s14, 2
s_lshr_b32 s17, s6, 4
s_add_u32 s16, s16, s17
s_lshl_b32 s16, s16, 2
s_add_u32 s16, s16, s15
s_lshl_b32 s16, s16, {ORS}
s_bfe_u32 s17, s6, 0x30001
s_lshl_b32 s17, s17, 2
s_add_u32 s17, s17, s7
s_lshr_b32 s17, s17, {5-ORS}
s_add_u32 s16, s16, s17
s_lshl_b32 s16, s16, {OB}
s_add_u32 s16, s16, {WS_OH}
s_add_u32 s36, s56, s16
s_addc_u32 s37, s57, 0
s_lshl_b32 s16, s14, 5
s_lshr_b32 s17, s6, 1
s_add_u32 s16, s16, s17
s_lshl_b32 s16, s16, 2
s_add_u32 s16, s16, s15
s_lshl_b32 s38, s16, 12
s_add_u32 s38, s38, {WS_OP}
s_lshl_b32 s39, s16, 8
s_add_u32 s39, s39, {WS_LS}""")
    a("s_setpc_b64 s[94:95]")
    a("L_H:")
    if touch and not nt: touches(['y'])
    a("""s_mov_b64 s[36:37], s[86:87]
s_load_dwordx2 s[40:41], s[0:1], 72
s_load_dwordx2 s[44:45], s[0:1], 80""")
    if stamps: a(f"v_writelane_b32 v{vStamp}, s96, 0")
    a(f"""s_mov_b32 s38, 7168
s_mov_b32 s39, 0x20000
s_mov_b32 s42, 2048
s_mov_b32 s43, 0x20000
s_mov_b32 s46, 4096
s_mov_b32 s47, 0x20000
v_and_b32 v16, 1, v1
v_lshrrev_b32 v17, 4, v1
v_lshl_add_u32 v16, v16, 2, v17
v_lshlrev_b32 v14, 1, v16
s_lshl_b32 s34, s4, 5
s_add_u32 s34, s34, s5
s_lshl_b32 s33, s34, 4
s_and_b32 s15, s33, 2047
v_and_b32 v16, 15, v1
v_lshlrev_b32 v16, 3, v16
s_lshl_b32 s17, s8, 7
s_waitcnt lgkmcnt(0)
buffer_load_ushort v{vXf}, v14, s[24:27], s33 offen {xfl}
buffer_load_ushort v{vB2f}, v14, s[40:43], s15 offen {xfl}
buffer_load_dwordx2 v[{vB1}:{vB1+1}], v16, s[36:39], s17 offen {xfl}""")
    if probe is not None:
        a(f"""s_load_dword s64, s[56:57], {probe + 0x2000} glc
s_waitcnt lgkmcnt(0)
s_memrealtime s[64:65]
s_waitcnt lgkmcnt(0)
s_load_dword s66, s[56:57], {probe} glc
s_load_dword s67, s[56:57], {probe + 0x380} glc
s_waitcnt lgkmcnt(0)
s_memrealtime s[66:67]
s_waitcnt lgkmcnt(0)
s_sub_u32 s64, s66, s64
s_lshl_b32 s64, s64, 4
s_cmp_eq_u32 s2, 5
s_cselect_b32 s64, s64, 0
s_add_u32 s96, s96, s64""")
    if ptouch:
        a(f"""v_and_b32 v90, 7, v1
v_lshrrev_b32 v91, 3, v1
v_lshlrev_b32 v92, 14, v90
v_lshl_add_u32 v92, v91, 12, v92
s_lshl_b32 s14, s4, 17
s_lshl_b32 s15, s5, 7
s_add_u32 s14, s14, s15
s_add_u32 s14, s14, {WS_OP}
v_add_u32 v92, s14, v92
v_and_b32 v91, 1, v91
v_lshlrev_b32 v93, 7, v90
v_lshl_add_u32 v93, v91, 12, v93
s_mul_i32 s14, s6, {fps}
s_lshl_b32 s15, s7, 10
s_add_u32 s14, s14, s15
s_add_u32 s14, s14, {WS_FP}
v_add_u32 v93, s14, v93
v_cmp_lt_u32 vcc, 31, v1
v_cndmask_b32 v92, v92, v93, vcc
v_and_b32 v93, 1, v1
v_lshlrev_b32 v93, 7, v93
v_bfe_u32 v91, v1, 1, 1
v_lshl_add_u32 v93, v91, 14, v93
s_lshr_b32 s14, s6, 4
s_lshl_b32 s14, s14, 15
s_bfe_u32 s15, s6, 0x20002
s_lshl_b32 s15, s15, 12
s_add_u32 s14, s14, s15
s_lshl_b32 s15, s7, 10
s_add_u32 s14, s14, s15
s_and_b32 s15, s6, 3
s_lshl_b32 s15, s15, 8
s_add_u32 s14, s14, s15
s_add_u32 s14, s14, {WS_QP}
v_add_u32 v93, s14, v93
v_cmp_lt_u32 vcc, 47, v1
v_cndmask_b32 v92, v92, v93, vcc
v_and_b32 v93, 3, v1
v_lshlrev_b32 v93, 7, v93
s_lshl_b32 s14, s8, 11
s_lshl_b32 s15, s7, 9
s_add_u32 s14, s14, s15
s_add_u32 s14, s14, {WS_HP}
v_add_u32 v93, s14, v93
v_cmp_lt_u32 vcc, 51, v1
v_cndmask_b32 v92, v92, v93, vcc
v_and_b32 v93, 3, v1
v_lshlrev_b32 v93, 7, v93
s_mul_i32 s14, s2, {(WS_QP - WS_HH) // 256}
s_and_b32 s14, s14, 0xffffff80
s_add_u32 s14, s14, {WS_HH}
v_subrev_u32 v91, 56, v1
v_lshlrev_b32 v91, 7, v91
v_add_u32 v93, s14, v91
v_cmp_lt_u32 vcc, 55, v1
v_cndmask_b32 v92, v92, v93, vcc
buffer_load_dword v94, v92, s[56:59], 0 offen {ptf}
buffer_load_dword v95, v92, s[56:59], 0 offen offset:64 {ptf}""")
    tagconsts()
    if ocnt:
        a(f"""s_and_b32 s14, s6, 15
s_lshl_b32 s14, s14, 2
s_add_u32 s14, s14, s7
s_cmp_ge_u32 s14, {8*OR}
s_cbranch_scc1 L_noclr
s_lshr_b32 s15, s14, {2+ORS}
s_lshl_b32 s15, s15, 2
s_lshr_b32 s17, s6, 4
s_add_u32 s15, s15, s17
s_lshl_b32 s15, s15, {2+ORS}
s_and_b32 s14, s14, {4*OR-1}
s_add_u32 s14, s14, s15
s_lshl_b32 s14, s14, 7
s_add_u32 s14, s14, {WS_OH}
s_mov_b64 exec, 1
buffer_atomic_swap v2, v2, s[56:59], s14 offen sc1
s_mov_b64 exec, -1
s_waitcnt vmcnt(0)
L_noclr:""")
    a(f"""v_lshrrev_b32 v80, 4, v1
v_and_b32 v81, 15, v1
v_lshlrev_b32 v81, 4, v81
v_lshl_add_u32 v80, v80, 14, v81
v_lshlrev_b32 v81, {QB}, v1
s_lshr_b32 s14, s6, 4
s_lshl_b32 s14, s14, 15
s_bfe_u32 s15, s6, 0x20002
s_lshl_b32 s15, s15, 12
s_add_u32 s14, s14, s15
s_lshl_b32 s15, s7, 10
s_add_u32 s14, s14, s15
s_and_b32 s15, s6, 3
s_lshl_b32 s15, s15, 8
s_add_u32 s14, s14, s15
s_add_u32 s30, s14, {WS_QP}
s_lshr_b32 s15, s6, 2
s_lshl_b32 s15, s15, {QB+QRS}
s_and_b32 s17, s6, 3
s_lshl_b32 s17, s17, 2
s_add_u32 s17, s17, s7
s_lshr_b32 s16, s17, {qhw.bit_length()-1}
s_lshl_b32 s16, s16, 6
s_add_u32 s15, s15, s16
s_and_b32 s17, s17, {qhw-1}
s_lshl_b32 s17, s17, 2
s_add_u32 s15, s15, s17
s_add_u32 s31, s15, {WS_QH}""")
    if qdir == 1: publish_part(L_QPART, F_Q, 5, 80, "s_nop 0")
    else: publish_part(L_QPART, F_Q, 5, 80, ("s_mov_b64 exec, -1" if QR == 64 else f"s_mov_b32 exec_lo, {hex((1<<QR)-1)}") + f"\n{HST} v{vT}, v81, s[56:59], s31 offen sc1")
    stamp(3)
    if touch and not nt: touches([12, 16, 18])
    if tpat: a("v_bfe_u32 v48, v1, 2, 3\nv_lshlrev_b32 v48, 6, v48\nv_and_b32 v49, 3, v1\nv_lshl_add_u32 v48, v49, 2, v48")
    else: a("v_and_b32 v48, 31, v1\nv_lshlrev_b32 v48, 4, v48")
    a(f"""s_nop 0
s_lshl_b32 s52, s34, 5
s_add_u32 s52, s52, {WS_FP}
s_add_u32 s53, s52, {32*fps}
v_lshrrev_b32 v50, 1, v1
v_mul_u32_u24 v50, {fps}, v50
v_and_b32 v51, 1, v1
v_lshl_add_u32 v50, v51, 4, v50
s_waitcnt vmcnt(2)
v_lshlrev_b32 v{vXf}, 16, v{vXf}
v_lshlrev_b32 v{vB2f}, 16, v{vB2f}
v_add_f32 v{vXf}, v{vXf}, v{vB2f}
v_mov_b32 v44, 0
v_mov_b32 v45, 0
v_mov_b32 v46, 0
v_mov_b32 v47, 0
s_cmp_eq_u32 s9, 0
s_cbranch_scc1 L_hwrite
s_lshl_b32 s62, s8, 11
s_add_u32 s62, s62, {WS_HP}
s_lshl_b32 s15, s7, 9
s_add_u32 s30, s62, s15""")
    unpack(vB1, 76, 2)
    if hloc:
        a(f"s_add_u32 s31, s30, {WS_HL - WS_HP}\ns_add_u32 s63, s62, {WS_HL - WS_HP}\ns_add_u32 s60, s56, s63\ns_addc_u32 s61, s57, 0\ns_and_b32 s28, s12, 0xff\ns_mov_b32 s17, 0")
        publish_part(L_HPART, F_H, 12, vL16, f"buffer_store_dwordx4 v[96:99], v{vL16}, s[56:59], s31 offen")
        stamp(4)
        L1 = newlab("HA"); L2 = newlab("HB")
        a(f"{L1}:")
        for k in range(4): a(f"s_load_dword s{64+k}, s[60:61], {512*k} glc")
        a(f"s_add_u32 s17, s17, 1\ns_cmp_ge_u32 s17, {hloc}\ns_cbranch_scc1 {L2}\ns_waitcnt lgkmcnt(0)")
        a("s_xor_b32 s64, s64, s28\ns_xor_b32 s65, s65, s28\ns_xor_b32 s66, s66, s28\ns_xor_b32 s67, s67, s28\ns_or_b32 s64, s64, s65\ns_or_b32 s66, s66, s67\ns_or_b32 s64, s64, s66\ns_and_b32 s64, s64, 0xff")
        a(f"s_cbranch_scc1 {L1}")
        for i in range(2): a(f"buffer_load_dwordx4 v[{G+4*i}:{G+4*i+3}], v{vL16}, s[56:59], s63 offen offset:{1024*i} sc1")
        stamp(5)
        a("s_waitcnt vmcnt(0)")
        untag(G, 2, 42)
        a(f"v_cmp_ne_u32 vcc, 0, v42\ns_cbranch_vccz L_hok\ns_branch {L1}\n{L2}:\ns_waitcnt lgkmcnt(0)")
    else:
        a(f"s_lshl_b32 s14, s8, 7\ns_add_u32 s14, s14, {WS_HH}\ns_add_u32 s60, s56, s14\ns_addc_u32 s61, s57, 0\ns_lshl_b32 s17, s7, 2\ns_add_u32 s31, s14, s17")
        publish_part(L_HPART, F_H, 12, vL16, f"s_mov_b32 exec_lo, 1\n{HST} v{vT}, v2, s[56:59], s31 offen sc1")
        stamp(4)
        poll_hints(0, 15)
        stamp(5)
    Lh = newlab("GH")
    a(f"{Lh}:")
    for i in range(2): a(f"buffer_load_dwordx4 v[{G+4*i}:{G+4*i+3}], v{vL16}, s[56:59], s62 offen offset:{1024*i} sc1")
    a("s_waitcnt vmcnt(0)")
    untag(G, 2, 42)
    retry_if(42, Lh, 16)
    a("L_hok:")
    stamp(6)
    pk("add", G, G, G + 4); pk("add", G + 2, G + 2, G + 6)
    for k in range(4): a(f"v_mov_b32 v{G+4+k}, v{G+k}")
    for k in range(4): a(f"v_permlane32_swap_b32 v{G+k}, v{G+4+k}")
    pk("add", G, G, G + 4); pk("add", G + 2, G + 2, G + 6)
    roundbf(G, 4)
    pk("add", G, G, 76); pk("add", G + 2, G + 2, 78)
    roundbf(G, 4)
    a("s_mov_b32 s14, 0x3d372713\ns_mov_b32 s15, 0xc0135761")
    for k in (0, 2): pk("mul", 24 + k, G + k, G + k)
    for k in (0, 2): pk("mul", 24 + k, 24 + k, G + k)
    for k in range(4): a(f"v_fma_f32 v{24+k}, s14, v{24+k}, v{G+k}")
    for k in range(4): a(f"v_mul_f32 v{24+k}, s15, v{24+k}")
    for k in range(4): a(f"v_exp_f32 v{24+k}, v{24+k}")
    for k in range(4): a(f"v_add_f32 v{24+k}, 1.0, v{24+k}")
    for k in range(4): a(f"v_rcp_f32 v{24+k}, v{24+k}")
    for k in (0, 2): pk("mul", 24 + k, 24 + k, G + k)
    for k in range(4): a(f"v_cvt_pk_bf16_f32 v{44+k}, v{24+k}, v{24+k}")
    a("L_hwrite:")
    if tpat:
        for k in range(4): a(f"ds_write_b32 v48, v{44+k} offset:{L_H+16*k}")
    else: a(f"ds_write_b128 v48, v[44:47] offset:{L_H}")
    signal(F_HD)
    stamp(12)
    if tall == 2 and xt != 3: a("s_waitcnt lgkmcnt(0)\ns_barrier")
    poll_lds(F_FP, 4, 32, 18, sleep=0 if tall == 2 else 1)
    stamp(7)
    if fdelay: a(f"s_sleep {fdelay}")
    Lf = newlab("GF"); Ld = newlab("GD")
    sets = [64 + 8 * k for k in range(fsets)]
    def fissue(R):
        for i in range(2): a(f"buffer_load_dwordx4 v[{R+4*i}:{R+4*i+3}], v50, s[56:59], s{52+i} offen sc1")
    for R in sets[:-1]: fissue(R)
    a(f"{Lf}:")
    if fastfin:
        for k, R in enumerate(sets):
            fissue(sets[k - 1])
            a(f"s_waitcnt vmcnt({2*(fsets-1)})")
            for j in range(8): a(f"v_xor_b32 v{R+j}, v{R+j}, v{vTb+(j&3)}")
            pk("add", 44, R, R + 4); pk("add", 46, R + 2, R + 6)
            rscatter(44, ((f"v_or3_b32 v42, v{R}, v{R+1}, v{R+2}", f"v_or3_b32 v42, v42, v{R+3}, v{R+4}"),
                          (f"v_or3_b32 v42, v42, v{R+5}, v{R+6}", f"v_or_b32 v42, v42, v{R+7}"),
                          ("v_lshlrev_b32 v42, 24, v42", "v_cmp_ne_u32 vcc, 0, v42")))
            a("v_add_f32_dpp v44, v44, v44 quad_perm:[2,3,0,1] row_mask:0xf bank_mask:0xf")
            a(f"s_cbranch_vccz {Ld}")
        spin(Lf, 17)
        a(f"{Ld}:")
        stamp(13)
        R = 44
        a("s_nop 0")
        a(f"v_add_f32_dpp v{R}, v{R}, v{R} row_ror:4 row_mask:0xf bank_mask:0xf")
        a(f"v_add_f32_dpp v{R}, v{R}, v{R} row_ror:8 row_mask:0xf bank_mask:0xf")
    else:
        for k, R in enumerate(sets):
            fissue(sets[k - 1])
            a(f"s_waitcnt vmcnt({2*(fsets-1)})")
            untag(R, 2, 42)
            pk("add", 44, R, R + 4); pk("add", 46, R + 2, R + 6)
            a(f"v_cmp_ne_u32 vcc, 0, v42\ns_cbranch_vccz {Ld}")
        spin(Lf, 17)
        a(f"{Ld}:")
        stamp(13)
        R = 44
        rscatter(R)
        for m in ("quad_perm:[2,3,0,1]", "row_ror:4", "row_ror:8"):
            a(f"v_add_f32_dpp v{R}, v{R}, v{R} {m} row_mask:0xf bank_mask:0xf")
    a(f"s_mov_b32 exec_lo, 0x00030003\ns_mov_b32 exec_hi, 0x00030003")
    a(f"v_add_f32 v{R}, v{R}, v{vXf}\nv_cvt_pk_bf16_f32 v{R}, v{R}, v{R}\nbuffer_store_short v{R}, v14, s[44:47], s33 offen {oflags}")
    a(f"s_cmp_lg_u32 s2, 0\ns_cbranch_scc1 L_noep\ns_add_u32 s11, s11, 1\nv_mov_b32 v{R+1}, s11\ns_mov_b64 exec, 1\nbuffer_store_dword v{R+1}, v2, s[56:59], 0 offen {oflags}\nL_noep:\ns_mov_b64 exec, -1")
    stamp(14, True)
    if fixdur:
        a(f"s_add_u32 s96, s96, {fixdur}\nL_fix:\ns_memrealtime s[98:99]\ns_waitcnt lgkmcnt(0)\ns_sub_u32 s98, s98, s96\ns_cmp_lt_i32 s98, 0\ns_cbranch_scc1 L_fix")
    a("L_exit:")
    if stamps:
        a(f"""s_waitcnt vmcnt(0)
v_lshrrev_b32 v20, 6, v0
v_lshlrev_b32 v20, 6, v20
v_lshl_add_u32 v20, v1, 2, v20
s_lshl_b32 s14, s2, 10
s_add_u32 s14, s14, {WS_ST}
s_mov_b64 exec, 0xffff
buffer_store_dword v{vStamp}, v20, s[56:59], s14 offen""")
    a("L_end:\ns_endpgm")
    a("L_fail:")
    a("""s_load_dwordx2 s[48:49], s[0:1], 88
s_mov_b32 s50, 256
s_mov_b32 s51, 0x20000
s_lshl_b32 s14, s15, 2
v_mov_b32 v20, s2
v_add_u32 v20, 1, v20
s_waitcnt lgkmcnt(0)
s_mov_b64 exec, 1
buffer_store_dword v20, v2, s[48:51], s14 offen
s_endpgm""")
    if fastcode:
        a(".p2align 12\nT_f:\ns_setpc_b64 s[94:95]\nL_fast:")
        pend2, st['landed'] = fastcode[0]
        st['cofs'] = 30
        Wf = [max(w, bw) for w in W]
        emit_stream(bp, Wf, pend2, gates if bgate else {}, True)
        a("s_branch L_join")
    if post: a(f".fill {post}, 4, 0xbf800000")
    nv = 168
    a(f""".section .rodata,"a"
.p2align 6
.amdhsa_kernel {KNAME}
  .amdhsa_next_free_vgpr {nv}
  .amdhsa_next_free_sgpr 102
  .amdhsa_accum_offset {nv}
  .amdhsa_group_segment_fixed_size 0
  .amdhsa_kernarg_size 104
  .amdhsa_user_sgpr_count 2
  .amdhsa_user_sgpr_kernarg_segment_ptr 1
  .amdhsa_system_sgpr_workgroup_id_x 1
  .amdhsa_float_denorm_mode_32 3
.end_amdhsa_kernel""")
    return a.finish()

if __name__ == "__main__":
    out = sys.argv[1] if len(sys.argv) > 1 else "x.s"
    open(out, "w").write(gen())
```

```python
import sys
from asmlib import Asm

KNAME = "parallel_sum__sliding_block_cached__mixer_channel_mlp__decode_kernel"

WS_HH = 0x1000; WS_QH = 0x4000; WS_OH = 0x8000; WS_LS = 0x18000; WS_QP = 0x28000
WS_HP = 0x48000; WS_HL = 0x64000; WS_FP = 0x64000; WS_OP = 0x100000; WS_ST = 0x200000
WS_BYTES = 0x10000000
KSTR = 1088; VSTR = 1152
L_X = 0
L_Y = L_X + 2048; L_QPART = L_Y + 2048; L_HPART = L_QPART + 2048
L_QBUF = L_HPART + 2048; L_P = L_QBUF + 2304; L_ML = L_P + 4096
L_O = L_ML + 512; L_H = L_O + 512; L_F = L_H + 512
L_K = L_F + 128; L_V = L_K + 32 * KSTR; L_END = L_V + 32 * VSTR
L_FIN = L_K
F_X, F_Y, F_Q, F_K, F_V, F_H, F_B1, F_B2, F_O, F_HD, F_QG, F_OG, F_FP, F_B3, F_OP, F_K2, F_PQ, F_PO = [L_F + 4 * i for i in range(18)]
TO_LIMIT = 1 << 20
NW = 9

def gen(W=(5, 5, 5, 6, 5, 5), stamps=0, ldflags="nt", order="qkv1o2", qstart=5, p1start=0, cprio=3, QR=4, OR=4, g1=None, g2=44,
        sonly=0, fsets=1, fack=1, hloc=0, vpre=1, hat=1, tall=2, fdelay=0, align=2, touch=1, nt=0, tlb=0, oflags='', WE=None, late=4, pre=832, post=0, g3=None, hsleep=0, oack=1, qwait=1, rq=3, r1=2, othr=16, qthr=8, ogs=0, fakebal=0, half=1, tpat=1, pre2=1, fastfin=0, fixdur=0, qpos=None, opos=None, maxper=8, gs=None, wl=2, gq=None, wrot=0, w1t=0, ksw=1, vsw=2, kvr=0, kvc=8, qdir=0, fps=8192, ops=0, g2n=4, gsl=1, ocnt=0, qhw=16, ohw=16, flate=0, bp=None, bw=8, bt=480, bgate=1, fearly=0, ksl=2, xt=0, sprio=0, tf=None, wsb=0, xfl='', stfl='sc1', gfl='sc1', ptouch=0, ptf='sc1', probe=None):
    a = Asm()
    if isinstance(W, int): W = [W] * 48
    if len(W) == 6: W = [w for w in W for _ in range(8)]
    if isinstance(WE, int): WE = [WE] * 48
    if WE and len(WE) == 6: WE = [w for w in WE for _ in range(8)]
    lab = [0]
    HST = "buffer_atomic_swap" if hat else "buffer_store_dword"
    HST2 = "buffer_atomic_swap_x2" if hat else "buffer_store_dwordx2"
    def newlab(p="L"):
        lab[0] += 1
        return f"{p}_{lab[0]}"
    vStamp = 160
    stubs = (2, 22, 4, 19, 8, 9, 11, 13, 12, 16, 18, 32) if touch else ()
    def touches(codes):
        for c in codes: a(f"s_call_b64 s[94:95], T_{c}")
    def stamp(k, light=False):
        if stamps == 1 or (stamps == 2 and light):
            a(f"s_memrealtime s[98:99]\ns_waitcnt lgkmcnt(0)\nv_writelane_b32 v{vStamp}, s98, {k}")
    def signal(flag):
        a(f"s_mov_b64 exec, 1\nds_add_u32 v2, v3 offset:{flag}\ns_mov_b64 exec, -1")
    def spin(L, code):
        a(f"s_add_u32 s10, s10, 1\ns_cmp_lt_u32 s10, {TO_LIMIT}\ns_cbranch_scc1 {L}\ns_mov_b32 s15, {code}\ns_branch L_fail")
        if code in stubs: a(f"T_{code}:\ns_setpc_b64 s[94:95]")
    def poll_lds(flag, n, vt, code, spec=None, sleep=0):
        L = newlab("PL"); D = newlab("PD")
        a(f"{L}:\nds_read_b32 v{vt}, v2 offset:{flag}")
        if spec: a(spec)
        a(f"s_waitcnt lgkmcnt(0)\nv_readfirstlane_b32 s14, v{vt}\ns_cmp_ge_u32 s14, {n}\ns_cbranch_scc1 {D}")
        if sleep: a(f"s_sleep {sleep}")
        spin(L, code)
        a(f"{D}:")
    def red64(v, s):
        for m in ("quad_perm:[1,0,3,2] row_mask:0xf", "quad_perm:[2,3,0,1] row_mask:0xf", "row_half_mirror row_mask:0xf",
                  "row_mirror row_mask:0xf", "row_bcast:15 row_mask:0xa", "row_bcast:31 row_mask:0xc"):
            a(f"v_add_f32_dpp v{v}, v{v}, v{v} {m} bank_mask:0xf")
        a(f"v_readlane_b32 s{s}, v{v}, 63")
    def nonce():
        a("s_mul_i32 s12, s11, 0x9E3779B1\ns_add_u32 s12, s12, 0x85EBCA77\ns_mov_b32 s13, s12")
        a("s_mov_b32 s20, 0x07060500\ns_mov_b32 s21, 0x07060501\ns_mov_b32 s22, 0x07060502\ns_mov_b32 s23, 0x07060503")
    def tag4(src, dst, vT):
        for k in range(4): a(f"v_perm_b32 v{dst+k}, v{src+k}, v{vT}, s{20+k}")
    def pk(op, d, x, y, z=None, mods=""):
        zz = f", v[{z}:{z+1}]" if z is not None else ""
        a(f"v_pk_{op}_f32 v[{d}:{d+1}], v[{x}:{x+1}], v[{y}:{y+1}]{zz} {mods}")

    a(f"; @launch grid=(256,1,1) block=({64*(NW+nt)},1,1) lds={L_END}")
    a('.amdgcn_target "amdgcn-amd-amdhsa--gfx950"')
    a(f".text\n.globl {KNAME}")
    if align: a(".p2align 12\n.fill {pre}, 4, 0xbf800000".replace("{pre}", str(pre)))
    a(f".p2align 8\n.type {KNAME},@function\n{KNAME}:")
    a("""s_cmp_ge_u32 s2, 256
s_cbranch_scc1 L_end
s_load_dwordx16 s[72:87], s[0:1], 0
s_load_dwordx2 s[56:57], s[0:1], 96""")
    if stamps:
        a(f"s_memrealtime s[96:97]\nv_mov_b32 v{vStamp}, 0")
    if fixdur: a("s_memrealtime s[96:97]")
    if bp is not None: a("s_memrealtime s[88:89]")
    a(f"""v_lshrrev_b32 v4, 6, v0
v_and_b32 v1, 63, v0
v_readfirstlane_b32 s3, v4
v_mov_b32 v2, 0
v_mov_b32 v3, 1
s_and_b32 s4, s2, 7
s_lshr_b32 s5, s2, 3
s_lshr_b32 s14, s5, 2
s_lshl_b32 s15, s14, 3
s_add_u32 s6, s4, {rq}
s_and_b32 s6, s6, 7
s_add_u32 s6, s6, s15
s_add_u32 s8, s4, {r1}
s_and_b32 s8, s8, 7
s_add_u32 s8, s8, s15
s_and_b32 s7, s5, 3
s_cmp_lt_u32 s14, 7
s_cselect_b32 s9, 1, 0
s_mov_b32 s10, 0
s_mov_b32 s58, {WS_BYTES - wsb}
s_mov_b32 s59, 0x20000
s_cmp_lt_u32 s3, 4
s_cbranch_scc1 L_S""")
    if nt:
        a("s_cmp_lt_u32 s3, 9\ns_cbranch_scc1 L_notw")
        if tlb: a("s_load_dwordx2 s[52:53], s[0:1], 64")
        a("s_waitcnt lgkmcnt(0)\ns_barrier")
        groups = {1: [['y', 19, 8, 11, 13, 12, 2, 4]], 2: [['y', 8, 13, 2], [19, 11, 12, 4]], 3: [['y', 11, 2], [19, 13, 4], [8, 12, 22 if g2 is not None else 4]]}[nt]
        for k, grp in enumerate(groups):
            if k + 1 < len(groups): a(f"s_cmp_lg_u32 s3, {9+k}\ns_cbranch_scc1 L_tw{k+1}")
            if tlb and k == 0:
                a(f"""s_lshl_b32 s14, s4, 22
s_add_u32 s14, s14, {12288*256}
s_load_dword s64, s[36:37], s14
s_load_dword s65, s[40:41], s14
s_mul_i32 s14, s7, {256*7168}
s_load_dword s66, s[44:45], s14
s_add_u32 s14, s14, {255*7168}
s_load_dword s67, s[44:45], s14
s_lshl_b32 s14, s6, 17
s_load_dword s68, s[48:49], s14
s_lshl_b32 s14, s8, 17
s_min_u32 s14, s14, {3583*2048}
s_load_dword s69, s[52:53], s14""")
            touches(grp)
            a("s_endpgm")
            if k + 1 < len(groups): a(f"L_tw{k+1}:")
        a("L_notw:")
    vL16 = 4
    if cprio: a(f"s_setprio {cprio}")
    a(f"""s_sub_u32 s3, s3, 4
s_mov_b32 s26, 4096
s_mov_b32 s27, 0x20000
v_lshlrev_b32 v{vL16}, 4, v1
v_lshlrev_b32 v16, 3, v1
s_and_b32 s16, s3, 1
s_lshl_b32 s14, s16, 11
s_lshl_b32 s15, s7, 9
s_add_u32 s15, s15, s14
v_lshlrev_b32 v17, 2, v1
s_mov_b32 exec_hi, 0
ds_write_b32 v17, v2 offset:{L_F}
s_mov_b64 exec, -1
s_cmp_eq_u32 s3, 4
s_waitcnt lgkmcnt(0)
s_mov_b64 s[24:25], s[72:73]
s_barrier
s_cbranch_scc1 L_C
buffer_load_dwordx4 v[20:23], v{vL16}, s[24:27], s14 offen {xfl}
buffer_load_dwordx4 v[24:27], v{vL16}, s[24:27], s14 offen offset:1024 {xfl}
buffer_load_dwordx2 v[28:29], v16, s[24:27], s15 offen {xfl}
s_branch L_C""")

    a("L_S:")
    a("s_load_dwordx2 s[52:53], s[0:1], 64")
    a(f"""s_mov_b32 s34, {1024*8192}
s_mov_b32 s35, 0x20000
s_mov_b32 s38, {2*4*16384*256}
s_mov_b32 s39, 0x20000
s_mov_b32 s42, {2*4*16384*256}
s_mov_b32 s43, 0x20000
s_cmp_lg_u32 s9, 0
s_cselect_b32 s46, {1024*7168}, 0
s_cselect_b32 s54, {3584*2048}, 0
s_mov_b32 s47, 0x20000
s_mov_b32 s50, {4096*2048}
s_mov_b32 s51, 0x20000
s_mov_b32 s55, 0x20000
s_lshl_b32 s14, s7, 8
s_lshl_b32 s15, s3, 6
s_add_u32 s14, s14, s15
s_lshl_b32 s60, s14, 13
s_lshl_b32 s15, s6, 7
s_add_u32 s60, s60, s15
s_mul_i32 s63, s14, 7168
s_lshl_b32 s15, s8, 7
s_add_u32 s63, s63, s15""")
    if w1t:
        if w1t == 1: a("s_lshr_b32 s15, s8, 2\ns_and_b32 s16, s8, 3")
        else: a("s_mul_i32 s16, s8, 4682\ns_lshr_b32 s16, s16, 16\ns_mul_i32 s15, s16, 14\ns_sub_u32 s15, s8, s15")
        a("s_lshl_b32 s16, s16, 2\ns_add_u32 s16, s16, s7\ns_lshl_b32 s16, s16, 2\ns_add_u32 s16, s16, s3\ns_mul_i32 s63, s16, 114688\ns_lshl_b32 s15, s15, 9\ns_add_u32 s63, s63, s15")
    if tall: a("s_lshl_b32 s14, s7, 9\ns_lshl_b32 s15, s3, 15\ns_add_u32 s14, s14, s15")
    else: a("s_lshl_b32 s14, s14, 1")
    a(f"""s_lshl_b32 s64, s6, 17
s_add_u32 s64, s64, s14
s_lshl_b32 s65, s8, 17
s_add_u32 s65, s65, s14
s_lshl_b32 s61, s4, 22
{"s_lshl_b32 s15, s5, 10" if kvc != 8 else ""}
{"s_add_u32 s61, s61, s15" if not kvc else f"s_mul_i32 s69, s3, {kvc*8*1024}" if kvc != 8 else ""}
{"" if kvc in (0, 8) else "s_add_u32 s69, s69, s15"}
{"s_lshl_b32 s15, s3, 18" if not kvr else "s_lshl_b32 s69, s3, 3"}
{"s_add_u32 s61, s61, s15" if not kvr else {1: "s_add_u32 s69, s69, s4", 2: "s_lshl_b32 s15, s4, 2", 3: "s_mul_i32 s15, s4, 5", 0: "s_nop 0"}[kvr & 3]}
{"s_add_u32 s69, s69, s15" if (kvr & 3) >= 2 else ""}
s_add_u32 s61, s61, {12288*256}
s_mov_b32 s62, s61
s_mul_i32 s66, s3, {8*KSTR}
s_add_u32 s66, s66, {L_K}
s_mul_i32 s67, s3, {8*VSTR}
s_add_u32 s67, s67, {L_V}""")
    vOffQ, vOff1, vOffO, vOffK, vOffV = 18, 19, 4, 5, 6
    vLdsX, vLdsO, vPart, vFP, vFin, vT = 7, 12, 13, 14, 15, 17
    vM = 8
    a(f"""v_lshrrev_b32 v20, 4, v1
v_bfe_u32 v21, v1, 3, 1
v_and_b32 v22, 7, v1
v_lshl_add_u32 v23, v20, 2, v21
v_lshlrev_b32 v24, 4, v22
v_lshl_add_u32 v{vOffQ}, v23, 13, v24
v_mul_u32_u24 v25, 7168, v23
v_add_u32 v{vOff1}, v25, v24
v_and_b32 v25, 15, v1""")
    if w1t: a(f"v_mul_u32_u24 v{vOff1}, 28672, v20\nv_lshl_add_u32 v{vOff1}, v25, 4, v{vOff1}")
    if tall:
        a(f"v_lshlrev_b32 v{vOffO}, 4, v25\nv_lshl_add_u32 v{vOffO}, v20, {11 if tpat else 13}, v{vOffO}")
        if tpat == 2:
            a(f"s_bfe_u32 s69, s5, 0x10002\ns_lshl_b32 s14, s69, 8\nv_add_u32 v{vOffO}, s14, v{vOffO}\nv_xor_b32 v63, 0x100, v{vOffO}")
    else: a(f"v_lshl_add_u32 v{vOffO}, v23, 11, v24")
    for sw, vo in ((ksw, vOffK), (vsw, vOffV)):
        if sw == 0: a(f"v_lshlrev_b32 v{vo}, 4, v1")
        else:
            if sw == 1: a("v_xor_b32 v26, v25, v20")
            else: a(f"v_lshlrev_b32 v26, {sw-1}, v20\nv_xor_b32 v26, v25, v26")
            a(f"v_lshlrev_b32 v26, 4, v26\nv_lshl_add_u32 v{vo}, v20, 8, v26")
    DQ, D1, D2, DO = 64, 96, 128, 64
    if ' ' in order:
        seq = []; cntr = {}
        for tok in order.split():
            t, k = tok[0], int(tok[1:])
            for _ in range(k):
                seq.append((t, cntr.get(t, 0))); cntr[t] = cntr.get(t, 0) + 1
        assert all(v == 8 for v in cntr.values()) and len(seq) == 48
    else:
        seq = [(t, i) for t in order for i in range(8)]
    endpos = {t: n + 1 for n, (t, i) in enumerate(seq) if i == 7}
    info = {'q': (32, 60, vOffQ, 8192, DQ), '1': (44, 63, vOff1, 7168, D1), '2': (52, 65, vOffO, 2048, D2), 'o': (48, 64, vOffO, 2048, DO),
            'k': (36, 61, vOffK, None, None), 'v': (40, 62, vOffV, None, None)}
    ldflags0 = ldflags
    def issue(t, i):
        ldflags = (tf or {}).get(t, ldflags0)
        srd, so, vo, stride, D = info[t]
        if t in 'kv' and kvr:
            base, st = (66, KSTR) if t == 'k' else (67, VSTR)
            ii = (i + 4) & 7 if (kvr >= 4 and t == 'v') else i
            a(f"s_add_u32 s16, s69, {ii}\ns_and_b32 s16, s16, 31\ns_lshl_b32 s16, s16, 15\ns_add_u32 s16, s16, s{so}\ns_add_u32 m0, s{base}, {ii*st}")
            a(f"buffer_load_dwordx4 v{vo}, s[{srd}:{srd+3}], s16 offen {ldflags} lds")
        elif t in 'kv' and kvc == 8:
            base, st = (66, KSTR) if t == 'k' else (67, VSTR)
            if i > 0: a(f"s_add_u32 s{so}, s{so}, s92")
            a(f"s_add_u32 s16, s{88 + (i & 3)}, s{so}\ns_add_u32 m0, s{base}, {i*st}")
            a(f"buffer_load_dwordx4 v{vo}, s[{srd}:{srd+3}], s16 offen {ldflags} lds")
        elif t in 'kv' and kvc:
            base, st = (66, KSTR) if t == 'k' else (67, VSTR)
            if i > 0: a(f"s_add_u32 s{so}, s{so}, 32768")
            a(f"s_add_u32 s16, s69, {(kvc*i*1024) & 0x7fff}\ns_and_b32 s16, s16, 0x7c00\ns_add_u32 s16, s16, s{so}\ns_add_u32 m0, s{base}, {i*st}")
            a(f"buffer_load_dwordx4 v{vo}, s[{srd}:{srd+3}], s16 offen {ldflags} lds")
        elif t in 'kv':
            if i > 0: a(f"s_add_u32 s{so}, s{so}, 32768")
            base, st = (66, KSTR) if t == 'k' else (67, VSTR)
            a(f"s_add_u32 m0, s{base}, {i*st}")
            a(f"buffer_load_dwordx4 v{vo}, s[{srd}:{srd+3}], s{so} offen {ldflags} lds")
        elif tall and t in '2o':
            if i > 0 and i % 2 == 0: a(f"s_add_u32 s{so}, s{so}, {8192 if tpat else 2048}")
            if tpat == 2: a(f"buffer_load_dwordx4 v[{D+4*i}:{D+4*i+3}], v{63 if i & 1 else vo}, s[{srd}:{srd+3}], s{so} offen {ldflags}")
            else: a(f"buffer_load_dwordx4 v[{D+4*i}:{D+4*i+3}], v{vo}, s[{srd}:{srd+3}], s{so} offen offset:{256*(i&1)} {ldflags}")
        elif w1t and t == '1':
            if i > 0 and i % 2 == 0: a(f"s_add_u32 s{so}, s{so}, 7168")
            a(f"buffer_load_dwordx4 v[{D+4*i}:{D+4*i+3}], v{vo}, s[{srd}:{srd+3}], s{so} offen offset:{256*(i&1)} {ldflags}")
        elif wrot and t in 'q1':
            rs = {1: "s_lshr_b32 s16, s5, 2", 2: "s_mov_b32 s16, s4", 3: "s_lshr_b32 s16, s5, 2\ns_add_u32 s16, s16, s4"}[wrot]
            a(f"{rs}\ns_add_u32 s16, s16, {i>>1}\ns_and_b32 s16, s16, 3\ns_mul_i32 s16, s16, {16*stride}\ns_add_u32 s16, s16, {2*(i&1)*stride}\ns_add_u32 s16, s16, s{so}")
            a(f"buffer_load_dwordx4 v[{D+4*i}:{D+4*i+3}], v{vo}, s[{srd}:{srd+3}], s16 offen {ldflags}")
        elif fakebal and t == '1' and i >= 6:
            a(f"buffer_load_dwordx4 v[{D+4*i}:{D+4*i+3}], v{vo}, s[{srd}:{srd+3}], s{so} offen offset:0")
        else:
            if i > 0:
                rowof = lambda j: 16 * (j >> 1) + 2 * (j & 1)
                a(f"s_add_u32 s{so}, s{so}, {(rowof(i) - rowof(i-1)) * stride}")
            a(f"buffer_load_dwordx4 v[{D+4*i}:{D+4*i+3}], v{vo}, s[{srd}:{srd+3}], s{so} offen {'' if (fakebal and t == '1' and i == 5) else ldflags}")
    DUP, A0, A1, AC0, AC1, X = 20, 36, 40, 52, 56, 60
    def buildA(i, h):
        Ar = (A0, A1)[h]
        src = DUP + 4 * (i >> 1) + 2 * (i & 1) + h
        for r in range(4): a(f"v_and_b32 v{Ar+r}, v{src}, v{vM+r}")
    def mm(D, i, first, last):
        for h, (Ar, AC) in enumerate(((A0, AC0), (A1, AC1))):
            c = "0" if first else f"v[{AC}:{AC+3}]"
            a(f"v_mfma_f32_16x16x32_bf16 v[{AC}:{AC+3}], v[{Ar}:{Ar+3}], v[{D+4*i}:{D+4*i+3}], {c}")
            if not last: buildA(i + 1, h)
    AT = [36, 40, 44, 48]
    def buildT(j, rs=range(4)):
        for r in rs: a(f"v_and_b32 v{AT[j]+r}, v{DUP+j}, v{vM+r}")
    def mmT(D, i, first):
        AC = (AC0, AC1)[i & 1]
        c = "0" if first else f"v[{AC}:{AC+3}]"
        a(f"v_mfma_f32_16x16x32_bf16 v[{AC}:{AC+3}], v[{AT[i>>1]}:{AT[i>>1]+3}], v[{D+4*i}:{D+4*i+3}], {c}")
        j = (i >> 1) + 1
        if j < 4: buildT(j, (0, 1) if i % 2 == 0 else (2, 3))
    def dupreads(vaddr, base, n=4):
        return "\n".join(f"ds_read_b128 v[{DUP+4*t}:{DUP+4*t+3}], v{vaddr} offset:{base+64*t}" for t in range(n))
    def combine():
        for r in range(4): a(f"v_cndmask_b32 v{X+r}, v{AC0+r}, v{AC1+r}, s[18:19]")
        for r in range(4): a(f"v_add_f32_dpp v{X+r}, v{X+r}, v{X+r} row_ror:8 row_mask:0xf bank_mask:0xf")
    a("s_waitcnt lgkmcnt(0)\ns_mov_b64 s[32:33], s[78:79]")
    if bp is not None: a("s_mov_b32 s93, s88")
    if not pre2: a("s_barrier")
    if fakebal:
        a("s_cmp_lg_u32 s9, 0\ns_cselect_b32 s44, s44, s36\ns_cselect_b32 s45, s45, s37\ns_cselect_b32 s52, s52, s40\ns_cselect_b32 s53, s53, s41\ns_cselect_b32 s46, s46, 0x2000000\ns_cselect_b32 s54, s54, 0x2000000")
    if stamps: a(f"v_writelane_b32 v{vStamp}, s96, 0")
    stamp(1)
    st = dict(landed=0, setup=False)
    def setup():
        if st['setup']: return
        st['setup'] = True
        if wsb: a(f"s_add_u32 s56, s56, {wsb}\ns_addc_u32 s57, s57, 0")
        a("s_load_dword s11, s[56:57], 0")
        if sprio: a(f"s_setprio {sprio}")
        if kvc == 8:
            a("s_lshl_b32 s88, s5, 10\ns_mov_b32 s92, 0x8000")
            for k in range(1, 4): a(f"s_add_u32 s{88+k}, s{87+k}, 0x2000\ns_and_b32 s{88+k}, s{88+k}, 0x7c00")
        a("s_mov_b64 s[36:37], s[74:75]\ns_mov_b64 s[40:41], s[76:77]\ns_mov_b64 s[44:45], s[84:85]\ns_mov_b64 s[48:49], s[80:81]")
        a(f"""v_and_b32 v25, 1, v1
v_bfe_u32 v26, v1, 1, 2
v_mov_b32 v27, 0xffff
v_lshlrev_b32 v25, 4, v25
v_lshlrev_b32 v27, v25, v27""")
        for r in range(4):
            a(f"v_cmp_eq_u32 vcc, {r}, v26\nv_cndmask_b32 v{vM+r}, 0, v27, vcc")
        a(f"""v_lshlrev_b32 v25, 4, v20
v_lshl_add_u32 v{vLdsO}, v21, 8, v25
v_lshl_add_u32 v{vLdsX}, v21, 10, v25
s_lshl_b32 s14, s3, 8
v_add_u32 v{vLdsX}, s14, v{vLdsX}
v_lshrrev_b32 v25, 1, v20
v_and_b32 v26, 1, v20
v_lshlrev_b32 v27, 5, v22
v_lshl_add_u32 v27, v26, 4, v27
v_lshl_add_u32 v{vPart}, v25, 8, v27
s_lshl_b32 s14, s3, 9
v_add_u32 v{vPart}, s14, v{vPart}
s_mov_b32 s18, 0xff00ff00
s_mov_b32 s19, 0xff00ff00""")
        if WE:
            a(f"s_getreg_b32 s14, hwreg(HW_REG_XCC_ID, 0, 4)\ns_cmp_ge_u32 s14, {late}\ns_cselect_b64 vcc, -1, 0")
        if tall:
            a(f"""s_lshl_b32 s14, s3, 6
v_add_u32 v{vLdsO}, s14, v{vLdsO}
v_lshlrev_b32 v{vFin}, 4, v1
s_lshl_b32 s14, s3, 11
v_add_u32 v16, s14, v{vFin}
s_and_b32 s14, s3, 1
s_lshl_b32 s14, s14, 10
s_lshr_b32 s15, s3, 1
s_lshl_b32 s15, s15, 9
s_add_u32 s14, s14, s15
v_add_u32 v{vFin}, s14, v{vFin}
v_and_b32 v27, 15, v1
v_lshlrev_b32 v27, 5, v27
v_lshl_add_u32 v{vFP}, v26, 4, v27
s_lshl_b32 s14, s7, 10
s_and_b32 s15, s3, 1
s_lshl_b32 s15, s15, 9
s_add_u32 s14, s14, s15
s_lshr_b32 s15, s3, 1
s_lshl_b32 s15, s15, 12
s_add_u32 s14, s14, s15""")
        else:
            a(f"""v_lshl_add_u32 v{vFP}, v25, 12, v27
s_lshl_b32 s14, s7, 10
s_lshl_b32 s15, s3, 8
s_add_u32 s14, s14, s15""")
        a(f"s_mul_i32 s15, s6, {fps}\ns_add_u32 s14, s14, s15\ns_add_u32 s68, s14, {WS_FP}")
    def process(t, i):
        if sonly:
            if i == 7: stamp({'q': 2, 'k': 3, 'v': 4, '1': 5}[t])
            return
        if t in 'q1':
            if i == 0:
                poll_lds(F_X if t == 'q' else F_Y, 2, 60, (1 if t == 'q' else 2) + st.get('cofs', 0), dupreads(vLdsX, L_X if t == 'q' else L_Y))
                buildA(0, 0); buildA(0, 1)
            mm(info[t][4], i, i == 0, i == 7)
            if i == 7:
                combine()
                a("s_mov_b32 exec_lo, 0x00ff00ff\ns_mov_b32 exec_hi, 0x00ff00ff")
                a(f"ds_write_b128 v{vPart}, v[{X}:{X+3}] offset:{L_QPART if t == 'q' else L_HPART}")
                signal(F_Q if t == 'q' else F_H)
                stamp(2 if t == 'q' else 5)
        elif t == 'k' and qwait >= 2 and i == qwait - 2:
            signal(F_K2)
        elif t in 'kv' and i == 7:
            signal(F_K if t == 'k' else F_V)
            stamp(3 if t == 'k' else 4)
    gates = {}
    if g1 is not None and not sonly: gates[g1] = (F_QG, 4, '', 21)
    if g2 is not None and not sonly: gates[g2] = (F_OG, g2n, 'q1kv', 22)
    if g3 is not None and not sonly: gates[g3] = (F_OP, 4, 'q1kv', 24)
    N = len(seq)
    pend = list(range(N))
    def ready(m, n):
        t, i = seq[m]
        if t in '2o': return False
        if t == 'q' and st['landed'] < qstart: return False
        if t == '1' and n < p1start: return False
        return True
    assert all(endpos['q'] <= n - 8 for n, (t, i) in enumerate(seq) if t == 'o')
    fastcode = []
    def emit_stream(n0, W, pend, gates, fast):
      for n, (t, i) in enumerate(seq):
        if n < n0: continue
        if bp is not None and n == bp and not fast and not sonly:
            a(f"s_memrealtime s[90:91]\ns_waitcnt lgkmcnt(0)\ns_sub_u32 s90, s90, s93\ns_cmp_gt_u32 s90, {bt}\ns_cbranch_scc1 L_fast")
            fastcode.append((list(pend), st['landed']))
        want = n - W[n] + 1
        if n in gates:
            flag, cnt, need, code = gates[n]
            for m in [m for m in pend if seq[m][0] in need and m < n]:
                if m >= st['landed'] and not (seq[m][0] in 'kv' and seq[m][1] < 7):
                    a(f"s_waitcnt vmcnt({n - 1 - m})"); st['landed'] = m + 1
                process(*seq[m]); pend.remove(m)
            if flate and flag == F_OG: a("s_mov_b32 s71, s10")
            poll_lds(flag, cnt, 60, code + st.get('cofs', 0), sleep=gsl)
            if flate and flag == F_OG: a("s_sub_u32 s71, s10, s71")
        if want > st['landed']:
            setup()
            a(f"s_waitcnt vmcnt({n - want})"); st['landed'] = want
        if not sonly and ((gs is not None and n >= gs) or (gq is not None and gq[0] <= n < gq[1])):
            fl = F_OG if (gs is not None and n >= gs) else F_QG
            for m in [m for m in pend if seq[m][0] in 'q1kv' and m < n - wl + 1 and (seq[m][0] in 'kv' or fl == F_OG)]:
                pass
            Lk = newlab("SG")
            a(f"ds_read_b32 v60, v2 offset:{fl}\ns_waitcnt lgkmcnt(0)\nv_readfirstlane_b32 s14, v60\ns_cmp_ge_u32 s14, 4\ns_cbranch_scc1 {Lk}\ns_waitcnt vmcnt({wl - 1})\n{Lk}:")
        if WE and WE[n] < W[n] and n - WE[n] + 1 > st['landed']:
            setup()
            Lk = newlab("WK")
            a(f"s_cbranch_vccnz {Lk}\ns_waitcnt vmcnt({WE[n] - 1})\n{Lk}:")
        if t != 'q': setup()
        issue(t, i)
        if pre2 and n == pre2 - 1: a("s_barrier")
        if n == qpos and not sonly: signal(F_PQ)
        if n == opos and not sonly: signal(F_PO)
        cnt_ = 0
        for m in [m for m in pend if m < st['landed'] and ready(m, n)]:
            if seq[m][0] in 'q1':
                if cnt_ >= maxper: continue
                cnt_ += 1
            process(*seq[m]); pend.remove(m)
      for m in [m for m in pend if seq[m][0] not in '2o'] if (bp is not None and not sonly) else []:
        tt, ii = seq[m]
        if m >= st['landed'] and not (tt in 'kv' and ii < 7):
            a(f"s_waitcnt vmcnt({N - 1 - m})"); st['landed'] = m + 1
        process(tt, ii); pend.remove(m)
    emit_stream(0, W, pend, gates, False)
    if bp is not None and not sonly:
        st['landed'] = min(st['landed'], max(N - bw, endpos['1'], endpos['v']))
        a("L_join:")
    setup()
    stamp(6)
    nmm = 0
    tail = [m for m in pend if seq[m][0] not in '2o'] + [m for m in pend if seq[m][0] in '2o']
    for m in tail:
        t, i = seq[m]
        if sonly:
            if m >= st['landed'] and i == 7:
                a(f"s_waitcnt vmcnt({N - 1 - m})"); st['landed'] = m + 1
            if i == 7: stamp({'q': 2, 'k': 3, 'v': 4, '1': 5, '2': 7, 'o': 8}[t])
            continue
        if t in '2o' and i == 0:
            if nmm == 0:
                nonce(); a(f"v_mov_b32 v{vT}, s12")
            poll_lds(F_HD if t == '2' else F_O, 1 if t == '2' else 4, 60, 3 if t == '2' else 4, dupreads(vLdsO, L_H if t == '2' else L_O, 1 if tall else 4))
            stamp(7 if t == '2' else 8)
            if tall: buildT(0)
            else: buildA(0, 0); buildA(0, 1)
        if m >= st['landed'] and not (t in 'kv' and i < 7):
            a(f"s_waitcnt vmcnt({N - 1 - m})"); st['landed'] = m + 1
        if t in '2o':
            if xt: pass
            elif tall: mmT(info[t][4], i, nmm < 2)
            else: mm(info[t][4], i, nmm == 0, i == 7)
            nmm += 1
        else:
            process(t, i)
    stamp(9)
    if sonly: a("s_branch L_exit")
    if xt >= 2:
        a("s_barrier" if xt == 2 else "s_nop 0")
        tag4(X, X, vT)
        a("s_mov_b32 exec_hi, 0")
    elif tall:
        a(f"ds_write_b128 v16, v[{AC0}:{AC0+3}] offset:{L_FIN}\nds_write_b128 v16, v[{AC1}:{AC1+3}] offset:{L_FIN+1024}")
        if tall == 2:
            a("s_waitcnt lgkmcnt(0)\ns_barrier")
            for w in range(4): a(f"ds_read_b128 v[{20+4*w}:{23+4*w}], v{vFin} offset:{L_FIN+2048*w}")
            a("s_waitcnt lgkmcnt(0)")
        else:
            signal(F_B3)
            poll_lds(F_B3, 4, 60, 23, "\n".join(f"ds_read_b128 v[{20+4*w}:{23+4*w}], v{vFin} offset:{L_FIN+2048*w}" for w in range(4)))
        pk("add", 20, 20, 24); pk("add", 22, 22, 26); pk("add", 28, 28, 32); pk("add", 30, 30, 34)
        pk("add", X, 20, 28); pk("add", X + 2, 22, 30)
        tag4(X, X, vT)
        a("s_mov_b32 exec_hi, 0")
    else:
        combine()
        tag4(X, X, vT)
        a("s_mov_b32 exec_lo, 0x00ff00ff\ns_mov_b32 exec_hi, 0x00ff00ff")
    a(f"buffer_store_dwordx4 v[{X}:{X+3}], v{vFP}, s[56:59], s68 offen sc1\ns_mov_b64 exec, -1")
    stamp(10)
    if flate:
        a(f"s_cmp_lt_u32 s71, {flate}\ns_cbranch_scc1 L_noack\ns_waitcnt vmcnt(0)\n" + (f"s_sleep {fearly}\n" if fearly else "") + "L_noack:")
    elif fack: a("s_waitcnt vmcnt(0)")
    signal(F_FP)
    a("s_branch L_exit")

    if align: a(".p2align 12")
    a("L_C:")
    if sonly:
        if stamps: a(f"v_writelane_b32 v{vStamp}, s96, 0")
        a("s_branch L_exit")
    vT, vTb, vHi = 5, 6, 15
    vXf, vB2f, vB1 = 10, 11, 12
    if wsb: a(f"s_add_u32 s56, s56, {wsb}\ns_addc_u32 s57, s57, 0")
    a(f"""s_load_dword s11, s[56:57], 0
v_mov_b32 v{vHi}, 0xffff0000
s_cmp_eq_u32 s3, 4
s_cbranch_scc1 L_H""")
    if stamps: a(f"v_writelane_b32 v{vStamp}, s96, 0")
    F = 32
    def unpack(src, dst, n):
        for k in range(n):
            a(f"v_lshlrev_b32 v{dst+2*k}, 16, v{src+k}\nv_and_b32 v{dst+2*k+1}, v{vHi}, v{src+k}")
    def stats(F):
        pk("add", 48, F, F + 2); pk("add", 50, F + 4, F + 6); pk("add", 52, F + 8, F + 10); pk("add", 54, F + 12, F + 14)
        pk("add", 48, 48, 50); pk("add", 52, 52, 54); pk("add", 48, 48, 52)
        a("v_add_f32 v48, v48, v49")
        red64(48, 14)
        a("v_mov_b32 v60, 0x3a800000\nv_mul_f32 v48, s14, v60")
        for k in range(0, 16, 4):
            pk("add", 52, F + k, 48, mods="op_sel_hi:[1,0] neg_lo:[0,1] neg_hi:[0,1]")
            pk("add", 54, F + k + 2, 48, mods="op_sel_hi:[1,0] neg_lo:[0,1] neg_hi:[0,1]")
            if k == 0: pk("mul", 50, 52, 52); pk("mul", 62, 54, 54)
            else: pk("fma", 50, 52, 52, 50); pk("fma", 62, 54, 54, 62)
        pk("add", 50, 50, 62)
        a("v_add_f32 v49, v50, v51")
        red64(49, 14)
        a(f"""v_mul_f32 v49, s14, v60
v_cvt_pk_bf16_f32 v48, v48, v49
v_and_b32 v49, v{vHi}, v48
v_lshlrev_b32 v48, 16, v48
v_add_f32 v49, 0x3727c5ac, v49
v_cvt_pk_bf16_f32 v49, v49, v49
v_and_b32 v49, v{vHi}, v49
v_sqrt_f32 v49, v49
v_cvt_pk_bf16_f32 v49, v49, v49
v_and_b32 v49, v{vHi}, v49
v_rcp_f32 v50, v49""")
    def normalize(F, n):
        for k in range(0, n, 2):
            pk("add", F + k, F + k, 48, mods="op_sel_hi:[1,0] neg_lo:[0,1] neg_hi:[0,1]")
        for k in range(0, n, 2):
            a(f"v_cvt_pk_bf16_f32 v52, v{F+k}, v{F+k+1}")
            a(f"v_lshlrev_b32 v{F+k}, 16, v52\nv_and_b32 v{F+k+1}, v{vHi}, v52")
            pk("mul", 52, F + k, 50, mods="op_sel_hi:[1,0]")
            pk("fma", F + k, 52, 48, F + k, mods="op_sel:[0,1,0] op_sel_hi:[1,1,1] neg_lo:[1,0,0] neg_hi:[1,0,0]")
            pk("fma", F + k, F + k, 50, 52, mods="op_sel_hi:[1,0,1]")
    def roundbf(F, n):
        for k in range(0, n, 2):
            a(f"v_cvt_pk_bf16_f32 v52, v{F+k}, v{F+k+1}")
            a(f"v_lshlrev_b32 v{F+k}, 16, v52\nv_and_b32 v{F+k+1}, v{vHi}, v52")
    def tagconsts():
        nonce()
        a(f"""v_mov_b32 v{vT}, s12
v_and_b32 v{vTb}, 0xff, v{vT}
v_bfe_u32 v{vTb+1}, v{vT}, 8, 8
v_bfe_u32 v{vTb+2}, v{vT}, 16, 8
v_lshrrev_b32 v{vTb+3}, 24, v{vT}""")
    a("s_waitcnt vmcnt(1)")
    stamp(1)
    unpack(20, F, 8)
    stats(F)
    a("s_waitcnt vmcnt(0)")
    unpack(28, 56, 2)
    normalize(56, 4)
    a(f"s_lshl_b32 s14, s16, 10\nv_add_u32 v16, s14, v{vL16}")
    a("s_cmp_ge_u32 s3, 2\ns_cbranch_scc1 L_ypath")
    for k in range(4): a(f"v_cvt_pk_bf16_f32 v{60+k}, v{56+k}, v{56+k}")
    a(f"ds_write_b128 v16, v[60:63] offset:{L_X}")
    signal(F_X)
    stamp(2)
    if touch and not nt:
        a("s_cmp_eq_u32 s3, 0\ns_cbranch_scc1 L_t0")
        touches([9, 13] + ([22] if g2 is not None else []) + [4] + (['f'] if bp is not None else []))
        a("s_branch L_lndone\nL_t0:")
        touches([19, 8, 11, 2] + ([32] if (bp is not None and bp < 24 + W[28]) else []))
    a("L_lndone:")
    a("s_waitcnt lgkmcnt(0)")
    tagconsts()
    def publish_part(lbase, flag, code, vaddr, extra, B=96):
        poll_lds(flag, 4, B + 16, code, "\n".join(f"ds_read_b128 v[{B+4*w}:{B+3+4*w}], v{vL16} offset:{lbase+512*w}" for w in range(4)))
        pk("add", B, B, B + 4); pk("add", B + 2, B + 2, B + 6); pk("add", B + 8, B + 8, B + 12); pk("add", B + 10, B + 10, B + 14)
        pk("add", B, B, B + 8); pk("add", B + 2, B + 2, B + 10)
        tag4(B, B, vT)
        a("s_mov_b32 exec_hi, 0")
        a(f"buffer_store_dwordx4 v[{B}:{B+3}], v{vaddr}, s[56:59], s30 offen sc1")
        a(extra)
        a("s_mov_b64 exec, -1")
    def poll_hints(nq, code, thr=None, hw=16):
        L = newlab("HL"); D = newlab("HD"); R = newlab("HR")
        a(f"{L}:")
        if nq == 0: a("s_load_dwordx4 s[64:67], s[60:61], 0 glc")
        for q in range(nq * 16 // hw): a(f"s_load_dwordx{hw} s[{64+hw*q}:{63+hw*q+hw}], s[60:61], {64*q} glc")
        if thr is not None and thr < nq * 8:
            a("s_mov_b32 s14, 0\ns_waitcnt lgkmcnt(0)")
            for j in range(nq * 8): a(f"s_cmp_eq_u64 s[{64+2*j}:{65+2*j}], s[12:13]\ns_addc_u32 s14, s14, 0")
            a(f"s_cmp_ge_u32 s14, {thr}\ns_cbranch_scc1 {D}")
        else:
            a("s_waitcnt lgkmcnt(0)")
            for j in range(max(nq * 8, 2)):
                a(f"s_cmp_eq_u64 s[{64+2*j}:{65+2*j}], s[12:13]\ns_cbranch_scc0 {R}")
            a(f"s_branch {D}\n{R}:")
        if hsleep: a(f"s_sleep {hsleep}")
        spin(L, code)
        a(f"{D}:")
    def untag(G, n, vacc):
        for j in range(4 * n): a(f"v_xor_b32 v{G+j}, v{G+j}, v{vTb+(j&3)}")
        a(f"v_or3_b32 v{vacc}, v{G}, v{G+1}, v{G+2}")
        j = 3
        while j < 4 * n:
            if j + 1 < 4 * n: a(f"v_or3_b32 v{vacc}, v{vacc}, v{G+j}, v{G+j+1}"); j += 2
            else: a(f"v_or_b32 v{vacc}, v{vacc}, v{G+j}"); j += 1
        a(f"v_lshlrev_b32 v{vacc}, 24, v{vacc}")
    def retry_if(vacc, L, code):
        D = newlab("RD")
        a(f"v_cmp_ne_u32 vcc, 0, v{vacc}\ns_cbranch_vccz {D}")
        spin(L, code)
        a(f"{D}:")
    G = 16
    QRS = QR.bit_length() - 1; ORS = OR.bit_length() - 1
    QB = 6 + (16 // qhw).bit_length() - 1; OB = 7 + (16 // ohw).bit_length() - 1
    assert 16 * QR << QB <= WS_OH - WS_QH and 32 * OR << OB <= WS_LS - WS_OH
    vKa, vQw, vQr, vVa0, vVa1, vMl, vPw, vMw, vOd, vLs, vOh, vLg, vOw = 52, 53, 54, 55, 56, 57, 58, 59, 60, 61, 62, 63, 14
    a(f"""v_and_b32 v16, 15, v1
v_lshrrev_b32 v17, 4, v1
v_lshrrev_b32 v18, 2, v16
v_and_b32 v19, 3, v1
v_mul_u32_u24 v{vKa}, {KSTR}, v18
v_lshl_add_u32 v{vKa}, v19, 8, v{vKa}
v_xor_b32 v20, v17, v19
v_lshl_add_u32 v{vKa}, v20, 4, v{vKa}
s_mul_i32 s14, s3, {8*KSTR}
v_add_u32 v{vKa}, s14, v{vKa}
v_lshrrev_b32 v20, 5, v1
v_mul_u32_u24 v20, 288, v20
v_and_b32 v21, 31, v1
v_lshl_add_u32 v{vQw}, v21, 3, v20
s_mul_i32 s14, s3, 576
v_add_u32 v{vQw}, s14, v{vQw}
v_and_b32 v20, 7, v1
v_mul_u32_u24 v20, 288, v20
v_lshl_add_u32 v{vQr}, v17, 4, v20
v_mul_u32_u24 v20, {VSTR}, v17
v_lshl_add_u32 v20, v18, 8, v20
v_and_b32 v21, 1, v1
v_lshl_add_u32 v20, v21, 3, v20
v_add_u32 v20, {L_V}, v20
v_bfe_u32 v21, v1, 1, 1
s_lshl_b32 s14, s3, 2
v_add_u32 v21, s14, v21
v_lshlrev_b32 v22, 1, v18
v_xor_b32 v21, v21, v22
v_lshl_add_u32 v{vVa0}, v21, 4, v20
v_xor_b32 v21, 2, v21
v_lshl_add_u32 v{vVa1}, v21, 4, v20
v_lshlrev_b32 v{vMl}, 3, v16
v_and_b32 v20, 0x37, v1
v_lshlrev_b32 v13, 4, v20
v_and_b32 v21, 8, v1
{f"v_add_u32 v{vPw}, v13, v21" if half else f"v_mov_b32 v{vPw}, v{vL16}"}
{"" if half else f"v_mov_b32 v13, v{vL16}"}
s_lshl_b32 s14, s3, 10
v_add_u32 v{vPw}, s14, v{vPw}
s_lshl_b32 s14, s3, 7
v_add_u32 v{vMw}, s14, v{vMl}
v_and_b32 v20, 7, v1
v_bfe_u32 v21, v1, 3, 1
v_lshlrev_b32 v{vOd}, 14, v20
v_lshl_add_u32 v{vOd}, v21, 6, v{vOd}
v_lshl_add_u32 v{vOd}, v17, 4, v{vOd}
v_lshlrev_b32 v{vLs}, 10, v20
v_lshlrev_b32 v{vOh}, {OB}, v1
v_lshrrev_b32 v{vLg}, 3, v1
v_lshlrev_b32 v{vLg}, 3, v{vLg}
{f"v_lshl_add_u32 v{vOw}, v20, 2, v17" if not tpat else f"v_bfe_u32 v{vOw}, v1, 2, 1"}
{"" if not tpat else f"v_lshl_add_u32 v{vOw}, v{vOw}, 2, v17"}
{"" if not tpat else f"v_lshl_add_u32 v{vOw}, v{vOw}, 2, v19"}
v_lshlrev_b32 v{vOw}, 2, v{vOw}
v_add_u32 v{vOw}, s14, v{vOw}
s_lshl_b32 s14, s4, 5
s_add_u32 s14, s14, s3
s_lshl_b32 s28, s14, 12
s_lshl_b32 s17, s5, 7
s_add_u32 s28, s28, s17
s_add_u32 s28, s28, {WS_OP}
s_lshl_b32 s29, s14, 8
s_lshl_b32 s17, s5, 3
s_add_u32 s29, s29, s17
s_add_u32 s29, s29, {WS_LS}
s_lshl_b32 s31, s4, 2
s_add_u32 s31, s31, s3
s_lshl_b32 s31, s31, {OB+ORS}
s_lshr_b32 s17, s5, {ohw.bit_length()-1}
s_lshl_b32 s17, s17, 6
{"s_add_u32 s31, s31, s17" if not ocnt else ""}
s_and_b32 s17, s5, {ohw-1}
s_lshl_b32 s17, s17, 2
{"s_add_u32 s31, s31, s17" if not ocnt else ""}
s_add_u32 s31, s31, {WS_OH}
s_mov_b32 s18, 0xff00ff00
s_mov_b32 s19, 0xff00ff00
v_mov_b32 v48, 0x3db504f3
v_mov_b32 v50, 0x3fb8aa3b""")
    a("s_call_b64 s[94:95], L_oaddr")
    poll_lds(F_PQ if qpos else F_K2 if qwait >= 2 else F_K if qwait else F_Q, 4, 32, 19, sleep=ksl)
    Lq = newlab("GQ")
    if qdir == 2:
        a(f"s_branch {Lq}\nL_qslow:")
    if qdir != 1: poll_hints(1, 6, hw=qhw)
    stamp(4)
    a(f"{Lq}:")
    for i in range(4): a(f"buffer_load_dwordx4 v[{G+4*i}:{G+4*i+3}], v{vL16}, s[56:59], s62 offen offset:{1024*i} sc1")
    if g1 is not None or gq is not None: signal(F_QG)
    KF, VF, QF = 64, 96, 128
    poll_lds(F_K, 4, 32, 7, "\n".join(f"ds_read_b128 v[{KF+16*t+4*s}:{KF+16*t+4*s+3}], v{vKa} offset:{L_K+4*KSTR*t+64*s}" for t in range(2) for s in range(4)))
    vreads = []
    for w in range(4):
        for t, va in ((0, vVa0), (1, vVa1)):
            for T in range(2):
                r = VF + 8 * w + 4 * t + 2 * T
                vreads.append(f"ds_read_b64_tr_b16 v[{r}:{r+1}], v{va} offset:{(8*w+4*T)*VSTR}")
    a("s_waitcnt vmcnt(0)")
    if vpre: a(f"ds_read_b32 v33, v2 offset:{F_V}")
    for j in range(16): a(f"v_xor_b32 v{G+j}, v{G+j}, v{vTb+(j&3)}")
    pk("add", 36, G, G + 4); pk("add", 38, G + 2, G + 6); pk("add", 40, G + 8, G + 12); pk("add", 42, G + 10, G + 14)
    pk("add", 36, 36, 40); pk("add", 38, 38, 42)
    a(f"v_cvt_pk_bf16_f32 v36, v36, v37\nv_cvt_pk_bf16_f32 v37, v38, v39")
    a(f"ds_write_b64 v{vQw}, v[36:37] offset:{L_QBUF}")
    a(f"v_or3_b32 v32, v{G}, v{G+1}, v{G+2}\nv_or3_b32 v34, v{G+3}, v{G+4}, v{G+5}")
    for j in range(6, 14, 4): a(f"v_or3_b32 v32, v32, v{G+j}, v{G+j+1}\nv_or3_b32 v34, v34, v{G+j+2}, v{G+j+3}")
    a(f"v_or3_b32 v32, v32, v{G+14}, v{G+15}\nv_or_b32 v32, v32, v34\nv_lshlrev_b32 v32, 24, v32")
    retry_if(32, 'L_qslow' if qdir == 2 else Lq, 8)
    signal(F_B1)
    stamp(5)
    poll_lds(F_B1, 4, 32, 9, "\n".join(f"ds_read_b128 v[{QF+4*s}:{QF+4*s+3}], v{vQr} offset:{L_QBUF+64*s}" for s in range(4)))
    S = 40
    for s in range(4):
        for t in range(2):
            c = "0" if s == 0 else f"v[{S+4*t}:{S+4*t+3}]"
            a(f"v_mfma_f32_16x16x32_bf16 v[{S+4*t}:{S+4*t+3}], v[{KF+16*t+4*s}:{KF+16*t+4*s+3}], v[{QF+4*s}:{QF+4*s+3}], {c}")
    if vpre:
        a("v_readfirstlane_b32 s35, v33\ns_cmp_lt_u32 s35, 4\ns_cbranch_scc1 L_vlater")
        a("\n".join(vreads))
        a("L_vlater:\ns_nop 7")
    def xlane(v, tmp, op, fill=((), ())):
        for n_, sw in enumerate(("v_permlane16_swap_b32", "v_permlane32_swap_b32")):
            a(f"v_mov_b32 v{tmp}, v{v}")
            for f in fill[n_]: f()
            a(f"{sw} v{v}, v{tmp}\n{op} v{v}, v{v}, v{tmp}")
    if half:
        for k in range(4): a(f"v_cndmask_b32 v{S+k}, v{S+k}, v{S+4+k}, s[18:19]")
        nv_ = 4
    else: nv_ = 8
    for k in range(0, nv_, 2): a(f"v_cvt_pk_bf16_f32 v{32+k//2}, v{S+k}, v{S+k+1}")
    for k in range(0, nv_, 2): a(f"v_lshlrev_b32 v{S+k}, 16, v{32+k//2}\nv_and_b32 v{S+k+1}, v{vHi}, v{32+k//2}")
    for k in range(0, nv_, 2): pk("mul", S + k, S + k, 48, mods="op_sel_hi:[1,0]")
    for k in range(0, nv_, 2): a(f"v_cvt_pk_bf16_f32 v{32+k//2}, v{S+k}, v{S+k+1}")
    for k in range(0, nv_, 2): a(f"v_lshlrev_b32 v{S+k}, 16, v{32+k//2}\nv_and_b32 v{S+k+1}, v{vHi}, v{32+k//2}")
    l2 = lambda k: (lambda: pk("mul", S + k, S + k, 50, mods="op_sel_hi:[1,0]"))
    if half:
        a(f"v_max3_f32 v32, v{S}, v{S+1}, v{S+2}\nv_max_f32 v32, v32, v{S+3}")
        l2(0)(); l2(2)()
        a("v_max_f32_dpp v32, v32, v32 row_ror:8 row_mask:0xf bank_mask:0xf")
        xlane(32, 33, "v_max_f32")
    else:
        a(f"v_max3_f32 v32, v{S}, v{S+1}, v{S+2}\nv_max3_f32 v33, v{S+3}, v{S+4}, v{S+5}\nv_max3_f32 v32, v32, v{S+6}, v{S+7}\nv_max_f32 v32, v32, v33")
        xlane(32, 33, "v_max_f32", ((l2(0), l2(2)), (l2(4), l2(6))))
    a("v_mul_f32 v32, v50, v32")
    for k in range(0, nv_, 2): pk("add", S + k, S + k, 32, mods="op_sel_hi:[1,0] neg_lo:[0,1] neg_hi:[0,1]")
    for k in range(nv_): a(f"v_exp_f32 v{S+k}, v{S+k}")
    pk("add", 34, S, S + 2)
    if half:
        a(f"v_cvt_pk_bf16_f32 v36, v{S}, v{S+1}\nv_add_f32 v33, v34, v35\nv_cvt_pk_bf16_f32 v37, v{S+2}, v{S+3}")
        a(f"ds_write_b64 v{vPw}, v[36:37] offset:{L_P}")
        a("v_add_f32_dpp v33, v33, v33 row_ror:8 row_mask:0xf bank_mask:0xf")
    else:
        for k in range(0, 4, 2): a(f"v_cvt_pk_bf16_f32 v{36+k//2}, v{S+k}, v{S+k+1}")
        pk("add", 34, 34, S + 4)
        for k in range(4, 8, 2): a(f"v_cvt_pk_bf16_f32 v{36+k//2}, v{S+k}, v{S+k+1}")
        pk("add", 34, 34, S + 6)
        a(f"ds_write_b128 v{vPw}, v[36:39] offset:{L_P}")
        a(f"v_add_f32 v33, v34, v35")
    xlane(33, 35, "v_add_f32")
    a(f"ds_write_b64 v{vMw}, v[32:33] offset:{L_ML}")
    signal(F_B2)
    stamp(6)
    if vpre: a("s_cmp_ge_u32 s35, 4\ns_cbranch_scc1 L_vdone")
    poll_lds(F_V, 4, 32, 10)
    a("\n".join(vreads))
    if vpre: a("L_vdone:")
    PW = 16; ML = 32; AC = 128
    poll_lds(F_B2, 4, 40, 11, "\n".join([f"ds_read_b128 v[{PW+4*w}:{PW+4*w+3}], v13 offset:{L_P+1024*w}" for w in range(4)] +
                                       [f"ds_read_b64 v[{ML+2*w}:{ML+2*w+1}], v{vMl} offset:{L_ML+128*w}" for w in range(4)]))
    stamp(7)
    fill = [f"v_max3_f32 v41, v{ML}, v{ML+2}, v{ML+4}\nv_max_f32 v41, v41, v{ML+6}",
            f"v_sub_f32 v40, v{ML}, v41\nv_sub_f32 v42, v{ML+2}, v41",
            f"v_sub_f32 v44, v{ML+4}, v41\nv_sub_f32 v46, v{ML+6}, v41",
            "v_exp_f32 v40, v40", "v_exp_f32 v42, v42", "v_exp_f32 v44, v44", "v_exp_f32 v46, v46",
            f"v_mul_f32 v43, v40, v{ML+1}\nv_fmac_f32 v43, v42, v{ML+3}"]
    for w in range(4):
        for t in range(2):
            r = AC + 8 * w + 4 * t
            a(f"v_mfma_f32_16x16x32_bf16 v[{r}:{r+3}], v[{VF+8*w+4*t}:{VF+8*w+4*t+3}], v[{PW+4*w}:{PW+4*w+3}], 0")
            a(fill[2 * w + t])
    a(f"v_fmac_f32 v43, v44, v{ML+5}\nv_fmac_f32 v43, v46, v{ML+7}")
    for k in range(4): a(f"v_cndmask_b32 v{AC+k}, v{AC+k}, v{AC+4+k}, s[18:19]")
    a("v_rcp_f32 v48, v43\nv_log_f32 v43, v43")
    for w in range(1, 4):
        for k in range(4): a(f"v_cndmask_b32 v{AC+8*w+k}, v{AC+8*w+k}, v{AC+8*w+4+k}, s[18:19]")
    for k in (0, 2): pk("mul", 16 + k, AC + k, 40, mods="op_sel_hi:[1,0]")
    for w in range(1, 4):
        for k in (0, 2): pk("fma", 16 + k, AC + 8 * w + k, 40 + 2 * w, 16 + k, mods="op_sel_hi:[1,0,1]")
    for k in (0, 2): pk("mul", 16 + k, 16 + k, 48, mods="op_sel_hi:[1,0]")
    tag4(16, 16, vT)
    a(f"""buffer_store_dwordx4 v[16:19], v{vOd}, s[56:59], s28 offen sc1
v_add_f32 v46, v41, v43
v_mov_b32 v47, v{vT}
s_mov_b64 exec, 0xff
{HST2} v[46:47], v{vLs}, s[56:59], s29 offen sc1
s_mov_b32 exec_lo, {hex((1<<OR)-1)}
{f"buffer_atomic_add v3, v{vOh}, s[56:59], s31 offen sc1" if ocnt else f"{HST} v{vT}, v{vOh}, s[56:59], s31 offen sc1"}
s_mov_b64 exec, -1
s_mov_b32 s60, s36
s_mov_b32 s61, s37""")
    if g3 is not None: signal(F_OP)
    stamp(8)
    if oack: a("s_waitcnt vmcnt(0)")
    if opos: poll_lds(F_PO, 4, 32, 25, sleep=2)
    if ocnt:
        Lc = newlab("OC"); Dc = newlab("OD")
        a(f"{Lc}:\ns_load_dword s64, s[60:61], 0 glc\ns_waitcnt lgkmcnt(0)\ns_cmp_eq_u32 s64, 32\ns_cbranch_scc1 {Dc}")
        spin(Lc, 13)
        a(f"{Dc}:")
    elif othr: poll_hints(2, 13, othr, hw=ohw)
    elif touch: a("s_branch L_no13\nT_13:\ns_setpc_b64 s[94:95]\nL_no13:")
    stamp(9)
    Lo = newlab("GO")
    a("s_mov_b64 vcc, -1")
    a(f"{Lo}:")
    for i in range(4): a(f"buffer_load_dwordx2 v[{32+2*i}:{33+2*i}], v{vLg}, s[56:59], s39 offen offset:{64*i} sc1")
    a("s_mov_b64 exec, vcc")
    for i in range(4): a(f"buffer_load_dwordx4 v[{G+4*i}:{G+4*i+3}], v{vL16}, s[56:59], s38 offen offset:{1024*i} sc1")
    if (g2 is not None or gs is not None) and not ogs: signal(F_OG)
    else: a("s_mov_b64 exec, -1")
    a("s_waitcnt vmcnt(4)")
    a("v_max3_f32 v40, v32, v34, v36\nv_max_f32 v40, v40, v38")
    a(f"v_xor_b32 v41, v33, v{vT}\nv_bitop3_b32 v41, v41, v35, v{vT} bitop3:0xf6")
    a("v_max_f32_dpp v40, v40, v40 row_ror:8 row_mask:0xf bank_mask:0xf")
    xlane(40, 42, "v_max_f32", ((lambda: a(f"v_bitop3_b32 v41, v41, v37, v{vT} bitop3:0xf6\nv_bitop3_b32 v41, v41, v39, v{vT} bitop3:0xf6"),), ()))
    for i in range(4): a(f"v_sub_f32 v{32+2*i}, v{32+2*i}, v40")
    for i in range(4): a(f"v_exp_f32 v{32+2*i}, v{32+2*i}")
    a("s_waitcnt vmcnt(0)")
    xs = [f"v_xor_b32 v{G+j}, v{G+j}, v{vTb+(j&3)}" for j in range(16)]
    a("v_add_f32 v43, v32, v34\nv_add_f32 v42, v36, v38\nv_add_f32 v43, v43, v42")
    a("\n".join(xs[0:2])); a("v_add_f32_dpp v43, v43, v43 row_ror:8 row_mask:0xf bank_mask:0xf")
    xlane(43, 42, "v_add_f32", ((lambda: a("\n".join(xs[2:6])),), (lambda: a("\n".join(xs[6:10])),)))
    a("v_rcp_f32 v43, v43"); a("\n".join(xs[10:16]))
    for k in (0, 2): pk("mul", 44 + k, G + k, 32, mods="op_sel_hi:[1,0]")
    for i in range(1, 4):
        for k in (0, 2): pk("fma", 44 + k, G + 4 * i + k, 32 + 2 * i, 44 + k, mods="op_sel_hi:[1,0,1]")
    ors = [f"v_or3_b32 v42, v{G}, v{G+1}, v{G+2}"] + [f"v_or3_b32 v42, v42, v{G+j}, v{G+j+1}" for j in range(3, 15, 2)] + [f"v_or_b32 v42, v42, v{G+15}", "v_lshl_or_b32 v42, v42, 24, v41"]
    def rscatter(v, fill=((), (), ())):
        for f in fill[0]: a(f)
        a(f"v_permlane32_swap_b32 v{v}, v{v+2}\nv_permlane32_swap_b32 v{v+1}, v{v+3}")
        a(f"v_add_f32 v{v}, v{v}, v{v+2}\nv_add_f32 v{v+1}, v{v+1}, v{v+3}")
        for f in fill[1]: a(f)
        a(f"v_permlane16_swap_b32 v{v}, v{v+1}\nv_add_f32 v{v}, v{v}, v{v+1}")
        for f in fill[2]: a(f)
    rscatter(44, (ors[0:2], ors[2:4], ors[4:6]))
    a("v_add_f32_dpp v44, v44, v44 row_ror:8 row_mask:0xf bank_mask:0xf")
    a("\n".join(ors[6:]))
    a("v_mul_f32 v44, v44, v43\nv_cvt_pk_bf16_f32 v44, v44, v44")
    a("v_cmp_ne_u32 vcc, 0, v42\ns_cbranch_vccnz L_oretry")
    a(f"ds_write_b32 v{vOw}, v44 offset:{L_O}")
    signal(F_O)
    if g2 is not None and ogs: signal(F_OG)
    stamp(11)
    a("s_branch L_exit")
    if align >= 2: a(".p2align 12")
    if touch: a("T_y:\ns_setpc_b64 s[94:95]")
    a("L_ypath:")
    roundbf(56, 4)
    normalize(F, 16)
    roundbf(F, 16)
    stats(F)
    normalize(56, 4)
    for k in range(4): a(f"v_cvt_pk_bf16_f32 v{60+k}, v{56+k}, v{56+k}")
    a(f"ds_write_b128 v16, v[60:63] offset:{L_Y}")
    signal(F_Y)
    stamp(3)
    a("s_branch L_lndone")

    a("L_oretry:")
    a("\n".join(xs))
    spin(Lo, 14)
    a("L_oaddr:")
    a(f"""s_and_b32 s14, s4, 3
s_lshl_b32 s14, s14, 2
s_add_u32 s14, s14, s3
s_lshl_b32 s14, s14, {QB+QRS}
s_lshr_b32 s15, s4, 2
s_lshl_b32 s15, s15, 5
s_add_u32 s15, s15, s5
s_lshr_b32 s15, s15, {6-QRS}
s_lshl_b32 s15, s15, {QB}
s_add_u32 s14, s14, s15
s_add_u32 s14, s14, {WS_QH}
s_add_u32 s60, s56, s14
s_addc_u32 s61, s57, 0
s_and_b32 s14, s4, 3
s_lshl_b32 s14, s14, 1
s_lshr_b32 s15, s4, 2
s_add_u32 s14, s14, s15
s_lshl_b32 s14, s14, 14
s_lshl_b32 s15, s3, 12
s_add_u32 s14, s14, s15
s_add_u32 s62, s14, {WS_QP}""")
    a(f"""s_lshr_b32 s14, s3, 1
s_and_b32 s15, s6, 1
s_lshl_b32 s15, s15, 1
s_and_b32 s16, s3, 1
s_add_u32 s15, s15, s16
s_lshl_b32 s16, s14, 2
s_lshr_b32 s17, s6, 4
s_add_u32 s16, s16, s17
s_lshl_b32 s16, s16, 2
s_add_u32 s16, s16, s15
s_lshl_b32 s16, s16, {ORS}
s_bfe_u32 s17, s6, 0x30001
s_lshl_b32 s17, s17, 2
s_add_u32 s17, s17, s7
s_lshr_b32 s17, s17, {5-ORS}
s_add_u32 s16, s16, s17
s_lshl_b32 s16, s16, {OB}
s_add_u32 s16, s16, {WS_OH}
s_add_u32 s36, s56, s16
s_addc_u32 s37, s57, 0
s_lshl_b32 s16, s14, 5
s_lshr_b32 s17, s6, 1
s_add_u32 s16, s16, s17
s_lshl_b32 s16, s16, 2
s_add_u32 s16, s16, s15
s_lshl_b32 s38, s16, 12
s_add_u32 s38, s38, {WS_OP}
s_lshl_b32 s39, s16, 8
s_add_u32 s39, s39, {WS_LS}""")
    a("s_setpc_b64 s[94:95]")
    a("L_H:")
    if touch and not nt: touches(['y'])
    a("""s_mov_b64 s[36:37], s[86:87]
s_load_dwordx2 s[40:41], s[0:1], 72
s_load_dwordx2 s[44:45], s[0:1], 80""")
    if stamps: a(f"v_writelane_b32 v{vStamp}, s96, 0")
    a(f"""s_mov_b32 s38, 7168
s_mov_b32 s39, 0x20000
s_mov_b32 s42, 2048
s_mov_b32 s43, 0x20000
s_mov_b32 s46, 4096
s_mov_b32 s47, 0x20000
v_and_b32 v16, 1, v1
v_lshrrev_b32 v17, 4, v1
v_lshl_add_u32 v16, v16, 2, v17
v_lshlrev_b32 v14, 1, v16
s_lshl_b32 s34, s4, 5
s_add_u32 s34, s34, s5
s_lshl_b32 s33, s34, 4
s_and_b32 s15, s33, 2047
v_and_b32 v16, 15, v1
v_lshlrev_b32 v16, 3, v16
s_lshl_b32 s17, s8, 7
s_waitcnt lgkmcnt(0)
buffer_load_ushort v{vXf}, v14, s[24:27], s33 offen {xfl}
buffer_load_ushort v{vB2f}, v14, s[40:43], s15 offen {xfl}
buffer_load_dwordx2 v[{vB1}:{vB1+1}], v16, s[36:39], s17 offen {xfl}""")
    if probe is not None:
        a(f"""s_cmp_lg_u32 s2, 5
s_cbranch_scc1 L_noprobe
s_load_dword s64, s[56:57], {probe + 0x2000} glc
s_waitcnt lgkmcnt(0)
s_memrealtime s[64:65]
s_waitcnt lgkmcnt(0)
s_load_dword s66, s[56:57], {probe} glc
s_load_dword s67, s[56:57], {probe + 0x380} glc
s_waitcnt lgkmcnt(0)
s_memrealtime s[66:67]
s_waitcnt lgkmcnt(0)
s_sub_u32 s64, s66, s64
s_lshl_b32 s64, s64, 4
s_add_u32 s96, s96, s64
L_noprobe:""")
    if ptouch:
        a(f"""v_and_b32 v90, 7, v1
v_lshrrev_b32 v91, 3, v1
v_lshlrev_b32 v92, 14, v90
v_lshl_add_u32 v92, v91, 12, v92
s_lshl_b32 s14, s4, 17
s_lshl_b32 s15, s5, 7
s_add_u32 s14, s14, s15
s_add_u32 s14, s14, {WS_OP}
v_add_u32 v92, s14, v92
v_and_b32 v91, 1, v91
v_lshlrev_b32 v93, 7, v90
v_lshl_add_u32 v93, v91, 12, v93
s_mul_i32 s14, s6, {fps}
s_lshl_b32 s15, s7, 10
s_add_u32 s14, s14, s15
s_add_u32 s14, s14, {WS_FP}
v_add_u32 v93, s14, v93
v_cmp_lt_u32 vcc, 31, v1
v_cndmask_b32 v92, v92, v93, vcc
v_and_b32 v93, 1, v1
v_lshlrev_b32 v93, 7, v93
v_bfe_u32 v91, v1, 1, 1
v_lshl_add_u32 v93, v91, 14, v93
s_lshr_b32 s14, s6, 4
s_lshl_b32 s14, s14, 15
s_bfe_u32 s15, s6, 0x20002
s_lshl_b32 s15, s15, 12
s_add_u32 s14, s14, s15
s_lshl_b32 s15, s7, 10
s_add_u32 s14, s14, s15
s_and_b32 s15, s6, 3
s_lshl_b32 s15, s15, 8
s_add_u32 s14, s14, s15
s_add_u32 s14, s14, {WS_QP}
v_add_u32 v93, s14, v93
v_cmp_lt_u32 vcc, 47, v1
v_cndmask_b32 v92, v92, v93, vcc
v_and_b32 v93, 3, v1
v_lshlrev_b32 v93, 7, v93
s_lshl_b32 s14, s8, 11
s_lshl_b32 s15, s7, 9
s_add_u32 s14, s14, s15
s_add_u32 s14, s14, {WS_HP}
v_add_u32 v93, s14, v93
v_cmp_lt_u32 vcc, 51, v1
v_cndmask_b32 v92, v92, v93, vcc
v_and_b32 v93, 3, v1
v_lshlrev_b32 v93, 7, v93
s_mul_i32 s14, s2, {(WS_QP - WS_HH) // 256}
s_and_b32 s14, s14, 0xffffff80
s_add_u32 s14, s14, {WS_HH}
v_subrev_u32 v91, 56, v1
v_lshlrev_b32 v91, 7, v91
v_add_u32 v93, s14, v91
v_cmp_lt_u32 vcc, 55, v1
v_cndmask_b32 v92, v92, v93, vcc
buffer_load_dword v94, v92, s[56:59], 0 offen {ptf}
buffer_load_dword v95, v92, s[56:59], 0 offen offset:64 {ptf}""")
    tagconsts()
    if ocnt:
        a(f"""s_and_b32 s14, s6, 15
s_lshl_b32 s14, s14, 2
s_add_u32 s14, s14, s7
s_cmp_ge_u32 s14, {8*OR}
s_cbranch_scc1 L_noclr
s_lshr_b32 s15, s14, {2+ORS}
s_lshl_b32 s15, s15, 2
s_lshr_b32 s17, s6, 4
s_add_u32 s15, s15, s17
s_lshl_b32 s15, s15, {2+ORS}
s_and_b32 s14, s14, {4*OR-1}
s_add_u32 s14, s14, s15
s_lshl_b32 s14, s14, 7
s_add_u32 s14, s14, {WS_OH}
s_mov_b64 exec, 1
buffer_atomic_swap v2, v2, s[56:59], s14 offen sc1
s_mov_b64 exec, -1
s_waitcnt vmcnt(0)
L_noclr:""")
    a(f"""v_lshrrev_b32 v80, 4, v1
v_and_b32 v81, 15, v1
v_lshlrev_b32 v81, 4, v81
v_lshl_add_u32 v80, v80, 14, v81
v_lshlrev_b32 v81, {QB}, v1
s_lshr_b32 s14, s6, 4
s_lshl_b32 s14, s14, 15
s_bfe_u32 s15, s6, 0x20002
s_lshl_b32 s15, s15, 12
s_add_u32 s14, s14, s15
s_lshl_b32 s15, s7, 10
s_add_u32 s14, s14, s15
s_and_b32 s15, s6, 3
s_lshl_b32 s15, s15, 8
s_add_u32 s14, s14, s15
s_add_u32 s30, s14, {WS_QP}
s_lshr_b32 s15, s6, 2
s_lshl_b32 s15, s15, {QB+QRS}
s_and_b32 s17, s6, 3
s_lshl_b32 s17, s17, 2
s_add_u32 s17, s17, s7
s_lshr_b32 s16, s17, {qhw.bit_length()-1}
s_lshl_b32 s16, s16, 6
s_add_u32 s15, s15, s16
s_and_b32 s17, s17, {qhw-1}
s_lshl_b32 s17, s17, 2
s_add_u32 s15, s15, s17
s_add_u32 s31, s15, {WS_QH}""")
    if qdir == 1: publish_part(L_QPART, F_Q, 5, 80, "s_nop 0")
    else: publish_part(L_QPART, F_Q, 5, 80, ("s_mov_b64 exec, -1" if QR == 64 else f"s_mov_b32 exec_lo, {hex((1<<QR)-1)}") + f"\n{HST} v{vT}, v81, s[56:59], s31 offen sc1")
    stamp(3)
    if touch and not nt: touches([12, 16, 18])
    if tpat: a("v_bfe_u32 v48, v1, 2, 3\nv_lshlrev_b32 v48, 6, v48\nv_and_b32 v49, 3, v1\nv_lshl_add_u32 v48, v49, 2, v48")
    else: a("v_and_b32 v48, 31, v1\nv_lshlrev_b32 v48, 4, v48")
    a(f"""s_nop 0
s_lshl_b32 s52, s34, 5
s_add_u32 s52, s52, {WS_FP}
s_add_u32 s53, s52, {32*fps}
v_lshrrev_b32 v50, 1, v1
v_mul_u32_u24 v50, {fps}, v50
v_and_b32 v51, 1, v1
v_lshl_add_u32 v50, v51, 4, v50
s_waitcnt vmcnt(2)
v_lshlrev_b32 v{vXf}, 16, v{vXf}
v_lshlrev_b32 v{vB2f}, 16, v{vB2f}
v_add_f32 v{vXf}, v{vXf}, v{vB2f}
v_mov_b32 v44, 0
v_mov_b32 v45, 0
v_mov_b32 v46, 0
v_mov_b32 v47, 0
s_cmp_eq_u32 s9, 0
s_cbranch_scc1 L_hwrite
s_lshl_b32 s62, s8, 11
s_add_u32 s62, s62, {WS_HP}
s_lshl_b32 s15, s7, 9
s_add_u32 s30, s62, s15""")
    unpack(vB1, 76, 2)
    if hloc:
        a(f"s_add_u32 s31, s30, {WS_HL - WS_HP}\ns_add_u32 s63, s62, {WS_HL - WS_HP}\ns_add_u32 s60, s56, s63\ns_addc_u32 s61, s57, 0\ns_and_b32 s28, s12, 0xff\ns_mov_b32 s17, 0")
        publish_part(L_HPART, F_H, 12, vL16, f"buffer_store_dwordx4 v[96:99], v{vL16}, s[56:59], s31 offen")
        stamp(4)
        L1 = newlab("HA"); L2 = newlab("HB")
        a(f"{L1}:")
        for k in range(4): a(f"s_load_dword s{64+k}, s[60:61], {512*k} glc")
        a(f"s_add_u32 s17, s17, 1\ns_cmp_ge_u32 s17, {hloc}\ns_cbranch_scc1 {L2}\ns_waitcnt lgkmcnt(0)")
        a("s_xor_b32 s64, s64, s28\ns_xor_b32 s65, s65, s28\ns_xor_b32 s66, s66, s28\ns_xor_b32 s67, s67, s28\ns_or_b32 s64, s64, s65\ns_or_b32 s66, s66, s67\ns_or_b32 s64, s64, s66\ns_and_b32 s64, s64, 0xff")
        a(f"s_cbranch_scc1 {L1}")
        for i in range(2): a(f"buffer_load_dwordx4 v[{G+4*i}:{G+4*i+3}], v{vL16}, s[56:59], s63 offen offset:{1024*i} sc1")
        stamp(5)
        a("s_waitcnt vmcnt(0)")
        untag(G, 2, 42)
        a(f"v_cmp_ne_u32 vcc, 0, v42\ns_cbranch_vccz L_hok\ns_branch {L1}\n{L2}:\ns_waitcnt lgkmcnt(0)")
    else:
        a(f"s_lshl_b32 s14, s8, 7\ns_add_u32 s14, s14, {WS_HH}\ns_add_u32 s60, s56, s14\ns_addc_u32 s61, s57, 0\ns_lshl_b32 s17, s7, 2\ns_add_u32 s31, s14, s17")
        publish_part(L_HPART, F_H, 12, vL16, f"s_mov_b32 exec_lo, 1\n{HST} v{vT}, v2, s[56:59], s31 offen sc1")
        stamp(4)
        poll_hints(0, 15)
        stamp(5)
    Lh = newlab("GH")
    a(f"{Lh}:")
    for i in range(2): a(f"buffer_load_dwordx4 v[{G+4*i}:{G+4*i+3}], v{vL16}, s[56:59], s62 offen offset:{1024*i} sc1")
    a("s_waitcnt vmcnt(0)")
    untag(G, 2, 42)
    retry_if(42, Lh, 16)
    a("L_hok:")
    stamp(6)
    pk("add", G, G, G + 4); pk("add", G + 2, G + 2, G + 6)
    for k in range(4): a(f"v_mov_b32 v{G+4+k}, v{G+k}")
    for k in range(4): a(f"v_permlane32_swap_b32 v{G+k}, v{G+4+k}")
    pk("add", G, G, G + 4); pk("add", G + 2, G + 2, G + 6)
    roundbf(G, 4)
    pk("add", G, G, 76); pk("add", G + 2, G + 2, 78)
    roundbf(G, 4)
    a("s_mov_b32 s14, 0x3d372713\ns_mov_b32 s15, 0xc0135761")
    for k in (0, 2): pk("mul", 24 + k, G + k, G + k)
    for k in (0, 2): pk("mul", 24 + k, 24 + k, G + k)
    for k in range(4): a(f"v_fma_f32 v{24+k}, s14, v{24+k}, v{G+k}")
    for k in range(4): a(f"v_mul_f32 v{24+k}, s15, v{24+k}")
    for k in range(4): a(f"v_exp_f32 v{24+k}, v{24+k}")
    for k in range(4): a(f"v_add_f32 v{24+k}, 1.0, v{24+k}")
    for k in range(4): a(f"v_rcp_f32 v{24+k}, v{24+k}")
    for k in (0, 2): pk("mul", 24 + k, 24 + k, G + k)
    for k in range(4): a(f"v_cvt_pk_bf16_f32 v{44+k}, v{24+k}, v{24+k}")
    a("L_hwrite:")
    if tpat:
        for k in range(4): a(f"ds_write_b32 v48, v{44+k} offset:{L_H+16*k}")
    else: a(f"ds_write_b128 v48, v[44:47] offset:{L_H}")
    signal(F_HD)
    stamp(12)
    if tall == 2 and xt != 3: a("s_waitcnt lgkmcnt(0)\ns_barrier")
    poll_lds(F_FP, 4, 32, 18, sleep=0 if tall == 2 else 1)
    stamp(7)
    if fdelay: a(f"s_sleep {fdelay}")
    Lf = newlab("GF"); Ld = newlab("GD")
    sets = [64 + 8 * k for k in range(fsets)]
    def fissue(R):
        for i in range(2): a(f"buffer_load_dwordx4 v[{R+4*i}:{R+4*i+3}], v50, s[56:59], s{52+i} offen sc1")
    for R in sets[:-1]: fissue(R)
    a(f"{Lf}:")
    if fastfin:
        for k, R in enumerate(sets):
            fissue(sets[k - 1])
            a(f"s_waitcnt vmcnt({2*(fsets-1)})")
            for j in range(8): a(f"v_xor_b32 v{R+j}, v{R+j}, v{vTb+(j&3)}")
            pk("add", 44, R, R + 4); pk("add", 46, R + 2, R + 6)
            rscatter(44, ((f"v_or3_b32 v42, v{R}, v{R+1}, v{R+2}", f"v_or3_b32 v42, v42, v{R+3}, v{R+4}"),
                          (f"v_or3_b32 v42, v42, v{R+5}, v{R+6}", f"v_or_b32 v42, v42, v{R+7}"),
                          ("v_lshlrev_b32 v42, 24, v42", "v_cmp_ne_u32 vcc, 0, v42")))
            a("v_add_f32_dpp v44, v44, v44 quad_perm:[2,3,0,1] row_mask:0xf bank_mask:0xf")
            a(f"s_cbranch_vccz {Ld}")
        spin(Lf, 17)
        a(f"{Ld}:")
        stamp(13)
        R = 44
        a("s_nop 0")
        a(f"v_add_f32_dpp v{R}, v{R}, v{R} row_ror:4 row_mask:0xf bank_mask:0xf")
        a(f"v_add_f32_dpp v{R}, v{R}, v{R} row_ror:8 row_mask:0xf bank_mask:0xf")
    else:
        for k, R in enumerate(sets):
            fissue(sets[k - 1])
            a(f"s_waitcnt vmcnt({2*(fsets-1)})")
            untag(R, 2, 42)
            pk("add", 44, R, R + 4); pk("add", 46, R + 2, R + 6)
            a(f"v_cmp_ne_u32 vcc, 0, v42\ns_cbranch_vccz {Ld}")
        spin(Lf, 17)
        a(f"{Ld}:")
        stamp(13)
        R = 44
        rscatter(R)
        for m in ("quad_perm:[2,3,0,1]", "row_ror:4", "row_ror:8"):
            a(f"v_add_f32_dpp v{R}, v{R}, v{R} {m} row_mask:0xf bank_mask:0xf")
    a(f"s_mov_b32 exec_lo, 0x00030003\ns_mov_b32 exec_hi, 0x00030003")
    a(f"v_add_f32 v{R}, v{R}, v{vXf}\nv_cvt_pk_bf16_f32 v{R}, v{R}, v{R}\nbuffer_store_short v{R}, v14, s[44:47], s33 offen {oflags}")
    a(f"s_cmp_lg_u32 s2, 0\ns_cbranch_scc1 L_noep\ns_add_u32 s11, s11, 1\nv_mov_b32 v{R+1}, s11\ns_mov_b64 exec, 1\nbuffer_store_dword v{R+1}, v2, s[56:59], 0 offen {oflags}\nL_noep:\ns_mov_b64 exec, -1")
    stamp(14, True)
    if fixdur:
        a(f"s_add_u32 s96, s96, {fixdur}\nL_fix:\ns_memrealtime s[98:99]\ns_waitcnt lgkmcnt(0)\ns_sub_u32 s98, s98, s96\ns_cmp_lt_i32 s98, 0\ns_cbranch_scc1 L_fix")
    a("L_exit:")
    if stamps:
        a(f"""s_waitcnt vmcnt(0)
v_lshrrev_b32 v20, 6, v0
v_lshlrev_b32 v20, 6, v20
v_lshl_add_u32 v20, v1, 2, v20
s_lshl_b32 s14, s2, 10
s_add_u32 s14, s14, {WS_ST}
s_mov_b64 exec, 0xffff
buffer_store_dword v{vStamp}, v20, s[56:59], s14 offen""")
    a("L_end:\ns_endpgm")
    a("L_fail:")
    a("""s_load_dwordx2 s[48:49], s[0:1], 88
s_mov_b32 s50, 256
s_mov_b32 s51, 0x20000
s_lshl_b32 s14, s15, 2
v_mov_b32 v20, s2
v_add_u32 v20, 1, v20
s_waitcnt lgkmcnt(0)
s_mov_b64 exec, 1
buffer_store_dword v20, v2, s[48:51], s14 offen
s_endpgm""")
    if fastcode:
        a(".p2align 12\nT_f:\ns_setpc_b64 s[94:95]\nL_fast:")
        pend2, st['landed'] = fastcode[0]
        st['cofs'] = 30
        Wf = [max(w, bw) for w in W]
        emit_stream(bp, Wf, pend2, gates if bgate else {}, True)
        a("s_branch L_join")
    if post: a(f".fill {post}, 4, 0xbf800000")
    nv = 168
    a(f""".section .rodata,"a"
.p2align 6
.amdhsa_kernel {KNAME}
  .amdhsa_next_free_vgpr {nv}
  .amdhsa_next_free_sgpr 102
  .amdhsa_accum_offset {nv}
  .amdhsa_group_segment_fixed_size 0
  .amdhsa_kernarg_size 104
  .amdhsa_user_sgpr_count 2
  .amdhsa_user_sgpr_kernarg_segment_ptr 1
  .amdhsa_system_sgpr_workgroup_id_x 1
  .amdhsa_float_denorm_mode_32 3
.end_amdhsa_kernel""")
    return a.finish()

if __name__ == "__main__":
    out = sys.argv[1] if len(sys.argv) > 1 else "x.s"
    open(out, "w").write(gen())
```

```python
import sys
from asmlib import Asm

KNAME = "parallel_sum__sliding_block_cached__mixer_channel_mlp__decode_kernel"

WS_HH = 0x1000; WS_QH = 0x4000; WS_OH = 0x8000; WS_LS = 0x18000; WS_QP = 0x28000
WS_HP = 0x48000; WS_HL = 0x64000; WS_FP = 0x64000; WS_OP = 0x100000; WS_ST = 0x200000
WS_BYTES = 0x10000000
KSTR = 1088; VSTR = 1152
L_X = 0
L_Y = L_X + 2048; L_QPART = L_Y + 2048; L_HPART = L_QPART + 2048
L_QBUF = L_HPART + 2048; L_P = L_QBUF + 2304; L_ML = L_P + 4096
L_O = L_ML + 512; L_H = L_O + 512; L_F = L_H + 512
L_K = L_F + 128; L_V = L_K + 32 * KSTR; L_END = L_V + 32 * VSTR
L_FIN = L_K
F_X, F_Y, F_Q, F_K, F_V, F_H, F_B1, F_B2, F_O, F_HD, F_QG, F_OG, F_FP, F_B3, F_OP, F_K2, F_PQ, F_PO = [L_F + 4 * i for i in range(18)]
TO_LIMIT = 1 << 20
NW = 9

def gen(W=(5, 5, 5, 6, 5, 5), stamps=0, ldflags="nt", order="qkv1o2", qstart=5, p1start=0, cprio=3, QR=4, OR=4, g1=None, g2=44,
        sonly=0, fsets=1, fack=1, hloc=0, vpre=1, hat=1, tall=2, fdelay=0, align=2, touch=1, nt=0, tlb=0, oflags='', WE=None, late=4, pre=832, post=0, g3=None, hsleep=0, oack=1, qwait=1, rq=3, r1=2, othr=16, qthr=8, ogs=0, fakebal=0, half=1, tpat=1, pre2=1, fastfin=0, fixdur=0, qpos=None, opos=None, maxper=8, gs=None, wl=2, gq=None, wrot=0, w1t=0, ksw=1, vsw=2, kvr=0, kvc=8, qdir=0, fps=8192, ops=0, g2n=4, gsl=1, ocnt=0, qhw=16, ohw=16, flate=0, bp=None, bw=8, bt=480, bgate=1, fearly=0, ksl=2, xt=0, sprio=0, tf=None, wsb=0, xfl='', stfl='sc1', gfl='sc1', ptouch=0, ptf='sc1', probe=None, spt=0, nts='', ntl=''):
    a = Asm()
    if isinstance(W, int): W = [W] * 48
    if len(W) == 6: W = [w for w in W for _ in range(8)]
    if isinstance(WE, int): WE = [WE] * 48
    if WE and len(WE) == 6: WE = [w for w in WE for _ in range(8)]
    SF = lambda c: "sc1 nt" if c in nts else "sc1"
    LF = lambda c: "sc1 nt" if c in ntl else "sc1"
    lab = [0]
    HST = "buffer_atomic_swap" if hat else "buffer_store_dword"
    HST2 = "buffer_atomic_swap_x2" if hat else "buffer_store_dwordx2"
    def newlab(p="L"):
        lab[0] += 1
        return f"{p}_{lab[0]}"
    vStamp = 160
    stubs = (2, 22, 4, 19, 8, 9, 11, 13, 12, 16, 18, 32) if touch else ()
    def touches(codes):
        for c in codes: a(f"s_call_b64 s[94:95], T_{c}")
    def stamp(k, light=False):
        if stamps == 1 or (stamps == 2 and light):
            a(f"s_memrealtime s[98:99]\ns_waitcnt lgkmcnt(0)\nv_writelane_b32 v{vStamp}, s98, {k}")
    def signal(flag):
        a(f"s_mov_b64 exec, 1\nds_add_u32 v2, v3 offset:{flag}\ns_mov_b64 exec, -1")
    def spin(L, code):
        a(f"s_add_u32 s10, s10, 1\ns_cmp_lt_u32 s10, {TO_LIMIT}\ns_cbranch_scc1 {L}\ns_mov_b32 s15, {code}\ns_branch L_fail")
        if code in stubs: a(f"T_{code}:\ns_setpc_b64 s[94:95]")
    def poll_lds(flag, n, vt, code, spec=None, sleep=0):
        L = newlab("PL"); D = newlab("PD")
        a(f"{L}:\nds_read_b32 v{vt}, v2 offset:{flag}")
        if spec: a(spec)
        a(f"s_waitcnt lgkmcnt(0)\nv_readfirstlane_b32 s14, v{vt}\ns_cmp_ge_u32 s14, {n}\ns_cbranch_scc1 {D}")
        if sleep: a(f"s_sleep {sleep}")
        spin(L, code)
        a(f"{D}:")
    def red64(v, s):
        for m in ("quad_perm:[1,0,3,2] row_mask:0xf", "quad_perm:[2,3,0,1] row_mask:0xf", "row_half_mirror row_mask:0xf",
                  "row_mirror row_mask:0xf", "row_bcast:15 row_mask:0xa", "row_bcast:31 row_mask:0xc"):
            a(f"v_add_f32_dpp v{v}, v{v}, v{v} {m} bank_mask:0xf")
        a(f"v_readlane_b32 s{s}, v{v}, 63")
    def nonce():
        a("s_mul_i32 s12, s11, 0x9E3779B1\ns_add_u32 s12, s12, 0x85EBCA77\ns_mov_b32 s13, s12")
        a("s_mov_b32 s20, 0x07060500\ns_mov_b32 s21, 0x07060501\ns_mov_b32 s22, 0x07060502\ns_mov_b32 s23, 0x07060503")
    def tag4(src, dst, vT):
        for k in range(4): a(f"v_perm_b32 v{dst+k}, v{src+k}, v{vT}, s{20+k}")
    def pk(op, d, x, y, z=None, mods=""):
        zz = f", v[{z}:{z+1}]" if z is not None else ""
        a(f"v_pk_{op}_f32 v[{d}:{d+1}], v[{x}:{x+1}], v[{y}:{y+1}]{zz} {mods}")

    a(f"; @launch grid=(256,1,1) block=({64*(NW+nt)},1,1) lds={L_END}")
    a('.amdgcn_target "amdgcn-amd-amdhsa--gfx950"')
    a(f".text\n.globl {KNAME}")
    if align: a(".p2align 12\n.fill {pre}, 4, 0xbf800000".replace("{pre}", str(pre)))
    a(f".p2align 8\n.type {KNAME},@function\n{KNAME}:")
    a("""s_cmp_ge_u32 s2, 256
s_cbranch_scc1 L_end
s_load_dwordx16 s[72:87], s[0:1], 0
s_load_dwordx2 s[56:57], s[0:1], 96""")
    if stamps:
        a(f"s_memrealtime s[96:97]\nv_mov_b32 v{vStamp}, 0")
    if fixdur: a("s_memrealtime s[96:97]")
    if bp is not None: a("s_memrealtime s[88:89]")
    a(f"""v_lshrrev_b32 v4, 6, v0
v_and_b32 v1, 63, v0
v_readfirstlane_b32 s3, v4
v_mov_b32 v2, 0
v_mov_b32 v3, 1
s_and_b32 s4, s2, 7
s_lshr_b32 s5, s2, 3
s_lshr_b32 s14, s5, 2
s_lshl_b32 s15, s14, 3
s_add_u32 s6, s4, {rq}
s_and_b32 s6, s6, 7
s_add_u32 s6, s6, s15
s_add_u32 s8, s4, {r1}
s_and_b32 s8, s8, 7
s_add_u32 s8, s8, s15
s_and_b32 s7, s5, 3
s_cmp_lt_u32 s14, 7
s_cselect_b32 s9, 1, 0
s_mov_b32 s10, 0
s_mov_b32 s58, {WS_BYTES - wsb}
s_mov_b32 s59, 0x20000
s_cmp_lt_u32 s3, 4
s_cbranch_scc1 L_S""")
    if nt:
        a("s_cmp_lt_u32 s3, 9\ns_cbranch_scc1 L_notw")
        if tlb: a("s_load_dwordx2 s[52:53], s[0:1], 64")
        a("s_waitcnt lgkmcnt(0)\ns_barrier")
        groups = {1: [['y', 19, 8, 11, 13, 12, 2, 4]], 2: [['y', 8, 13, 2], [19, 11, 12, 4]], 3: [['y', 11, 2], [19, 13, 4], [8, 12, 22 if g2 is not None else 4]]}[nt]
        for k, grp in enumerate(groups):
            if k + 1 < len(groups): a(f"s_cmp_lg_u32 s3, {9+k}\ns_cbranch_scc1 L_tw{k+1}")
            if tlb and k == 0:
                a(f"""s_lshl_b32 s14, s4, 22
s_add_u32 s14, s14, {12288*256}
s_load_dword s64, s[36:37], s14
s_load_dword s65, s[40:41], s14
s_mul_i32 s14, s7, {256*7168}
s_load_dword s66, s[44:45], s14
s_add_u32 s14, s14, {255*7168}
s_load_dword s67, s[44:45], s14
s_lshl_b32 s14, s6, 17
s_load_dword s68, s[48:49], s14
s_lshl_b32 s14, s8, 17
s_min_u32 s14, s14, {3583*2048}
s_load_dword s69, s[52:53], s14""")
            touches(grp)
            a("s_endpgm")
            if k + 1 < len(groups): a(f"L_tw{k+1}:")
        a("L_notw:")
    vL16 = 4
    if cprio: a(f"s_setprio {cprio}")
    a(f"""s_sub_u32 s3, s3, 4
s_mov_b32 s26, 4096
s_mov_b32 s27, 0x20000
v_lshlrev_b32 v{vL16}, 4, v1
v_lshlrev_b32 v16, 3, v1
s_and_b32 s16, s3, 1
s_lshl_b32 s14, s16, 11
s_lshl_b32 s15, s7, 9
s_add_u32 s15, s15, s14
v_lshlrev_b32 v17, 2, v1
s_mov_b32 exec_hi, 0
ds_write_b32 v17, v2 offset:{L_F}
s_mov_b64 exec, -1
s_cmp_eq_u32 s3, 4
s_waitcnt lgkmcnt(0)
s_mov_b64 s[24:25], s[72:73]
s_barrier
s_cbranch_scc1 L_C
buffer_load_dwordx4 v[20:23], v{vL16}, s[24:27], s14 offen {xfl}
buffer_load_dwordx4 v[24:27], v{vL16}, s[24:27], s14 offen offset:1024 {xfl}
buffer_load_dwordx2 v[28:29], v16, s[24:27], s15 offen {xfl}
s_branch L_C""")

    a("L_S:")
    a("s_load_dwordx2 s[52:53], s[0:1], 64")
    a(f"""s_mov_b32 s34, {1024*8192}
s_mov_b32 s35, 0x20000
s_mov_b32 s38, {2*4*16384*256}
s_mov_b32 s39, 0x20000
s_mov_b32 s42, {2*4*16384*256}
s_mov_b32 s43, 0x20000
s_cmp_lg_u32 s9, 0
s_cselect_b32 s46, {1024*7168}, 0
s_cselect_b32 s54, {3584*2048}, 0
s_mov_b32 s47, 0x20000
s_mov_b32 s50, {4096*2048}
s_mov_b32 s51, 0x20000
s_mov_b32 s55, 0x20000
s_lshl_b32 s14, s7, 8
s_lshl_b32 s15, s3, 6
s_add_u32 s14, s14, s15
s_lshl_b32 s60, s14, 13
s_lshl_b32 s15, s6, 7
s_add_u32 s60, s60, s15
s_mul_i32 s63, s14, 7168
s_lshl_b32 s15, s8, 7
s_add_u32 s63, s63, s15""")
    if w1t:
        if w1t == 1: a("s_lshr_b32 s15, s8, 2\ns_and_b32 s16, s8, 3")
        else: a("s_mul_i32 s16, s8, 4682\ns_lshr_b32 s16, s16, 16\ns_mul_i32 s15, s16, 14\ns_sub_u32 s15, s8, s15")
        a("s_lshl_b32 s16, s16, 2\ns_add_u32 s16, s16, s7\ns_lshl_b32 s16, s16, 2\ns_add_u32 s16, s16, s3\ns_mul_i32 s63, s16, 114688\ns_lshl_b32 s15, s15, 9\ns_add_u32 s63, s63, s15")
    if tall: a("s_lshl_b32 s14, s7, 9\ns_lshl_b32 s15, s3, 15\ns_add_u32 s14, s14, s15")
    else: a("s_lshl_b32 s14, s14, 1")
    a(f"""s_lshl_b32 s64, s6, 17
s_add_u32 s64, s64, s14
s_lshl_b32 s65, s8, 17
s_add_u32 s65, s65, s14
s_lshl_b32 s61, s4, 22
{"s_lshl_b32 s15, s5, 10" if kvc != 8 else ""}
{"s_add_u32 s61, s61, s15" if not kvc else f"s_mul_i32 s69, s3, {kvc*8*1024}" if kvc != 8 else ""}
{"" if kvc in (0, 8) else "s_add_u32 s69, s69, s15"}
{"s_lshl_b32 s15, s3, 18" if not kvr else "s_lshl_b32 s69, s3, 3"}
{"s_add_u32 s61, s61, s15" if not kvr else {1: "s_add_u32 s69, s69, s4", 2: "s_lshl_b32 s15, s4, 2", 3: "s_mul_i32 s15, s4, 5", 0: "s_nop 0"}[kvr & 3]}
{"s_add_u32 s69, s69, s15" if (kvr & 3) >= 2 else ""}
s_add_u32 s61, s61, {12288*256}
s_mov_b32 s62, s61
s_mul_i32 s66, s3, {8*KSTR}
s_add_u32 s66, s66, {L_K}
s_mul_i32 s67, s3, {8*VSTR}
s_add_u32 s67, s67, {L_V}""")
    vOffQ, vOff1, vOffO, vOffK, vOffV = 18, 19, 4, 5, 6
    vLdsX, vLdsO, vPart, vFP, vFin, vT = 7, 12, 13, 14, 15, 17
    vM = 8
    a(f"""v_lshrrev_b32 v20, 4, v1
v_bfe_u32 v21, v1, 3, 1
v_and_b32 v22, 7, v1
v_lshl_add_u32 v23, v20, 2, v21
v_lshlrev_b32 v24, 4, v22
v_lshl_add_u32 v{vOffQ}, v23, 13, v24
v_mul_u32_u24 v25, 7168, v23
v_add_u32 v{vOff1}, v25, v24
v_and_b32 v25, 15, v1""")
    if w1t: a(f"v_mul_u32_u24 v{vOff1}, 28672, v20\nv_lshl_add_u32 v{vOff1}, v25, 4, v{vOff1}")
    if tall:
        a(f"v_lshlrev_b32 v{vOffO}, 4, v25\nv_lshl_add_u32 v{vOffO}, v20, {11 if tpat else 13}, v{vOffO}")
        if tpat == 2:
            a(f"s_bfe_u32 s69, s5, 0x10002\ns_lshl_b32 s14, s69, 8\nv_add_u32 v{vOffO}, s14, v{vOffO}\nv_xor_b32 v63, 0x100, v{vOffO}")
    else: a(f"v_lshl_add_u32 v{vOffO}, v23, 11, v24")
    for sw, vo in ((ksw, vOffK), (vsw, vOffV)):
        if sw == 0: a(f"v_lshlrev_b32 v{vo}, 4, v1")
        else:
            if sw == 1: a("v_xor_b32 v26, v25, v20")
            else: a(f"v_lshlrev_b32 v26, {sw-1}, v20\nv_xor_b32 v26, v25, v26")
            a(f"v_lshlrev_b32 v26, 4, v26\nv_lshl_add_u32 v{vo}, v20, 8, v26")
    DQ, D1, D2, DO = 64, 96, 128, 64
    if ' ' in order:
        seq = []; cntr = {}
        for tok in order.split():
            t, k = tok[0], int(tok[1:])
            for _ in range(k):
                seq.append((t, cntr.get(t, 0))); cntr[t] = cntr.get(t, 0) + 1
        assert all(v == 8 for v in cntr.values()) and len(seq) == 48
    else:
        seq = [(t, i) for t in order for i in range(8)]
    endpos = {t: n + 1 for n, (t, i) in enumerate(seq) if i == 7}
    info = {'q': (32, 60, vOffQ, 8192, DQ), '1': (44, 63, vOff1, 7168, D1), '2': (52, 65, vOffO, 2048, D2), 'o': (48, 64, vOffO, 2048, DO),
            'k': (36, 61, vOffK, None, None), 'v': (40, 62, vOffV, None, None)}
    ldflags0 = ldflags
    def issue(t, i):
        ldflags = (tf or {}).get(t, ldflags0)
        srd, so, vo, stride, D = info[t]
        if t in 'kv' and kvr:
            base, st = (66, KSTR) if t == 'k' else (67, VSTR)
            ii = (i + 4) & 7 if (kvr >= 4 and t == 'v') else i
            a(f"s_add_u32 s16, s69, {ii}\ns_and_b32 s16, s16, 31\ns_lshl_b32 s16, s16, 15\ns_add_u32 s16, s16, s{so}\ns_add_u32 m0, s{base}, {ii*st}")
            a(f"buffer_load_dwordx4 v{vo}, s[{srd}:{srd+3}], s16 offen {ldflags} lds")
        elif t in 'kv' and kvc == 8:
            base, st = (66, KSTR) if t == 'k' else (67, VSTR)
            if i > 0: a(f"s_add_u32 s{so}, s{so}, s92")
            a(f"s_add_u32 s16, s{88 + (i & 3)}, s{so}\ns_add_u32 m0, s{base}, {i*st}")
            a(f"buffer_load_dwordx4 v{vo}, s[{srd}:{srd+3}], s16 offen {ldflags} lds")
        elif t in 'kv' and kvc:
            base, st = (66, KSTR) if t == 'k' else (67, VSTR)
            if i > 0: a(f"s_add_u32 s{so}, s{so}, 32768")
            a(f"s_add_u32 s16, s69, {(kvc*i*1024) & 0x7fff}\ns_and_b32 s16, s16, 0x7c00\ns_add_u32 s16, s16, s{so}\ns_add_u32 m0, s{base}, {i*st}")
            a(f"buffer_load_dwordx4 v{vo}, s[{srd}:{srd+3}], s16 offen {ldflags} lds")
        elif t in 'kv':
            if i > 0: a(f"s_add_u32 s{so}, s{so}, 32768")
            base, st = (66, KSTR) if t == 'k' else (67, VSTR)
            a(f"s_add_u32 m0, s{base}, {i*st}")
            a(f"buffer_load_dwordx4 v{vo}, s[{srd}:{srd+3}], s{so} offen {ldflags} lds")
        elif tall and t in '2o':
            if i > 0 and i % 2 == 0: a(f"s_add_u32 s{so}, s{so}, {8192 if tpat else 2048}")
            if tpat == 2: a(f"buffer_load_dwordx4 v[{D+4*i}:{D+4*i+3}], v{63 if i & 1 else vo}, s[{srd}:{srd+3}], s{so} offen {ldflags}")
            else: a(f"buffer_load_dwordx4 v[{D+4*i}:{D+4*i+3}], v{vo}, s[{srd}:{srd+3}], s{so} offen offset:{256*(i&1)} {ldflags}")
        elif w1t and t == '1':
            if i > 0 and i % 2 == 0: a(f"s_add_u32 s{so}, s{so}, 7168")
            a(f"buffer_load_dwordx4 v[{D+4*i}:{D+4*i+3}], v{vo}, s[{srd}:{srd+3}], s{so} offen offset:{256*(i&1)} {ldflags}")
        elif wrot and t in 'q1':
            rs = {1: "s_lshr_b32 s16, s5, 2", 2: "s_mov_b32 s16, s4", 3: "s_lshr_b32 s16, s5, 2\ns_add_u32 s16, s16, s4"}[wrot]
            a(f"{rs}\ns_add_u32 s16, s16, {i>>1}\ns_and_b32 s16, s16, 3\ns_mul_i32 s16, s16, {16*stride}\ns_add_u32 s16, s16, {2*(i&1)*stride}\ns_add_u32 s16, s16, s{so}")
            a(f"buffer_load_dwordx4 v[{D+4*i}:{D+4*i+3}], v{vo}, s[{srd}:{srd+3}], s16 offen {ldflags}")
        elif fakebal and t == '1' and i >= 6:
            a(f"buffer_load_dwordx4 v[{D+4*i}:{D+4*i+3}], v{vo}, s[{srd}:{srd+3}], s{so} offen offset:0")
        else:
            if i > 0:
                rowof = lambda j: 16 * (j >> 1) + 2 * (j & 1)
                a(f"s_add_u32 s{so}, s{so}, {(rowof(i) - rowof(i-1)) * stride}")
            a(f"buffer_load_dwordx4 v[{D+4*i}:{D+4*i+3}], v{vo}, s[{srd}:{srd+3}], s{so} offen {'' if (fakebal and t == '1' and i == 5) else ldflags}")
    DUP, A0, A1, AC0, AC1, X = 20, 36, 40, 52, 56, 60
    def buildA(i, h):
        Ar = (A0, A1)[h]
        src = DUP + 4 * (i >> 1) + 2 * (i & 1) + h
        for r in range(4): a(f"v_and_b32 v{Ar+r}, v{src}, v{vM+r}")
    def mm(D, i, first, last):
        for h, (Ar, AC) in enumerate(((A0, AC0), (A1, AC1))):
            c = "0" if first else f"v[{AC}:{AC+3}]"
            a(f"v_mfma_f32_16x16x32_bf16 v[{AC}:{AC+3}], v[{Ar}:{Ar+3}], v[{D+4*i}:{D+4*i+3}], {c}")
            if not last: buildA(i + 1, h)
    AT = [36, 40, 44, 48]
    def buildT(j, rs=range(4)):
        for r in rs: a(f"v_and_b32 v{AT[j]+r}, v{DUP+j}, v{vM+r}")
    def mmT(D, i, first):
        AC = (AC0, AC1)[i & 1]
        c = "0" if first else f"v[{AC}:{AC+3}]"
        a(f"v_mfma_f32_16x16x32_bf16 v[{AC}:{AC+3}], v[{AT[i>>1]}:{AT[i>>1]+3}], v[{D+4*i}:{D+4*i+3}], {c}")
        j = (i >> 1) + 1
        if j < 4: buildT(j, (0, 1) if i % 2 == 0 else (2, 3))
    def dupreads(vaddr, base, n=4):
        return "\n".join(f"ds_read_b128 v[{DUP+4*t}:{DUP+4*t+3}], v{vaddr} offset:{base+64*t}" for t in range(n))
    def combine():
        for r in range(4): a(f"v_cndmask_b32 v{X+r}, v{AC0+r}, v{AC1+r}, s[18:19]")
        for r in range(4): a(f"v_add_f32_dpp v{X+r}, v{X+r}, v{X+r} row_ror:8 row_mask:0xf bank_mask:0xf")
    a("s_waitcnt lgkmcnt(0)\ns_mov_b64 s[32:33], s[78:79]")
    if bp is not None: a("s_mov_b32 s93, s88")
    if not pre2: a("s_barrier")
    if fakebal:
        a("s_cmp_lg_u32 s9, 0\ns_cselect_b32 s44, s44, s36\ns_cselect_b32 s45, s45, s37\ns_cselect_b32 s52, s52, s40\ns_cselect_b32 s53, s53, s41\ns_cselect_b32 s46, s46, 0x2000000\ns_cselect_b32 s54, s54, 0x2000000")
    if stamps: a(f"v_writelane_b32 v{vStamp}, s96, 0")
    stamp(1)
    st = dict(landed=0, setup=False)
    def setup():
        if st['setup']: return
        st['setup'] = True
        if wsb: a(f"s_add_u32 s56, s56, {wsb}\ns_addc_u32 s57, s57, 0")
        a("s_load_dword s11, s[56:57], 0")
        if sprio: a(f"s_setprio {sprio}")
        if kvc == 8:
            a("s_lshl_b32 s88, s5, 10\ns_mov_b32 s92, 0x8000")
            for k in range(1, 4): a(f"s_add_u32 s{88+k}, s{87+k}, 0x2000\ns_and_b32 s{88+k}, s{88+k}, 0x7c00")
        a("s_mov_b64 s[36:37], s[74:75]\ns_mov_b64 s[40:41], s[76:77]\ns_mov_b64 s[44:45], s[84:85]\ns_mov_b64 s[48:49], s[80:81]")
        a(f"""v_and_b32 v25, 1, v1
v_bfe_u32 v26, v1, 1, 2
v_mov_b32 v27, 0xffff
v_lshlrev_b32 v25, 4, v25
v_lshlrev_b32 v27, v25, v27""")
        for r in range(4):
            a(f"v_cmp_eq_u32 vcc, {r}, v26\nv_cndmask_b32 v{vM+r}, 0, v27, vcc")
        a(f"""v_lshlrev_b32 v25, 4, v20
v_lshl_add_u32 v{vLdsO}, v21, 8, v25
v_lshl_add_u32 v{vLdsX}, v21, 10, v25
s_lshl_b32 s14, s3, 8
v_add_u32 v{vLdsX}, s14, v{vLdsX}
v_lshrrev_b32 v25, 1, v20
v_and_b32 v26, 1, v20
v_lshlrev_b32 v27, 5, v22
v_lshl_add_u32 v27, v26, 4, v27
v_lshl_add_u32 v{vPart}, v25, 8, v27
s_lshl_b32 s14, s3, 9
v_add_u32 v{vPart}, s14, v{vPart}
s_mov_b32 s18, 0xff00ff00
s_mov_b32 s19, 0xff00ff00""")
        if WE:
            a(f"s_getreg_b32 s14, hwreg(HW_REG_XCC_ID, 0, 4)\ns_cmp_ge_u32 s14, {late}\ns_cselect_b64 vcc, -1, 0")
        if tall:
            a(f"""s_lshl_b32 s14, s3, 6
v_add_u32 v{vLdsO}, s14, v{vLdsO}
v_lshlrev_b32 v{vFin}, 4, v1
s_lshl_b32 s14, s3, 11
v_add_u32 v16, s14, v{vFin}
s_and_b32 s14, s3, 1
s_lshl_b32 s14, s14, 10
s_lshr_b32 s15, s3, 1
s_lshl_b32 s15, s15, 9
s_add_u32 s14, s14, s15
v_add_u32 v{vFin}, s14, v{vFin}
v_and_b32 v27, 15, v1
v_lshlrev_b32 v27, 5, v27
v_lshl_add_u32 v{vFP}, v26, 4, v27
s_lshl_b32 s14, s7, 10
s_and_b32 s15, s3, 1
s_lshl_b32 s15, s15, 9
s_add_u32 s14, s14, s15
s_lshr_b32 s15, s3, 1
s_lshl_b32 s15, s15, 12
s_add_u32 s14, s14, s15""")
        else:
            a(f"""v_lshl_add_u32 v{vFP}, v25, 12, v27
s_lshl_b32 s14, s7, 10
s_lshl_b32 s15, s3, 8
s_add_u32 s14, s14, s15""")
        a(f"s_mul_i32 s15, s6, {fps}\ns_add_u32 s14, s14, s15\ns_add_u32 s68, s14, {WS_FP}")
    def process(t, i):
        if sonly:
            if i == 7: stamp({'q': 2, 'k': 3, 'v': 4, '1': 5}[t])
            return
        if t in 'q1':
            if i == 0:
                poll_lds(F_X if t == 'q' else F_Y, 2, 60, (1 if t == 'q' else 2) + st.get('cofs', 0), dupreads(vLdsX, L_X if t == 'q' else L_Y))
                buildA(0, 0); buildA(0, 1)
            mm(info[t][4], i, i == 0, i == 7)
            if i == 7:
                combine()
                a("s_mov_b32 exec_lo, 0x00ff00ff\ns_mov_b32 exec_hi, 0x00ff00ff")
                a(f"ds_write_b128 v{vPart}, v[{X}:{X+3}] offset:{L_QPART if t == 'q' else L_HPART}")
                signal(F_Q if t == 'q' else F_H)
                stamp(2 if t == 'q' else 5)
        elif t == 'k' and qwait >= 2 and i == qwait - 2:
            signal(F_K2)
        elif t in 'kv' and i == 7:
            signal(F_K if t == 'k' else F_V)
            stamp(3 if t == 'k' else 4)
    gates = {}
    if g1 is not None and not sonly: gates[g1] = (F_QG, 4, '', 21)
    if g2 is not None and not sonly: gates[g2] = (F_OG, g2n, 'q1kv', 22)
    if g3 is not None and not sonly: gates[g3] = (F_OP, 4, 'q1kv', 24)
    N = len(seq)
    pend = list(range(N))
    def ready(m, n):
        t, i = seq[m]
        if t in '2o': return False
        if t == 'q' and st['landed'] < qstart: return False
        if t == '1' and n < p1start: return False
        return True
    assert all(endpos['q'] <= n - 8 for n, (t, i) in enumerate(seq) if t == 'o')
    fastcode = []
    def emit_stream(n0, W, pend, gates, fast):
      for n, (t, i) in enumerate(seq):
        if n < n0: continue
        if bp is not None and n == bp and not fast and not sonly:
            a(f"s_memrealtime s[90:91]\ns_waitcnt lgkmcnt(0)\ns_sub_u32 s90, s90, s93\ns_cmp_gt_u32 s90, {bt}\ns_cbranch_scc1 L_fast")
            fastcode.append((list(pend), st['landed']))
        want = n - W[n] + 1
        if n in gates:
            flag, cnt, need, code = gates[n]
            for m in [m for m in pend if seq[m][0] in need and m < n]:
                if m >= st['landed'] and not (seq[m][0] in 'kv' and seq[m][1] < 7):
                    a(f"s_waitcnt vmcnt({n - 1 - m})"); st['landed'] = m + 1
                process(*seq[m]); pend.remove(m)
            if flate and flag == F_OG: a("s_mov_b32 s71, s10")
            poll_lds(flag, cnt, 60, code + st.get('cofs', 0), sleep=gsl)
            if flate and flag == F_OG: a("s_sub_u32 s71, s10, s71")
        if want > st['landed']:
            setup()
            a(f"s_waitcnt vmcnt({n - want})"); st['landed'] = want
        if not sonly and ((gs is not None and n >= gs) or (gq is not None and gq[0] <= n < gq[1])):
            fl = F_OG if (gs is not None and n >= gs) else F_QG
            for m in [m for m in pend if seq[m][0] in 'q1kv' and m < n - wl + 1 and (seq[m][0] in 'kv' or fl == F_OG)]:
                pass
            Lk = newlab("SG")
            a(f"ds_read_b32 v60, v2 offset:{fl}\ns_waitcnt lgkmcnt(0)\nv_readfirstlane_b32 s14, v60\ns_cmp_ge_u32 s14, 4\ns_cbranch_scc1 {Lk}\ns_waitcnt vmcnt({wl - 1})\n{Lk}:")
        if WE and WE[n] < W[n] and n - WE[n] + 1 > st['landed']:
            setup()
            Lk = newlab("WK")
            a(f"s_cbranch_vccnz {Lk}\ns_waitcnt vmcnt({WE[n] - 1})\n{Lk}:")
        if t != 'q': setup()
        issue(t, i)
        if pre2 and n == pre2 - 1: a("s_barrier")
        if n == qpos and not sonly: signal(F_PQ)
        if n == opos and not sonly: signal(F_PO)
        cnt_ = 0
        for m in [m for m in pend if m < st['landed'] and ready(m, n)]:
            if seq[m][0] in 'q1':
                if cnt_ >= maxper: continue
                cnt_ += 1
            process(*seq[m]); pend.remove(m)
      for m in [m for m in pend if seq[m][0] not in '2o'] if (bp is not None and not sonly) else []:
        tt, ii = seq[m]
        if m >= st['landed'] and not (tt in 'kv' and ii < 7):
            a(f"s_waitcnt vmcnt({N - 1 - m})"); st['landed'] = m + 1
        process(tt, ii); pend.remove(m)
    emit_stream(0, W, pend, gates, False)
    if bp is not None and not sonly:
        st['landed'] = min(st['landed'], max(N - bw, endpos['1'], endpos['v']))
        a("L_join:")
    setup()
    stamp(6)
    nmm = 0
    tail = [m for m in pend if seq[m][0] not in '2o'] + [m for m in pend if seq[m][0] in '2o']
    for m in tail:
        t, i = seq[m]
        if sonly:
            if m >= st['landed'] and i == 7:
                a(f"s_waitcnt vmcnt({N - 1 - m})"); st['landed'] = m + 1
            if i == 7: stamp({'q': 2, 'k': 3, 'v': 4, '1': 5, '2': 7, 'o': 8}[t])
            continue
        if t in '2o' and i == 0:
            if nmm == 0:
                nonce(); a(f"v_mov_b32 v{vT}, s12")
            poll_lds(F_HD if t == '2' else F_O, 1 if t == '2' else 4, 60, 3 if t == '2' else 4, dupreads(vLdsO, L_H if t == '2' else L_O, 1 if tall else 4))
            stamp(7 if t == '2' else 8)
            if tall: buildT(0)
            else: buildA(0, 0); buildA(0, 1)
        if m >= st['landed'] and not (t in 'kv' and i < 7):
            a(f"s_waitcnt vmcnt({N - 1 - m})"); st['landed'] = m + 1
        if t in '2o':
            if xt: pass
            elif tall: mmT(info[t][4], i, nmm < 2)
            else: mm(info[t][4], i, nmm == 0, i == 7)
            nmm += 1
        else:
            process(t, i)
    stamp(9)
    if sonly: a("s_branch L_exit")
    if xt >= 2:
        a("s_barrier" if xt == 2 else "s_nop 0")
        tag4(X, X, vT)
        a("s_mov_b32 exec_hi, 0")
    elif tall:
        a(f"ds_write_b128 v16, v[{AC0}:{AC0+3}] offset:{L_FIN}\nds_write_b128 v16, v[{AC1}:{AC1+3}] offset:{L_FIN+1024}")
        if tall == 2:
            a("s_waitcnt lgkmcnt(0)\ns_barrier")
            for w in range(4): a(f"ds_read_b128 v[{20+4*w}:{23+4*w}], v{vFin} offset:{L_FIN+2048*w}")
            a("s_waitcnt lgkmcnt(0)")
        else:
            signal(F_B3)
            poll_lds(F_B3, 4, 60, 23, "\n".join(f"ds_read_b128 v[{20+4*w}:{23+4*w}], v{vFin} offset:{L_FIN+2048*w}" for w in range(4)))
        pk("add", 20, 20, 24); pk("add", 22, 22, 26); pk("add", 28, 28, 32); pk("add", 30, 30, 34)
        pk("add", X, 20, 28); pk("add", X + 2, 22, 30)
        tag4(X, X, vT)
        a("s_mov_b32 exec_hi, 0")
    else:
        combine()
        tag4(X, X, vT)
        a("s_mov_b32 exec_lo, 0x00ff00ff\ns_mov_b32 exec_hi, 0x00ff00ff")
    a(f"buffer_store_dwordx4 v[{X}:{X+3}], v{vFP}, s[56:59], s68 offen {SF('f')}\ns_mov_b64 exec, -1")
    stamp(10)
    if flate:
        a(f"s_cmp_lt_u32 s71, {flate}\ns_cbranch_scc1 L_noack\ns_waitcnt vmcnt(0)\n" + (f"s_sleep {fearly}\n" if fearly else "") + "L_noack:")
    elif fack: a("s_waitcnt vmcnt(0)")
    signal(F_FP)
    a("s_branch L_exit")

    if align: a(".p2align 12")
    a("L_C:")
    if sonly:
        if stamps: a(f"v_writelane_b32 v{vStamp}, s96, 0")
        a("s_branch L_exit")
    vT, vTb, vHi = 5, 6, 15
    vXf, vB2f, vB1 = 10, 11, 12
    if wsb: a(f"s_add_u32 s56, s56, {wsb}\ns_addc_u32 s57, s57, 0")
    a(f"""s_load_dword s11, s[56:57], 0
v_mov_b32 v{vHi}, 0xffff0000
s_cmp_eq_u32 s3, 4
s_cbranch_scc1 L_H""")
    if stamps: a(f"v_writelane_b32 v{vStamp}, s96, 0")
    F = 32
    def unpack(src, dst, n):
        for k in range(n):
            a(f"v_lshlrev_b32 v{dst+2*k}, 16, v{src+k}\nv_and_b32 v{dst+2*k+1}, v{vHi}, v{src+k}")
    def stats(F):
        pk("add", 48, F, F + 2); pk("add", 50, F + 4, F + 6); pk("add", 52, F + 8, F + 10); pk("add", 54, F + 12, F + 14)
        pk("add", 48, 48, 50); pk("add", 52, 52, 54); pk("add", 48, 48, 52)
        a("v_add_f32 v48, v48, v49")
        red64(48, 14)
        a("v_mov_b32 v60, 0x3a800000\nv_mul_f32 v48, s14, v60")
        for k in range(0, 16, 4):
            pk("add", 52, F + k, 48, mods="op_sel_hi:[1,0] neg_lo:[0,1] neg_hi:[0,1]")
            pk("add", 54, F + k + 2, 48, mods="op_sel_hi:[1,0] neg_lo:[0,1] neg_hi:[0,1]")
            if k == 0: pk("mul", 50, 52, 52); pk("mul", 62, 54, 54)
            else: pk("fma", 50, 52, 52, 50); pk("fma", 62, 54, 54, 62)
        pk("add", 50, 50, 62)
        a("v_add_f32 v49, v50, v51")
        red64(49, 14)
        a(f"""v_mul_f32 v49, s14, v60
v_cvt_pk_bf16_f32 v48, v48, v49
v_and_b32 v49, v{vHi}, v48
v_lshlrev_b32 v48, 16, v48
v_add_f32 v49, 0x3727c5ac, v49
v_cvt_pk_bf16_f32 v49, v49, v49
v_and_b32 v49, v{vHi}, v49
v_sqrt_f32 v49, v49
v_cvt_pk_bf16_f32 v49, v49, v49
v_and_b32 v49, v{vHi}, v49
v_rcp_f32 v50, v49""")
    def normalize(F, n):
        for k in range(0, n, 2):
            pk("add", F + k, F + k, 48, mods="op_sel_hi:[1,0] neg_lo:[0,1] neg_hi:[0,1]")
        for k in range(0, n, 2):
            a(f"v_cvt_pk_bf16_f32 v52, v{F+k}, v{F+k+1}")
            a(f"v_lshlrev_b32 v{F+k}, 16, v52\nv_and_b32 v{F+k+1}, v{vHi}, v52")
            pk("mul", 52, F + k, 50, mods="op_sel_hi:[1,0]")
            pk("fma", F + k, 52, 48, F + k, mods="op_sel:[0,1,0] op_sel_hi:[1,1,1] neg_lo:[1,0,0] neg_hi:[1,0,0]")
            pk("fma", F + k, F + k, 50, 52, mods="op_sel_hi:[1,0,1]")
    def roundbf(F, n):
        for k in range(0, n, 2):
            a(f"v_cvt_pk_bf16_f32 v52, v{F+k}, v{F+k+1}")
            a(f"v_lshlrev_b32 v{F+k}, 16, v52\nv_and_b32 v{F+k+1}, v{vHi}, v52")
    def tagconsts():
        nonce()
        a(f"""v_mov_b32 v{vT}, s12
v_and_b32 v{vTb}, 0xff, v{vT}
v_bfe_u32 v{vTb+1}, v{vT}, 8, 8
v_bfe_u32 v{vTb+2}, v{vT}, 16, 8
v_lshrrev_b32 v{vTb+3}, 24, v{vT}""")
    a("s_waitcnt vmcnt(1)")
    stamp(1)
    unpack(20, F, 8)
    stats(F)
    a("s_waitcnt vmcnt(0)")
    unpack(28, 56, 2)
    normalize(56, 4)
    a(f"s_lshl_b32 s14, s16, 10\nv_add_u32 v16, s14, v{vL16}")
    a("s_cmp_ge_u32 s3, 2\ns_cbranch_scc1 L_ypath")
    for k in range(4): a(f"v_cvt_pk_bf16_f32 v{60+k}, v{56+k}, v{56+k}")
    a(f"ds_write_b128 v16, v[60:63] offset:{L_X}")
    signal(F_X)
    stamp(2)
    if touch and not nt:
        a("s_cmp_eq_u32 s3, 0\ns_cbranch_scc1 L_t0")
        touches([9, 13] + ([22] if g2 is not None else []) + [4] + (['f'] if bp is not None else []))
        a("s_branch L_lndone\nL_t0:")
        touches([19, 8, 11, 2] + ([32] if (bp is not None and bp < 24 + W[28]) else []))
    a("L_lndone:")
    a("s_waitcnt lgkmcnt(0)")
    tagconsts()
    def publish_part(lbase, flag, code, vaddr, extra, B=96):
        poll_lds(flag, 4, B + 16, code, "\n".join(f"ds_read_b128 v[{B+4*w}:{B+3+4*w}], v{vL16} offset:{lbase+512*w}" for w in range(4)))
        pk("add", B, B, B + 4); pk("add", B + 2, B + 2, B + 6); pk("add", B + 8, B + 8, B + 12); pk("add", B + 10, B + 10, B + 14)
        pk("add", B, B, B + 8); pk("add", B + 2, B + 2, B + 10)
        tag4(B, B, vT)
        a("s_mov_b32 exec_hi, 0")
        a(f"buffer_store_dwordx4 v[{B}:{B+3}], v{vaddr}, s[56:59], s30 offen {SF('q' if flag == F_Q else 'h')}")
        a(extra)
        a("s_mov_b64 exec, -1")
    def poll_hints(nq, code, thr=None, hw=16):
        L = newlab("HL"); D = newlab("HD"); R = newlab("HR")
        a(f"{L}:")
        if nq == 0: a("s_load_dwordx4 s[64:67], s[60:61], 0 glc")
        for q in range(nq * 16 // hw): a(f"s_load_dwordx{hw} s[{64+hw*q}:{63+hw*q+hw}], s[60:61], {64*q} glc")
        if thr is not None and thr < nq * 8:
            a("s_mov_b32 s14, 0\ns_waitcnt lgkmcnt(0)")
            for j in range(nq * 8): a(f"s_cmp_eq_u64 s[{64+2*j}:{65+2*j}], s[12:13]\ns_addc_u32 s14, s14, 0")
            a(f"s_cmp_ge_u32 s14, {thr}\ns_cbranch_scc1 {D}")
        else:
            a("s_waitcnt lgkmcnt(0)")
            for j in range(max(nq * 8, 2)):
                a(f"s_cmp_eq_u64 s[{64+2*j}:{65+2*j}], s[12:13]\ns_cbranch_scc0 {R}")
            a(f"s_branch {D}\n{R}:")
        if hsleep: a(f"s_sleep {hsleep}")
        spin(L, code)
        a(f"{D}:")
    def untag(G, n, vacc):
        for j in range(4 * n): a(f"v_xor_b32 v{G+j}, v{G+j}, v{vTb+(j&3)}")
        a(f"v_or3_b32 v{vacc}, v{G}, v{G+1}, v{G+2}")
        j = 3
        while j < 4 * n:
            if j + 1 < 4 * n: a(f"v_or3_b32 v{vacc}, v{vacc}, v{G+j}, v{G+j+1}"); j += 2
            else: a(f"v_or_b32 v{vacc}, v{vacc}, v{G+j}"); j += 1
        a(f"v_lshlrev_b32 v{vacc}, 24, v{vacc}")
    def retry_if(vacc, L, code):
        D = newlab("RD")
        a(f"v_cmp_ne_u32 vcc, 0, v{vacc}\ns_cbranch_vccz {D}")
        spin(L, code)
        a(f"{D}:")
    G = 16
    QRS = QR.bit_length() - 1; ORS = OR.bit_length() - 1
    QB = 6 + (16 // qhw).bit_length() - 1; OB = 7 + (16 // ohw).bit_length() - 1
    assert 16 * QR << QB <= WS_OH - WS_QH and 32 * OR << OB <= WS_LS - WS_OH
    vKa, vQw, vQr, vVa0, vVa1, vMl, vPw, vMw, vOd, vLs, vOh, vLg, vOw = 52, 53, 54, 55, 56, 57, 58, 59, 60, 61, 62, 63, 14
    a(f"""v_and_b32 v16, 15, v1
v_lshrrev_b32 v17, 4, v1
v_lshrrev_b32 v18, 2, v16
v_and_b32 v19, 3, v1
v_mul_u32_u24 v{vKa}, {KSTR}, v18
v_lshl_add_u32 v{vKa}, v19, 8, v{vKa}
v_xor_b32 v20, v17, v19
v_lshl_add_u32 v{vKa}, v20, 4, v{vKa}
s_mul_i32 s14, s3, {8*KSTR}
v_add_u32 v{vKa}, s14, v{vKa}
v_lshrrev_b32 v20, 5, v1
v_mul_u32_u24 v20, 288, v20
v_and_b32 v21, 31, v1
v_lshl_add_u32 v{vQw}, v21, 3, v20
s_mul_i32 s14, s3, 576
v_add_u32 v{vQw}, s14, v{vQw}
v_and_b32 v20, 7, v1
v_mul_u32_u24 v20, 288, v20
v_lshl_add_u32 v{vQr}, v17, 4, v20
v_mul_u32_u24 v20, {VSTR}, v17
v_lshl_add_u32 v20, v18, 8, v20
v_and_b32 v21, 1, v1
v_lshl_add_u32 v20, v21, 3, v20
v_add_u32 v20, {L_V}, v20
v_bfe_u32 v21, v1, 1, 1
s_lshl_b32 s14, s3, 2
v_add_u32 v21, s14, v21
v_lshlrev_b32 v22, 1, v18
v_xor_b32 v21, v21, v22
v_lshl_add_u32 v{vVa0}, v21, 4, v20
v_xor_b32 v21, 2, v21
v_lshl_add_u32 v{vVa1}, v21, 4, v20
v_lshlrev_b32 v{vMl}, 3, v16
v_and_b32 v20, 0x37, v1
v_lshlrev_b32 v13, 4, v20
v_and_b32 v21, 8, v1
{f"v_add_u32 v{vPw}, v13, v21" if half else f"v_mov_b32 v{vPw}, v{vL16}"}
{"" if half else f"v_mov_b32 v13, v{vL16}"}
s_lshl_b32 s14, s3, 10
v_add_u32 v{vPw}, s14, v{vPw}
s_lshl_b32 s14, s3, 7
v_add_u32 v{vMw}, s14, v{vMl}
v_and_b32 v20, 7, v1
v_bfe_u32 v21, v1, 3, 1
v_lshlrev_b32 v{vOd}, 14, v20
v_lshl_add_u32 v{vOd}, v21, 6, v{vOd}
v_lshl_add_u32 v{vOd}, v17, 4, v{vOd}
v_lshlrev_b32 v{vLs}, 10, v20
v_lshlrev_b32 v{vOh}, {OB}, v1
v_lshrrev_b32 v{vLg}, 3, v1
v_lshlrev_b32 v{vLg}, 3, v{vLg}
{f"v_lshl_add_u32 v{vOw}, v20, 2, v17" if not tpat else f"v_bfe_u32 v{vOw}, v1, 2, 1"}
{"" if not tpat else f"v_lshl_add_u32 v{vOw}, v{vOw}, 2, v17"}
{"" if not tpat else f"v_lshl_add_u32 v{vOw}, v{vOw}, 2, v19"}
v_lshlrev_b32 v{vOw}, 2, v{vOw}
v_add_u32 v{vOw}, s14, v{vOw}
s_lshl_b32 s14, s4, 5
s_add_u32 s14, s14, s3
s_lshl_b32 s28, s14, 12
s_lshl_b32 s17, s5, 7
s_add_u32 s28, s28, s17
s_add_u32 s28, s28, {WS_OP}
s_lshl_b32 s29, s14, 8
s_lshl_b32 s17, s5, 3
s_add_u32 s29, s29, s17
s_add_u32 s29, s29, {WS_LS}
s_lshl_b32 s31, s4, 2
s_add_u32 s31, s31, s3
s_lshl_b32 s31, s31, {OB+ORS}
s_lshr_b32 s17, s5, {ohw.bit_length()-1}
s_lshl_b32 s17, s17, 6
{"s_add_u32 s31, s31, s17" if not ocnt else ""}
s_and_b32 s17, s5, {ohw-1}
s_lshl_b32 s17, s17, 2
{"s_add_u32 s31, s31, s17" if not ocnt else ""}
s_add_u32 s31, s31, {WS_OH}
s_mov_b32 s18, 0xff00ff00
s_mov_b32 s19, 0xff00ff00
v_mov_b32 v48, 0x3db504f3
v_mov_b32 v50, 0x3fb8aa3b""")
    a("s_call_b64 s[94:95], L_oaddr")
    poll_lds(F_PQ if qpos else F_K2 if qwait >= 2 else F_K if qwait else F_Q, 4, 32, 19, sleep=ksl)
    Lq = newlab("GQ")
    if qdir == 2:
        a(f"s_branch {Lq}\nL_qslow:")
    if qdir != 1: poll_hints(1, 6, hw=qhw)
    stamp(4)
    a(f"{Lq}:")
    for i in range(4): a(f"buffer_load_dwordx4 v[{G+4*i}:{G+4*i+3}], v{vL16}, s[56:59], s62 offen offset:{1024*i} {LF('q')}")
    if g1 is not None or gq is not None: signal(F_QG)
    KF, VF, QF = 64, 96, 128
    poll_lds(F_K, 4, 32, 7, "\n".join(f"ds_read_b128 v[{KF+16*t+4*s}:{KF+16*t+4*s+3}], v{vKa} offset:{L_K+4*KSTR*t+64*s}" for t in range(2) for s in range(4)))
    vreads = []
    for w in range(4):
        for t, va in ((0, vVa0), (1, vVa1)):
            for T in range(2):
                r = VF + 8 * w + 4 * t + 2 * T
                vreads.append(f"ds_read_b64_tr_b16 v[{r}:{r+1}], v{va} offset:{(8*w+4*T)*VSTR}")
    a("s_waitcnt vmcnt(0)")
    if vpre: a(f"ds_read_b32 v33, v2 offset:{F_V}")
    for j in range(16): a(f"v_xor_b32 v{G+j}, v{G+j}, v{vTb+(j&3)}")
    pk("add", 36, G, G + 4); pk("add", 38, G + 2, G + 6); pk("add", 40, G + 8, G + 12); pk("add", 42, G + 10, G + 14)
    pk("add", 36, 36, 40); pk("add", 38, 38, 42)
    a(f"v_cvt_pk_bf16_f32 v36, v36, v37\nv_cvt_pk_bf16_f32 v37, v38, v39")
    a(f"ds_write_b64 v{vQw}, v[36:37] offset:{L_QBUF}")
    a(f"v_or3_b32 v32, v{G}, v{G+1}, v{G+2}\nv_or3_b32 v34, v{G+3}, v{G+4}, v{G+5}")
    for j in range(6, 14, 4): a(f"v_or3_b32 v32, v32, v{G+j}, v{G+j+1}\nv_or3_b32 v34, v34, v{G+j+2}, v{G+j+3}")
    a(f"v_or3_b32 v32, v32, v{G+14}, v{G+15}\nv_or_b32 v32, v32, v34\nv_lshlrev_b32 v32, 24, v32")
    retry_if(32, 'L_qslow' if qdir == 2 else Lq, 8)
    signal(F_B1)
    stamp(5)
    poll_lds(F_B1, 4, 32, 9, "\n".join(f"ds_read_b128 v[{QF+4*s}:{QF+4*s+3}], v{vQr} offset:{L_QBUF+64*s}" for s in range(4)))
    S = 40
    for s in range(4):
        for t in range(2):
            c = "0" if s == 0 else f"v[{S+4*t}:{S+4*t+3}]"
            a(f"v_mfma_f32_16x16x32_bf16 v[{S+4*t}:{S+4*t+3}], v[{KF+16*t+4*s}:{KF+16*t+4*s+3}], v[{QF+4*s}:{QF+4*s+3}], {c}")
    if vpre:
        a("v_readfirstlane_b32 s35, v33\ns_cmp_lt_u32 s35, 4\ns_cbranch_scc1 L_vlater")
        a("\n".join(vreads))
        a("L_vlater:\ns_nop 7")
    def xlane(v, tmp, op, fill=((), ())):
        for n_, sw in enumerate(("v_permlane16_swap_b32", "v_permlane32_swap_b32")):
            a(f"v_mov_b32 v{tmp}, v{v}")
            for f in fill[n_]: f()
            a(f"{sw} v{v}, v{tmp}\n{op} v{v}, v{v}, v{tmp}")
    if half:
        for k in range(4): a(f"v_cndmask_b32 v{S+k}, v{S+k}, v{S+4+k}, s[18:19]")
        nv_ = 4
    else: nv_ = 8
    for k in range(0, nv_, 2): a(f"v_cvt_pk_bf16_f32 v{32+k//2}, v{S+k}, v{S+k+1}")
    for k in range(0, nv_, 2): a(f"v_lshlrev_b32 v{S+k}, 16, v{32+k//2}\nv_and_b32 v{S+k+1}, v{vHi}, v{32+k//2}")
    for k in range(0, nv_, 2): pk("mul", S + k, S + k, 48, mods="op_sel_hi:[1,0]")
    for k in range(0, nv_, 2): a(f"v_cvt_pk_bf16_f32 v{32+k//2}, v{S+k}, v{S+k+1}")
    for k in range(0, nv_, 2): a(f"v_lshlrev_b32 v{S+k}, 16, v{32+k//2}\nv_and_b32 v{S+k+1}, v{vHi}, v{32+k//2}")
    l2 = lambda k: (lambda: pk("mul", S + k, S + k, 50, mods="op_sel_hi:[1,0]"))
    if half:
        a(f"v_max3_f32 v32, v{S}, v{S+1}, v{S+2}\nv_max_f32 v32, v32, v{S+3}")
        l2(0)(); l2(2)()
        a("v_max_f32_dpp v32, v32, v32 row_ror:8 row_mask:0xf bank_mask:0xf")
        xlane(32, 33, "v_max_f32")
    else:
        a(f"v_max3_f32 v32, v{S}, v{S+1}, v{S+2}\nv_max3_f32 v33, v{S+3}, v{S+4}, v{S+5}\nv_max3_f32 v32, v32, v{S+6}, v{S+7}\nv_max_f32 v32, v32, v33")
        xlane(32, 33, "v_max_f32", ((l2(0), l2(2)), (l2(4), l2(6))))
    a("v_mul_f32 v32, v50, v32")
    for k in range(0, nv_, 2): pk("add", S + k, S + k, 32, mods="op_sel_hi:[1,0] neg_lo:[0,1] neg_hi:[0,1]")
    for k in range(nv_): a(f"v_exp_f32 v{S+k}, v{S+k}")
    pk("add", 34, S, S + 2)
    if half:
        a(f"v_cvt_pk_bf16_f32 v36, v{S}, v{S+1}\nv_add_f32 v33, v34, v35\nv_cvt_pk_bf16_f32 v37, v{S+2}, v{S+3}")
        a(f"ds_write_b64 v{vPw}, v[36:37] offset:{L_P}")
        a("v_add_f32_dpp v33, v33, v33 row_ror:8 row_mask:0xf bank_mask:0xf")
    else:
        for k in range(0, 4, 2): a(f"v_cvt_pk_bf16_f32 v{36+k//2}, v{S+k}, v{S+k+1}")
        pk("add", 34, 34, S + 4)
        for k in range(4, 8, 2): a(f"v_cvt_pk_bf16_f32 v{36+k//2}, v{S+k}, v{S+k+1}")
        pk("add", 34, 34, S + 6)
        a(f"ds_write_b128 v{vPw}, v[36:39] offset:{L_P}")
        a(f"v_add_f32 v33, v34, v35")
    xlane(33, 35, "v_add_f32")
    a(f"ds_write_b64 v{vMw}, v[32:33] offset:{L_ML}")
    signal(F_B2)
    stamp(6)
    if vpre: a("s_cmp_ge_u32 s35, 4\ns_cbranch_scc1 L_vdone")
    poll_lds(F_V, 4, 32, 10)
    a("\n".join(vreads))
    if vpre: a("L_vdone:")
    PW = 16; ML = 32; AC = 128
    poll_lds(F_B2, 4, 40, 11, "\n".join([f"ds_read_b128 v[{PW+4*w}:{PW+4*w+3}], v13 offset:{L_P+1024*w}" for w in range(4)] +
                                       [f"ds_read_b64 v[{ML+2*w}:{ML+2*w+1}], v{vMl} offset:{L_ML+128*w}" for w in range(4)]))
    stamp(7)
    fill = [f"v_max3_f32 v41, v{ML}, v{ML+2}, v{ML+4}\nv_max_f32 v41, v41, v{ML+6}",
            f"v_sub_f32 v40, v{ML}, v41\nv_sub_f32 v42, v{ML+2}, v41",
            f"v_sub_f32 v44, v{ML+4}, v41\nv_sub_f32 v46, v{ML+6}, v41",
            "v_exp_f32 v40, v40", "v_exp_f32 v42, v42", "v_exp_f32 v44, v44", "v_exp_f32 v46, v46",
            f"v_mul_f32 v43, v40, v{ML+1}\nv_fmac_f32 v43, v42, v{ML+3}"]
    for w in range(4):
        for t in range(2):
            r = AC + 8 * w + 4 * t
            a(f"v_mfma_f32_16x16x32_bf16 v[{r}:{r+3}], v[{VF+8*w+4*t}:{VF+8*w+4*t+3}], v[{PW+4*w}:{PW+4*w+3}], 0")
            a(fill[2 * w + t])
    a(f"v_fmac_f32 v43, v44, v{ML+5}\nv_fmac_f32 v43, v46, v{ML+7}")
    for k in range(4): a(f"v_cndmask_b32 v{AC+k}, v{AC+k}, v{AC+4+k}, s[18:19]")
    a("v_rcp_f32 v48, v43\nv_log_f32 v43, v43")
    for w in range(1, 4):
        for k in range(4): a(f"v_cndmask_b32 v{AC+8*w+k}, v{AC+8*w+k}, v{AC+8*w+4+k}, s[18:19]")
    for k in (0, 2): pk("mul", 16 + k, AC + k, 40, mods="op_sel_hi:[1,0]")
    for w in range(1, 4):
        for k in (0, 2): pk("fma", 16 + k, AC + 8 * w + k, 40 + 2 * w, 16 + k, mods="op_sel_hi:[1,0,1]")
    for k in (0, 2): pk("mul", 16 + k, 16 + k, 48, mods="op_sel_hi:[1,0]")
    tag4(16, 16, vT)
    a(f"""buffer_store_dwordx4 v[16:19], v{vOd}, s[56:59], s28 offen {SF('o')}
v_add_f32 v46, v41, v43
v_mov_b32 v47, v{vT}
s_mov_b64 exec, 0xff
{HST2} v[46:47], v{vLs}, s[56:59], s29 offen sc1
s_mov_b32 exec_lo, {hex((1<<OR)-1)}
{f"buffer_atomic_add v3, v{vOh}, s[56:59], s31 offen sc1" if ocnt else f"{HST} v{vT}, v{vOh}, s[56:59], s31 offen sc1"}
s_mov_b64 exec, -1
s_mov_b32 s60, s36
s_mov_b32 s61, s37""")
    if g3 is not None: signal(F_OP)
    stamp(8)
    if oack: a("s_waitcnt vmcnt(0)")
    if opos: poll_lds(F_PO, 4, 32, 25, sleep=2)
    if ocnt:
        Lc = newlab("OC"); Dc = newlab("OD")
        a(f"{Lc}:\ns_load_dword s64, s[60:61], 0 glc\ns_waitcnt lgkmcnt(0)\ns_cmp_eq_u32 s64, 32\ns_cbranch_scc1 {Dc}")
        spin(Lc, 13)
        a(f"{Dc}:")
    elif othr: poll_hints(2, 13, othr, hw=ohw)
    elif touch: a("s_branch L_no13\nT_13:\ns_setpc_b64 s[94:95]\nL_no13:")
    stamp(9)
    Lo = newlab("GO")
    a("s_mov_b64 vcc, -1")
    a(f"{Lo}:")
    for i in range(4): a(f"buffer_load_dwordx2 v[{32+2*i}:{33+2*i}], v{vLg}, s[56:59], s39 offen offset:{64*i} {LF('l')}")
    a("s_mov_b64 exec, vcc")
    for i in range(4): a(f"buffer_load_dwordx4 v[{G+4*i}:{G+4*i+3}], v{vL16}, s[56:59], s38 offen offset:{1024*i} {LF('o')}")
    if (g2 is not None or gs is not None) and not ogs: signal(F_OG)
    else: a("s_mov_b64 exec, -1")
    a("s_waitcnt vmcnt(4)")
    a("v_max3_f32 v40, v32, v34, v36\nv_max_f32 v40, v40, v38")
    a(f"v_xor_b32 v41, v33, v{vT}\nv_bitop3_b32 v41, v41, v35, v{vT} bitop3:0xf6")
    a("v_max_f32_dpp v40, v40, v40 row_ror:8 row_mask:0xf bank_mask:0xf")
    xlane(40, 42, "v_max_f32", ((lambda: a(f"v_bitop3_b32 v41, v41, v37, v{vT} bitop3:0xf6\nv_bitop3_b32 v41, v41, v39, v{vT} bitop3:0xf6"),), ()))
    for i in range(4): a(f"v_sub_f32 v{32+2*i}, v{32+2*i}, v40")
    for i in range(4): a(f"v_exp_f32 v{32+2*i}, v{32+2*i}")
    a("s_waitcnt vmcnt(0)")
    xs = [f"v_xor_b32 v{G+j}, v{G+j}, v{vTb+(j&3)}" for j in range(16)]
    a("v_add_f32 v43, v32, v34\nv_add_f32 v42, v36, v38\nv_add_f32 v43, v43, v42")
    a("\n".join(xs[0:2])); a("v_add_f32_dpp v43, v43, v43 row_ror:8 row_mask:0xf bank_mask:0xf")
    xlane(43, 42, "v_add_f32", ((lambda: a("\n".join(xs[2:6])),), (lambda: a("\n".join(xs[6:10])),)))
    a("v_rcp_f32 v43, v43"); a("\n".join(xs[10:16]))
    for k in (0, 2): pk("mul", 44 + k, G + k, 32, mods="op_sel_hi:[1,0]")
    for i in range(1, 4):
        for k in (0, 2): pk("fma", 44 + k, G + 4 * i + k, 32 + 2 * i, 44 + k, mods="op_sel_hi:[1,0,1]")
    ors = [f"v_or3_b32 v42, v{G}, v{G+1}, v{G+2}"] + [f"v_or3_b32 v42, v42, v{G+j}, v{G+j+1}" for j in range(3, 15, 2)] + [f"v_or_b32 v42, v42, v{G+15}", "v_lshl_or_b32 v42, v42, 24, v41"]
    def rscatter(v, fill=((), (), ())):
        for f in fill[0]: a(f)
        a(f"v_permlane32_swap_b32 v{v}, v{v+2}\nv_permlane32_swap_b32 v{v+1}, v{v+3}")
        a(f"v_add_f32 v{v}, v{v}, v{v+2}\nv_add_f32 v{v+1}, v{v+1}, v{v+3}")
        for f in fill[1]: a(f)
        a(f"v_permlane16_swap_b32 v{v}, v{v+1}\nv_add_f32 v{v}, v{v}, v{v+1}")
        for f in fill[2]: a(f)
    rscatter(44, (ors[0:2], ors[2:4], ors[4:6]))
    a("v_add_f32_dpp v44, v44, v44 row_ror:8 row_mask:0xf bank_mask:0xf")
    a("\n".join(ors[6:]))
    a("v_mul_f32 v44, v44, v43\nv_cvt_pk_bf16_f32 v44, v44, v44")
    a("v_cmp_ne_u32 vcc, 0, v42\ns_cbranch_vccnz L_oretry")
    a(f"ds_write_b32 v{vOw}, v44 offset:{L_O}")
    signal(F_O)
    if g2 is not None and ogs: signal(F_OG)
    stamp(11)
    a("s_branch L_exit")
    if align >= 2: a(".p2align 12")
    if touch: a("T_y:\ns_setpc_b64 s[94:95]")
    a("L_ypath:")
    roundbf(56, 4)
    normalize(F, 16)
    roundbf(F, 16)
    stats(F)
    normalize(56, 4)
    for k in range(4): a(f"v_cvt_pk_bf16_f32 v{60+k}, v{56+k}, v{56+k}")
    a(f"ds_write_b128 v16, v[60:63] offset:{L_Y}")
    signal(F_Y)
    stamp(3)
    a("s_branch L_lndone")

    a("L_oretry:")
    a("\n".join(xs))
    spin(Lo, 14)
    a("L_oaddr:")
    a(f"""s_and_b32 s14, s4, 3
s_lshl_b32 s14, s14, 2
s_add_u32 s14, s14, s3
s_lshl_b32 s14, s14, {QB+QRS}
s_lshr_b32 s15, s4, 2
s_lshl_b32 s15, s15, 5
s_add_u32 s15, s15, s5
s_lshr_b32 s15, s15, {6-QRS}
s_lshl_b32 s15, s15, {QB}
s_add_u32 s14, s14, s15
s_add_u32 s14, s14, {WS_QH}
s_add_u32 s60, s56, s14
s_addc_u32 s61, s57, 0
s_and_b32 s14, s4, 3
s_lshl_b32 s14, s14, 1
s_lshr_b32 s15, s4, 2
s_add_u32 s14, s14, s15
s_lshl_b32 s14, s14, 14
s_lshl_b32 s15, s3, 12
s_add_u32 s14, s14, s15
s_add_u32 s62, s14, {WS_QP}""")
    a(f"""s_lshr_b32 s14, s3, 1
s_and_b32 s15, s6, 1
s_lshl_b32 s15, s15, 1
s_and_b32 s16, s3, 1
s_add_u32 s15, s15, s16
s_lshl_b32 s16, s14, 2
s_lshr_b32 s17, s6, 4
s_add_u32 s16, s16, s17
s_lshl_b32 s16, s16, 2
s_add_u32 s16, s16, s15
s_lshl_b32 s16, s16, {ORS}
s_bfe_u32 s17, s6, 0x30001
s_lshl_b32 s17, s17, 2
s_add_u32 s17, s17, s7
s_lshr_b32 s17, s17, {5-ORS}
s_add_u32 s16, s16, s17
s_lshl_b32 s16, s16, {OB}
s_add_u32 s16, s16, {WS_OH}
s_add_u32 s36, s56, s16
s_addc_u32 s37, s57, 0
s_lshl_b32 s16, s14, 5
s_lshr_b32 s17, s6, 1
s_add_u32 s16, s16, s17
s_lshl_b32 s16, s16, 2
s_add_u32 s16, s16, s15
s_lshl_b32 s38, s16, 12
s_add_u32 s38, s38, {WS_OP}
s_lshl_b32 s39, s16, 8
s_add_u32 s39, s39, {WS_LS}""")
    a("s_setpc_b64 s[94:95]")
    a("L_H:")
    if touch and not nt: touches(['y'])
    a("""s_mov_b64 s[36:37], s[86:87]
s_load_dwordx2 s[40:41], s[0:1], 72
s_load_dwordx2 s[44:45], s[0:1], 80""")
    if stamps: a(f"v_writelane_b32 v{vStamp}, s96, 0")
    a(f"""s_mov_b32 s38, 7168
s_mov_b32 s39, 0x20000
s_mov_b32 s42, 2048
s_mov_b32 s43, 0x20000
s_mov_b32 s46, 4096
s_mov_b32 s47, 0x20000
v_and_b32 v16, 1, v1
v_lshrrev_b32 v17, 4, v1
v_lshl_add_u32 v16, v16, 2, v17
v_lshlrev_b32 v14, 1, v16
s_lshl_b32 s34, s4, 5
s_add_u32 s34, s34, s5
s_lshl_b32 s33, s34, 4
s_and_b32 s15, s33, 2047
v_and_b32 v16, 15, v1
v_lshlrev_b32 v16, 3, v16
s_lshl_b32 s17, s8, 7
s_waitcnt lgkmcnt(0)
buffer_load_ushort v{vXf}, v14, s[24:27], s33 offen {xfl}
buffer_load_ushort v{vB2f}, v14, s[40:43], s15 offen {xfl}
buffer_load_dwordx2 v[{vB1}:{vB1+1}], v16, s[36:39], s17 offen {xfl}""")
    if probe is not None:
        a(f"""s_cmp_lg_u32 s2, 5
s_cbranch_scc1 L_noprobe
s_load_dword s64, s[56:57], {probe + 0x2000} glc
s_waitcnt lgkmcnt(0)
s_memrealtime s[64:65]
s_waitcnt lgkmcnt(0)
s_load_dword s66, s[56:57], {probe} glc
s_load_dword s67, s[56:57], {probe + 0x380} glc
s_waitcnt lgkmcnt(0)
s_memrealtime s[66:67]
s_waitcnt lgkmcnt(0)
s_sub_u32 s64, s66, s64
s_lshl_b32 s64, s64, 4
s_add_u32 s96, s96, s64
L_noprobe:""")
    if spt & 1:
        a(f"""s_lshl_b32 s14, s2, 8
s_add_u32 s14, s14, {WS_LS}
s_add_u32 s60, s56, s14
s_addc_u32 s61, s57, 0
s_load_dword s64, s[60:61], 0 glc
s_load_dword s65, s[60:61], 64 glc
s_load_dword s66, s[60:61], 128 glc
s_load_dword s67, s[60:61], 192 glc
s_and_b32 s14, s2, {(16 * QR << QB) // 64 - 1}
s_lshl_b32 s14, s14, 6
s_add_u32 s14, s14, {WS_QH}
s_load_dword s68, s[56:57], s14 glc
s_mul_i32 s14, s2, {(32 * OR << OB) // 256}
s_add_u32 s14, s14, {WS_OH}
s_load_dword s69, s[56:57], s14 glc
s_lshl_b32 s14, s8, 7
s_add_u32 s14, s14, {WS_HH}
s_load_dword s70, s[56:57], s14 glc""")
    if ptouch:
        a(f"""v_and_b32 v90, 7, v1
v_lshrrev_b32 v91, 3, v1
v_lshlrev_b32 v92, 14, v90
v_lshl_add_u32 v92, v91, 12, v92
s_lshl_b32 s14, s4, 17
s_lshl_b32 s15, s5, 7
s_add_u32 s14, s14, s15
s_add_u32 s14, s14, {WS_OP}
v_add_u32 v92, s14, v92
v_and_b32 v91, 1, v91
v_lshlrev_b32 v93, 7, v90
v_lshl_add_u32 v93, v91, 12, v93
s_mul_i32 s14, s6, {fps}
s_lshl_b32 s15, s7, 10
s_add_u32 s14, s14, s15
s_add_u32 s14, s14, {WS_FP}
v_add_u32 v93, s14, v93
v_cmp_lt_u32 vcc, 31, v1
v_cndmask_b32 v92, v92, v93, vcc
v_and_b32 v93, 1, v1
v_lshlrev_b32 v93, 7, v93
v_bfe_u32 v91, v1, 1, 1
v_lshl_add_u32 v93, v91, 14, v93
s_lshr_b32 s14, s6, 4
s_lshl_b32 s14, s14, 15
s_bfe_u32 s15, s6, 0x20002
s_lshl_b32 s15, s15, 12
s_add_u32 s14, s14, s15
s_lshl_b32 s15, s7, 10
s_add_u32 s14, s14, s15
s_and_b32 s15, s6, 3
s_lshl_b32 s15, s15, 8
s_add_u32 s14, s14, s15
s_add_u32 s14, s14, {WS_QP}
v_add_u32 v93, s14, v93
v_cmp_lt_u32 vcc, 47, v1
v_cndmask_b32 v92, v92, v93, vcc
v_and_b32 v93, 3, v1
v_lshlrev_b32 v93, 7, v93
s_lshl_b32 s14, s8, 11
s_lshl_b32 s15, s7, 9
s_add_u32 s14, s14, s15
s_add_u32 s14, s14, {WS_HP}
v_add_u32 v93, s14, v93
v_cmp_lt_u32 vcc, 51, v1
v_cndmask_b32 v92, v92, v93, vcc
v_and_b32 v93, 3, v1
v_lshlrev_b32 v93, 7, v93
s_mul_i32 s14, s2, {(WS_QP - WS_HH) // 256}
s_and_b32 s14, s14, 0xffffff80
s_add_u32 s14, s14, {WS_HH}
v_subrev_u32 v91, 56, v1
v_lshlrev_b32 v91, 7, v91
v_add_u32 v93, s14, v91
v_cmp_lt_u32 vcc, 55, v1
v_cndmask_b32 v92, v92, v93, vcc
buffer_load_dword v94, v92, s[56:59], 0 offen {ptf}
buffer_load_dword v95, v92, s[56:59], 0 offen offset:64 {ptf}""")
    tagconsts()
    if ocnt:
        a(f"""s_and_b32 s14, s6, 15
s_lshl_b32 s14, s14, 2
s_add_u32 s14, s14, s7
s_cmp_ge_u32 s14, {8*OR}
s_cbranch_scc1 L_noclr
s_lshr_b32 s15, s14, {2+ORS}
s_lshl_b32 s15, s15, 2
s_lshr_b32 s17, s6, 4
s_add_u32 s15, s15, s17
s_lshl_b32 s15, s15, {2+ORS}
s_and_b32 s14, s14, {4*OR-1}
s_add_u32 s14, s14, s15
s_lshl_b32 s14, s14, 7
s_add_u32 s14, s14, {WS_OH}
s_mov_b64 exec, 1
buffer_atomic_swap v2, v2, s[56:59], s14 offen sc1
s_mov_b64 exec, -1
s_waitcnt vmcnt(0)
L_noclr:""")
    a(f"""v_lshrrev_b32 v80, 4, v1
v_and_b32 v81, 15, v1
v_lshlrev_b32 v81, 4, v81
v_lshl_add_u32 v80, v80, 14, v81
v_lshlrev_b32 v81, {QB}, v1
s_lshr_b32 s14, s6, 4
s_lshl_b32 s14, s14, 15
s_bfe_u32 s15, s6, 0x20002
s_lshl_b32 s15, s15, 12
s_add_u32 s14, s14, s15
s_lshl_b32 s15, s7, 10
s_add_u32 s14, s14, s15
s_and_b32 s15, s6, 3
s_lshl_b32 s15, s15, 8
s_add_u32 s14, s14, s15
s_add_u32 s30, s14, {WS_QP}
s_lshr_b32 s15, s6, 2
s_lshl_b32 s15, s15, {QB+QRS}
s_and_b32 s17, s6, 3
s_lshl_b32 s17, s17, 2
s_add_u32 s17, s17, s7
s_lshr_b32 s16, s17, {qhw.bit_length()-1}
s_lshl_b32 s16, s16, 6
s_add_u32 s15, s15, s16
s_and_b32 s17, s17, {qhw-1}
s_lshl_b32 s17, s17, 2
s_add_u32 s15, s15, s17
s_add_u32 s31, s15, {WS_QH}""")
    if qdir == 1: publish_part(L_QPART, F_Q, 5, 80, "s_nop 0")
    else: publish_part(L_QPART, F_Q, 5, 80, ("s_mov_b64 exec, -1" if QR == 64 else f"s_mov_b32 exec_lo, {hex((1<<QR)-1)}") + f"\n{HST} v{vT}, v81, s[56:59], s31 offen sc1")
    stamp(3)
    if touch and not nt: touches([12, 16, 18])
    if spt & 2:
        a(f"s_mul_i32 s14, s6, {fps}\ns_lshl_b32 s15, s7, 10\ns_add_u32 s14, s14, s15\ns_add_u32 s14, s14, {WS_FP}\ns_add_u32 s60, s56, s14\ns_addc_u32 s61, s57, 0")
        if spt & 4: poll_lds(F_B1, 4, 32, 26, sleep=4)
        for k in range(32):
            a(f"s_load_dword s{64 + (k & 7)}, s[60:61], {(k >> 4) * 4096 + (k & 15) * 64} glc")
            if k % 8 == 7: a("s_waitcnt lgkmcnt(0)")
    if tpat: a("v_bfe_u32 v48, v1, 2, 3\nv_lshlrev_b32 v48, 6, v48\nv_and_b32 v49, 3, v1\nv_lshl_add_u32 v48, v49, 2, v48")
    else: a("v_and_b32 v48, 31, v1\nv_lshlrev_b32 v48, 4, v48")
    a(f"""s_nop 0
s_lshl_b32 s52, s34, 5
s_add_u32 s52, s52, {WS_FP}
s_add_u32 s53, s52, {32*fps}
v_lshrrev_b32 v50, 1, v1
v_mul_u32_u24 v50, {fps}, v50
v_and_b32 v51, 1, v1
v_lshl_add_u32 v50, v51, 4, v50
s_waitcnt vmcnt(2)
v_lshlrev_b32 v{vXf}, 16, v{vXf}
v_lshlrev_b32 v{vB2f}, 16, v{vB2f}
v_add_f32 v{vXf}, v{vXf}, v{vB2f}
v_mov_b32 v44, 0
v_mov_b32 v45, 0
v_mov_b32 v46, 0
v_mov_b32 v47, 0
s_cmp_eq_u32 s9, 0
s_cbranch_scc1 L_hwrite
s_lshl_b32 s62, s8, 11
s_add_u32 s62, s62, {WS_HP}
s_lshl_b32 s15, s7, 9
s_add_u32 s30, s62, s15""")
    unpack(vB1, 76, 2)
    if hloc:
        a(f"s_add_u32 s31, s30, {WS_HL - WS_HP}\ns_add_u32 s63, s62, {WS_HL - WS_HP}\ns_add_u32 s60, s56, s63\ns_addc_u32 s61, s57, 0\ns_and_b32 s28, s12, 0xff\ns_mov_b32 s17, 0")
        publish_part(L_HPART, F_H, 12, vL16, f"buffer_store_dwordx4 v[96:99], v{vL16}, s[56:59], s31 offen")
        stamp(4)
        L1 = newlab("HA"); L2 = newlab("HB")
        a(f"{L1}:")
        for k in range(4): a(f"s_load_dword s{64+k}, s[60:61], {512*k} glc")
        a(f"s_add_u32 s17, s17, 1\ns_cmp_ge_u32 s17, {hloc}\ns_cbranch_scc1 {L2}\ns_waitcnt lgkmcnt(0)")
        a("s_xor_b32 s64, s64, s28\ns_xor_b32 s65, s65, s28\ns_xor_b32 s66, s66, s28\ns_xor_b32 s67, s67, s28\ns_or_b32 s64, s64, s65\ns_or_b32 s66, s66, s67\ns_or_b32 s64, s64, s66\ns_and_b32 s64, s64, 0xff")
        a(f"s_cbranch_scc1 {L1}")
        for i in range(2): a(f"buffer_load_dwordx4 v[{G+4*i}:{G+4*i+3}], v{vL16}, s[56:59], s63 offen offset:{1024*i} sc1")
        stamp(5)
        a("s_waitcnt vmcnt(0)")
        untag(G, 2, 42)
        a(f"v_cmp_ne_u32 vcc, 0, v42\ns_cbranch_vccz L_hok\ns_branch {L1}\n{L2}:\ns_waitcnt lgkmcnt(0)")
    else:
        a(f"s_lshl_b32 s14, s8, 7\ns_add_u32 s14, s14, {WS_HH}\ns_add_u32 s60, s56, s14\ns_addc_u32 s61, s57, 0\ns_lshl_b32 s17, s7, 2\ns_add_u32 s31, s14, s17")
        publish_part(L_HPART, F_H, 12, vL16, f"s_mov_b32 exec_lo, 1\n{HST} v{vT}, v2, s[56:59], s31 offen sc1")
        stamp(4)
        poll_hints(0, 15)
        stamp(5)
    Lh = newlab("GH")
    a(f"{Lh}:")
    for i in range(2): a(f"buffer_load_dwordx4 v[{G+4*i}:{G+4*i+3}], v{vL16}, s[56:59], s62 offen offset:{1024*i} {LF('h')}")
    a("s_waitcnt vmcnt(0)")
    untag(G, 2, 42)
    retry_if(42, Lh, 16)
    a("L_hok:")
    stamp(6)
    pk("add", G, G, G + 4); pk("add", G + 2, G + 2, G + 6)
    for k in range(4): a(f"v_mov_b32 v{G+4+k}, v{G+k}")
    for k in range(4): a(f"v_permlane32_swap_b32 v{G+k}, v{G+4+k}")
    pk("add", G, G, G + 4); pk("add", G + 2, G + 2, G + 6)
    roundbf(G, 4)
    pk("add", G, G, 76); pk("add", G + 2, G + 2, 78)
    roundbf(G, 4)
    a("s_mov_b32 s14, 0x3d372713\ns_mov_b32 s15, 0xc0135761")
    for k in (0, 2): pk("mul", 24 + k, G + k, G + k)
    for k in (0, 2): pk("mul", 24 + k, 24 + k, G + k)
    for k in range(4): a(f"v_fma_f32 v{24+k}, s14, v{24+k}, v{G+k}")
    for k in range(4): a(f"v_mul_f32 v{24+k}, s15, v{24+k}")
    for k in range(4): a(f"v_exp_f32 v{24+k}, v{24+k}")
    for k in range(4): a(f"v_add_f32 v{24+k}, 1.0, v{24+k}")
    for k in range(4): a(f"v_rcp_f32 v{24+k}, v{24+k}")
    for k in (0, 2): pk("mul", 24 + k, 24 + k, G + k)
    for k in range(4): a(f"v_cvt_pk_bf16_f32 v{44+k}, v{24+k}, v{24+k}")
    a("L_hwrite:")
    if tpat:
        for k in range(4): a(f"ds_write_b32 v48, v{44+k} offset:{L_H+16*k}")
    else: a(f"ds_write_b128 v48, v[44:47] offset:{L_H}")
    signal(F_HD)
    stamp(12)
    if tall == 2 and xt != 3: a("s_waitcnt lgkmcnt(0)\ns_barrier")
    poll_lds(F_FP, 4, 32, 18, sleep=0 if tall == 2 else 1)
    stamp(7)
    if fdelay: a(f"s_sleep {fdelay}")
    Lf = newlab("GF"); Ld = newlab("GD")
    sets = [64 + 8 * k for k in range(fsets)]
    def fissue(R):
        for i in range(2): a(f"buffer_load_dwordx4 v[{R+4*i}:{R+4*i+3}], v50, s[56:59], s{52+i} offen {LF('f')}")
    for R in sets[:-1]: fissue(R)
    a(f"{Lf}:")
    if fastfin:
        for k, R in enumerate(sets):
            fissue(sets[k - 1])
            a(f"s_waitcnt vmcnt({2*(fsets-1)})")
            for j in range(8): a(f"v_xor_b32 v{R+j}, v{R+j}, v{vTb+(j&3)}")
            pk("add", 44, R, R + 4); pk("add", 46, R + 2, R + 6)
            rscatter(44, ((f"v_or3_b32 v42, v{R}, v{R+1}, v{R+2}", f"v_or3_b32 v42, v42, v{R+3}, v{R+4}"),
                          (f"v_or3_b32 v42, v42, v{R+5}, v{R+6}", f"v_or_b32 v42, v42, v{R+7}"),
                          ("v_lshlrev_b32 v42, 24, v42", "v_cmp_ne_u32 vcc, 0, v42")))
            a("v_add_f32_dpp v44, v44, v44 quad_perm:[2,3,0,1] row_mask:0xf bank_mask:0xf")
            a(f"s_cbranch_vccz {Ld}")
        spin(Lf, 17)
        a(f"{Ld}:")
        stamp(13)
        R = 44
        a("s_nop 0")
        a(f"v_add_f32_dpp v{R}, v{R}, v{R} row_ror:4 row_mask:0xf bank_mask:0xf")
        a(f"v_add_f32_dpp v{R}, v{R}, v{R} row_ror:8 row_mask:0xf bank_mask:0xf")
    else:
        for k, R in enumerate(sets):
            fissue(sets[k - 1])
            a(f"s_waitcnt vmcnt({2*(fsets-1)})")
            untag(R, 2, 42)
            pk("add", 44, R, R + 4); pk("add", 46, R + 2, R + 6)
            a(f"v_cmp_ne_u32 vcc, 0, v42\ns_cbranch_vccz {Ld}")
        spin(Lf, 17)
        a(f"{Ld}:")
        stamp(13)
        R = 44
        rscatter(R)
        for m in ("quad_perm:[2,3,0,1]", "row_ror:4", "row_ror:8"):
            a(f"v_add_f32_dpp v{R}, v{R}, v{R} {m} row_mask:0xf bank_mask:0xf")
    a(f"s_mov_b32 exec_lo, 0x00030003\ns_mov_b32 exec_hi, 0x00030003")
    a(f"v_add_f32 v{R}, v{R}, v{vXf}\nv_cvt_pk_bf16_f32 v{R}, v{R}, v{R}\nbuffer_store_short v{R}, v14, s[44:47], s33 offen {oflags}")
    a(f"s_cmp_lg_u32 s2, 0\ns_cbranch_scc1 L_noep\ns_add_u32 s11, s11, 1\nv_mov_b32 v{R+1}, s11\ns_mov_b64 exec, 1\nbuffer_store_dword v{R+1}, v2, s[56:59], 0 offen {oflags}\nL_noep:\ns_mov_b64 exec, -1")
    stamp(14, True)
    if fixdur:
        a(f"s_add_u32 s96, s96, {fixdur}\nL_fix:\ns_memrealtime s[98:99]\ns_waitcnt lgkmcnt(0)\ns_sub_u32 s98, s98, s96\ns_cmp_lt_i32 s98, 0\ns_cbranch_scc1 L_fix")
    a("L_exit:")
    if stamps:
        a(f"""s_waitcnt vmcnt(0)
v_lshrrev_b32 v20, 6, v0
v_lshlrev_b32 v20, 6, v20
v_lshl_add_u32 v20, v1, 2, v20
s_lshl_b32 s14, s2, 10
s_add_u32 s14, s14, {WS_ST}
s_mov_b64 exec, 0xffff
buffer_store_dword v{vStamp}, v20, s[56:59], s14 offen""")
    a("L_end:\ns_endpgm")
    a("L_fail:")
    a("""s_load_dwordx2 s[48:49], s[0:1], 88
s_mov_b32 s50, 256
s_mov_b32 s51, 0x20000
s_lshl_b32 s14, s15, 2
v_mov_b32 v20, s2
v_add_u32 v20, 1, v20
s_waitcnt lgkmcnt(0)
s_mov_b64 exec, 1
buffer_store_dword v20, v2, s[48:51], s14 offen
s_endpgm""")
    if fastcode:
        a(".p2align 12\nT_f:\ns_setpc_b64 s[94:95]\nL_fast:")
        pend2, st['landed'] = fastcode[0]
        st['cofs'] = 30
        Wf = [max(w, bw) for w in W]
        emit_stream(bp, Wf, pend2, gates if bgate else {}, True)
        a("s_branch L_join")
    if post: a(f".fill {post}, 4, 0xbf800000")
    nv = 168
    a(f""".section .rodata,"a"
.p2align 6
.amdhsa_kernel {KNAME}
  .amdhsa_next_free_vgpr {nv}
  .amdhsa_next_free_sgpr 102
  .amdhsa_accum_offset {nv}
  .amdhsa_group_segment_fixed_size 0
  .amdhsa_kernarg_size 104
  .amdhsa_user_sgpr_count 2
  .amdhsa_user_sgpr_kernarg_segment_ptr 1
  .amdhsa_system_sgpr_workgroup_id_x 1
  .amdhsa_float_denorm_mode_32 3
.end_amdhsa_kernel""")
    return a.finish()

if __name__ == "__main__":
    out = sys.argv[1] if len(sys.argv) > 1 else "x.s"
    open(out, "w").write(gen())
```
